```python
import torch

def _softmax(x, axis=-1):
    return torch.softmax(x, dim=axis)
def _gelu(x):
    return torch.nn.functional.gelu(x, approximate="tanh")
def _silu(x):
    return torch.nn.functional.silu(x)
def _sigmoid(x):
    return torch.sigmoid(x)
def _layernorm(x, axis=-1, eps=1e-5):
    m = x.mean(dim=axis, keepdim=True)
    v = x.var(dim=axis, keepdim=True, unbiased=False)
    return (x - m) / torch.sqrt(v + eps)
def _scatter_add(tgt, idx, src, axis=0):
    return tgt.clone().index_add_(axis, idx, src)
def _segment_sum(src, seg, n):
    out = torch.zeros((n,) + src.shape[1:], dtype=src.dtype)
    return out.index_add_(0, seg, src)
def _pad(x, pw):
    flat = tuple(v for pair in reversed(pw) for v in pair)
    return torch.nn.functional.pad(x, flat)

kernel_name = 'recurrent_scan__gqa_block_cached__glu_gated_glu__decode'

def setup_inputs():

    _w = (lambda a: (lambda t: t.to(torch.bfloat16) if t.is_floating_point() else t)(torch.as_tensor(a)))
    def _A_setup():
        B, Sq, D = 8, 1, 512
        Hq, Hkv, Sk, Dh = 32, 8, 4096, 128
        assert Hq % Hkv == 0, (Hq, Hkv)
        return {
            "x": _w((lambda *s: torch.randn(*s, dtype=torch.bfloat16) * 0.05)(B, Sq, D)),
            "k_cache": _w((lambda *s: torch.randn(*s, dtype=torch.bfloat16) * 1.6)(B, Hkv, Sk, Dh)),
            "v_cache": _w((lambda *s: torch.randn(*s, dtype=torch.bfloat16) * 0.2)(B, Hkv, Sk, Dh)),
            "wq": _w((lambda *s: torch.randn(*s, dtype=torch.bfloat16) * 1.6)(D, Hq * Dh) * (D ** -0.5)),
            "wo": _w((lambda *s: torch.randn(*s, dtype=torch.bfloat16) * 0.2)(Hq * Dh, D) * ((Hq * Dh) ** -0.5)),
        }
    _A_in = _A_setup()

    def _B_setup():
        B, S, D, F = 8, 1, 512, 1792
        return {
            "x": _w((lambda *s: torch.randn(*s, dtype=torch.bfloat16) * 0.05)(B, S, D)),
            "w_gate": _w((lambda *s: torch.randn(*s, dtype=torch.bfloat16) * 1.6)(D, F)),
            "w_up": _w((lambda *s: torch.randn(*s, dtype=torch.bfloat16) * 0.1)(D, F)),
            "w_down": _w((lambda *s: torch.randn(*s, dtype=torch.bfloat16) * 0.1)(F, D)),
        }
    _B_in = _B_setup()

    return {
        "A_x": _A_in["x"],
        "A_k_cache": _A_in["k_cache"],
        "A_v_cache": _A_in["v_cache"],
        "A_wq": _A_in["wq"],
        "A_wo": _A_in["wo"],
        "B_x": _B_in["x"],
        "B_w_gate": _B_in["w_gate"],
        "B_w_up": _B_in["w_up"],
        "B_w_down": _B_in["w_down"],
    }

def reference(A_x, A_k_cache, A_v_cache, A_wq, A_wo, B_x, B_w_gate, B_w_up, B_w_down):
    def _A_ref(x, k_cache, v_cache, wq, wo):
        B, Sq, D = x.shape
        Hq, Dh = 32, 128
        Hkv = k_cache.shape[1]
        rep = Hq // Hkv
        q = (lambda x, *d: x.permute(*d))((x @ wq).reshape(B, Sq, Hq, Dh), 0, 2, 1, 3)
        k = (lambda x, n, axis: torch.repeat_interleave(x, n, dim=axis))(k_cache, rep, axis=1)
        v = (lambda x, n, axis: torch.repeat_interleave(x, n, dim=axis))(v_cache, rep, axis=1)
        scores = torch.einsum("bhqd,bhkd->bhqk", q, k) * (Dh ** -0.5)
        p = _softmax(scores, axis=-1)
        o = torch.einsum("bhqk,bhkd->bhqd", p, v)
        return (lambda x, *d: x.permute(*d))(o, 0, 2, 1, 3).reshape(B, Sq, Hq * Dh) @ wo

    def _B_ref(x, w_gate, w_up, w_down):
        g = torch.einsum("bsd,df->bsf", x, w_gate)
        u = torch.einsum("bsd,df->bsf", x, w_up)
        h = _sigmoid(g) * u
        return torch.einsum("bsf,fd->bsd", h, w_down)

    x = A_x
    xn = _layernorm(x, axis=-1)
    s = _A_ref(xn, A_k_cache, A_v_cache, A_wq, A_wo)
    g = _silu(_B_ref(xn, B_w_gate, B_w_up, B_w_down))
    return x + s * g
```

```python
import re

TRANS = ("v_exp_f32", "v_log_f32", "v_rcp_f32", "v_rsq_f32", "v_sqrt_f32", "v_sin_f32", "v_cos_f32")

def parse_reg(tok):
    tok = tok.strip()
    neg = False
    if tok.startswith("-"): tok = tok[1:]
    if tok.startswith("abs(") and tok.endswith(")"): tok = tok[4:-1]
    if tok.startswith("|") and tok.endswith("|"): tok = tok[1:-1]
    m = re.fullmatch(r"([vsa])(\d+)", tok)
    if m: return {m.group(1) + m.group(2)}
    m = re.fullmatch(r"([vsa])\[(\d+):(\d+)\]", tok)
    if m: return {m.group(1) + str(i) for i in range(int(m.group(2)), int(m.group(3)) + 1)}
    if tok in ("vcc", "vcc_lo", "vcc_hi"): return {"vcc"}
    if tok in ("exec", "exec_lo", "exec_hi"): return {"exec"}
    if tok == "m0": return {"m0"}
    return set()

class Ins:
    def __init__(self, text):
        self.text = text
        t = text.split(";")[0].strip()
        self.label = t.endswith(":")
        self.mn = t.split()[0] if t else ""
        rest = t[len(self.mn):].strip()
        ops = []
        depth = 0; cur = ""
        for ch in rest:
            if ch == "[": depth += 1
            if ch == "]": depth -= 1
            if ch == "," and depth == 0:
                ops.append(cur.strip()); cur = ""
            else: cur += ch
        if cur.strip(): ops.append(cur.strip())
        mods = []
        if ops:
            parts = ops[-1].split()
            ops[-1] = parts[0] if parts else ""
            mods = parts[1:]
        self.ops = ops; self.mods = mods
        mn = self.mn
        self.is_valu = mn.startswith("v_") and not mn.startswith("v_mfma")
        self.is_mfma = mn.startswith("v_mfma")
        self.is_salu = mn.startswith("s_")
        self.is_ds = mn.startswith("ds_")
        self.is_vmem = mn.startswith("buffer_") or mn.startswith("global_")
        self.is_dpp = "_dpp" in mn or any(m.startswith(("row_", "quad_perm")) for m in mods)
        self.is_trans = any(mn.startswith(x) for x in TRANS)
        self.is_perm = mn.startswith("v_permlane")
        self.is_lane = mn.startswith(("v_readlane", "v_readfirstlane", "v_writelane"))
        self.lds_dma = self.is_vmem and ("lds" in mods or "_lds_" in mn)
        W = set(); R = set()
        regs = [parse_reg(o) for o in ops]
        if self.label or not mn or mn.startswith("."):
            pass
        elif self.is_perm:
            W = regs[0] | regs[1]; R = regs[0] | regs[1]
        elif mn.startswith("v_cmp"):
            W = regs[0]
            for r in regs[1:]: R |= r
        elif self.is_mfma or self.is_valu:
            W = set(regs[0])
            for r in regs[1:]: R |= r
            if mn.startswith(("v_fmac", "v_mac", "v_writelane", "v_dot2c")) or self.is_dpp: R |= regs[0]
            if mn.startswith("v_cndmask") and len(ops) == 3: R.add("vcc")
            if mn.startswith(("v_add_co", "v_sub_co", "v_addc_co", "v_subb_co")): W |= regs[1]
        elif self.is_ds:
            if mn.startswith(("ds_read", "ds_bpermute", "ds_permute", "ds_swizzle")):
                W = regs[0]
                for r in regs[1:]: R |= r
            else:
                for r in regs: R |= r
        elif self.is_vmem:
            if mn.startswith("buffer_wbl2") or mn.startswith("buffer_inv"):
                pass
            elif "_load" in mn and not self.lds_dma:
                W = regs[0]
                for r in regs[1:]: R |= r
            elif "atomic" in mn and "sc0" in mods:
                W = regs[0]
                for r in regs: R |= r
            else:
                for r in regs: R |= r
            if self.lds_dma: R.add("m0")
        elif self.is_salu:
            if mn.startswith(("s_cmp", "s_waitcnt", "s_barrier", "s_nop", "s_branch", "s_cbranch", "s_endpgm", "s_sleep", "s_setprio", "s_bitcmp")):
                for r in regs: R |= r
            elif mn.startswith(("s_setpc",)):
                for r in regs: R |= r
            else:
                if regs: W = regs[0]
                for r in regs[1:]: R |= r
                if "saveexec" in mn: W = W | {"exec"}; R |= {"exec"}
        self.W = W; self.R = R
        self.srcC = regs[3] if self.is_mfma and len(regs) > 3 else set()
        self.states = 1
        if mn == "s_nop": self.states = int(ops[0], 0) + 1
        if self.label or not mn or mn.startswith("."): self.states = 0
        self.store_wide = self.is_vmem and "store" in mn and re.search(r"x[34]", mn) is not None

def isv(r): return r[0] in "va" and r not in ("vcc",)
def iss(r): return (r[0] == "s") or r == "vcc"

def mfma_passes(mn):
    if "32x32x16" in mn or "32x32x8" in mn: return 8
    if "16x16x32" in mn or "16x16x16" in mn: return 4
    if "16x16x4_f32" in mn: return 8
    if "32x32x2_f32" in mn: return 16
    raise ValueError(mn)

def need(p, c):
    n = 0
    if p.is_valu:
        wv = {r for r in p.W if isv(r)}
        ws = {r for r in p.W if iss(r)}
        if wv:
            cv = wv & c.R
            if cv:
                if c.is_lane: n = max(n, 1)
                if c.is_dpp: n = max(n, 2)
                if c.is_perm: n = max(n, 2)
                if c.is_mfma: n = max(n, 2)
                if p.is_trans and (c.is_valu or c.is_mfma): n = max(n, 1)
        if ws:
            cs = ws & c.R
            if cs:
                if c.is_valu: n = max(n, 4 if c.is_lane else 2)
                if c.is_vmem: n = max(n, 5)
                if c.is_salu: n = max(n, 1)
                if c.is_mfma: n = max(n, 2)
    if p.is_mfma:
        ps = mfma_passes(p.mn)
        xdl = "_f32_16x16x4_f32" not in p.mn and "32x32x2_f32" not in p.mn
        tab_valu = {2: 5, 4: 8, 8: 12, 16: 20}[ps] if xdl else {2: 4, 4: 6, 8: 10, 16: 18}[ps]
        tab_c = {2: 4, 4: 6, 8: 10, 16: 18}[ps]
        if c.is_mfma:
            ab = c.R - c.srcC
            ab = parse_reg(c.ops[1]) | parse_reg(c.ops[2])
            if p.W & ab: n = max(n, tab_valu)
            if p.W & c.srcC:
                if p.W == c.srcC and mfma_passes(c.mn) == ps: n = max(n, 2 if ps == 2 else 0)
                else: n = max(n, tab_c)
            elif p.W & c.W:
                n = max(n, tab_c)
        else:
            if (p.W & c.R) or (p.W & c.W): n = max(n, tab_valu)
        if c.is_valu and (p.srcC & c.W):
            n = max(n, {2: 1, 4: 3, 8: 7, 16: 15}[ps])
    if p.is_salu and "m0" in p.W and c.lds_dma: n = max(n, 1)
    if p.store_wide:
        data = parse_reg(p.ops[0]) if p.mn.startswith("buffer") else parse_reg(p.ops[1])
        if data & c.W: n = max(n, 2)
    if p.is_salu and "exec" in p.W and c.is_dpp: n = max(n, 1)
    return n

class Emit:
    def __init__(self):
        self.ins = []
        self.vm = 0
        self.check = True
    def raw(self, text):
        self.ins.append(Ins(text))
    def __call__(self, text):
        for l in text.split("\n"):
            l = l.strip()
            if not l or l.startswith(";"):
                if l: self.ins.append(Ins(l))
                continue
            i = Ins(l)
            reqd = 0; dist = 0
            for p in reversed(self.ins):
                if dist >= 20: break
                if p.states == 0: continue
                nd = need(p, i) - dist
                if nd > reqd: reqd = nd
                dist += p.states
            while reqd > 0:
                k = min(reqd, 16)
                self.ins.append(Ins(f"s_nop {k-1}"))
                reqd -= k
            self.ins.append(i)
            if i.is_vmem and not i.mn.startswith(("buffer_wbl2", "buffer_inv")):
                self.vm += 1
    def label(self, name):
        self.ins.append(Ins(name + ":"))
    def mark(self):
        return self.vm
    def wait_vm(self, mark, extra=""):
        n = self.vm - mark
        assert n >= 0
        if n > 63: n = 63
        self(f"s_waitcnt vmcnt({n}){extra}")
    def text(self):
        out = []
        for i in self.ins:
            if i.label or i.mn.startswith("."): out.append(i.text)
            else: out.append("    " + i.text)
        return "\n".join(out) + "\n"
```

```python
import sys
sys.path.insert(0, "dev")
from emit import Emit

NAME = "recurrent_scan__gqa_block_cached__glu_gated_glu__decode"
KNAME = NAME + "_kernel"

WS_EPOCH = 0
WS_Q   = 0x1000
WS_H   = 0x40000
WS_ML  = 0x50000
WS_O   = 0x60000
WS_Y   = 0x100000
WS_D   = 0x200000
WS_ST  = 0x300000
WS_SIZE = 0x400000

XN_STRIDE = 1040
L_XN  = 0
L_WQ  = 8448
L_GU  = L_WQ + 16384
L_RED = L_GU + 16384
L_RED2 = L_RED + 4096
L_MAX = L_RED2 + 4096
L_LS  = L_MAX + 128
L_ACT = L_LS + 128
L_ACT2 = L_ACT + 1152
L_WO  = L_ACT2 + 1152
L_WD  = L_WQ
L_OC  = L_GU
L_END = L_WO + 16384
assert L_WQ % 16 == 0 and L_WO % 16 == 0, (L_WO,)

V_LANE, V_KOFF, V_VOFF, V_L16, V_T16, V_T8, V_NEGM = 0, 1, 2, 3, 4, 5, 6
V_Q = 8
V_S = 16
V_ACC = 48
def SLOT(i): return 80 + 32 * i
V_X = SLOT(3)

S_W, S_X8, S_JJ, S_CHUNK, S_TAG = 3, 44, 45, 46, 47
SRD_K, SRD_V, SRD_WS, SRD_X, SRD_WQ, SRD_WG, SRD_WU, SRD_WD, SRD_WO, SRD_OUT = 4, 8, 12, 16, 20, 24, 28, 32, 36, 40
S_OFFA, S_OFFB, S_SELLO, S_SELHI, S_M8, S_M16, S_CNT = 48, 49, 50, 51, 52, 53, 54
S_T0, S_T1, S_T2, S_T3 = 55, 56, 57, 58
S_EPOCH = 72
S_STAMP = 74

def srd(i): return f"s[{i}:{i+3}]"
def vr(a, n=4): return f"v[{a}:{a+n-1}]"

LOG2E = 1.4426950408889634
SCALE = 128 ** -0.5
import struct
def f2u(x): return struct.unpack("<I", struct.pack("<f", x))[0]

class Cfg:
    mimic = True
    window = 16
    stamps = False
    spin = 200000
    nt_w = False
    def __init__(self, **kw):
        for k, v in kw.items(): setattr(self, k, v)

def gen(cfg=None):
    cfg = cfg or Cfg()
    e = Emit()
    nstamp = [0]
    names = []
    def stamp(name=None):
        if cfg.stamps and name is not None:
            i = nstamp[0]; nstamp[0] += 1
            names.append(name)
            assert i < 13
            e(f"s_memrealtime s[{S_STAMP+2*i}:{S_STAMP+2*i+1}]")

    def exec_set(lo, hi):
        e(f"s_mov_b32 exec_lo, {lo:#x}")
        e(f"s_mov_b32 exec_hi, {hi:#x}")
    def exec_full():
        e("s_mov_b64 exec, -1")

    class Optional:
        def __enter__(self): self.vm = e.vm
        def __exit__(self, *a): e.vm = self.vm

    def wave_sum_to_sgpr(v, s):
        for sh in (1, 2, 4, 8):
            e(f"v_add_f32_dpp v{v}, v{v}, v{v} row_shr:{sh} row_mask:0xf bank_mask:0xf bound_ctrl:0")
        e(f"v_add_f32_dpp v{v}, v{v}, v{v} row_bcast:15 row_mask:0xa bank_mask:0xf")
        e(f"v_add_f32_dpp v{v}, v{v}, v{v} row_bcast:31 row_mask:0xc bank_mask:0xf")
        e(f"v_readlane_b32 s{s}, v{v}, 63")
    def xrow_reduce(op, regs, tmps):
        for sw in ("v_permlane16_swap_b32", "v_permlane32_swap_b32"):
            for r, t in zip(regs, tmps): e(f"v_mov_b32 v{t}, v{r}")
            for r, t in zip(regs, tmps): e(f"{sw} v{r}, v{t}")
            for r, t in zip(regs, tmps): e(f"{op} v{r}, v{r}, v{t}")
    def rne_single(dst, src):
        e(f"v_cvt_pk_bf16_f32 v{dst}, v{src}, v{src}")
        e(f"v_lshlrev_b32 v{dst}, 16, v{dst}")

    state = {"off": None}
    def kv_load(which, t, n, slot, pace=None):
        so = t * 65536 + (n >> 2) * 4096
        sreg = S_OFFA
        if state["off"] != so:
            e(f"s_mov_b32 s{sreg}, {so:#x}")
            state["off"] = so
        r = SLOT(slot) + 4 * n
        voff = V_KOFF if which == "k" else V_VOFF
        s = SRD_K if which == "k" else SRD_V
        e(f"buffer_load_dwordx4 {vr(r)}, v{voff}, {srd(s)}, s{sreg} offen offset:{(n & 3) * 1024} nt")
        if pace is not None:
            e(f"s_waitcnt vmcnt({pace})")
    def kv_tile(which, t, slot, pace=None):
        marks = []
        for n in range(8):
            kv_load(which, t, n, slot, pace)
        return e.mark()

    e("s_cmp_ge_u32 s2, 256")
    e("s_cbranch_scc1 L_end")
    stamp("start")
    e("s_load_dwordx16 s[48:63], s[0:1], 0")
    e("s_load_dwordx8 s[64:71], s[0:1], 64")
    e("v_lshrrev_b32 v12, 6, v0")
    e("v_and_b32 v0, 63, v0")
    e(f"v_readfirstlane_b32 s{S_W}, v12")
    e(f"s_and_b32 s{S_X8}, s2, 7")
    e(f"s_lshr_b32 s{S_JJ}, s2, 3")
    e(f"s_lshl_b32 s{S_CHUNK}, s{S_X8}, 5")
    e(f"s_add_u32 s{S_CHUNK}, s{S_CHUNK}, s{S_JJ}")
    e(f"v_lshlrev_b32 v{V_L16}, 4, v0")
    e("v_bfe_u32 v12, v0, 2, 2")
    e(f"v_lshlrev_b32 v{V_KOFF}, 8, v12")
    e("v_lshrrev_b32 v12, 4, v0")
    e(f"v_lshl_add_u32 v{V_KOFF}, v12, 6, v{V_KOFF}")
    e("v_and_b32 v12, 3, v0")
    e(f"v_lshl_add_u32 v{V_KOFF}, v12, 4, v{V_KOFF}")
    e(f"s_lshl_b32 s72, s{S_W}, 13")
    e(f"v_add_u32 v{V_KOFF}, s72, v{V_KOFF}")
    e(f"v_add_u32 v{V_VOFF}, s72, v{V_L16}")
    e("v_lshrrev_b32 v13, 1, v0")
    e("v_lshlrev_b32 v13, 13, v13")
    e("v_and_b32 v12, 1, v0")
    e("v_lshl_add_u32 v13, v12, 4, v13")
    e(f"s_lshl_b32 s73, s{S_CHUNK}, 18")
    e("s_waitcnt lgkmcnt(0)")
    def mk_srd(dst, src, size, add=None):
        if add is None:
            e(f"s_mov_b32 s{dst}, s{src}")
            e(f"s_mov_b32 s{dst+1}, s{src+1}")
        else:
            e(f"s_add_u32 s{dst}, s{src}, s{add}")
            e(f"s_addc_u32 s{dst+1}, s{src+1}, 0")
        e(f"s_mov_b32 s{dst+2}, {size:#x}")
        e(f"s_mov_b32 s{dst+3}, 0x00020000")
    mk_srd(SRD_X, 48, 8192)
    mk_srd(SRD_WQ, 54, 512 * 4096 * 2)
    e(f"s_lshl_b32 s72, s{S_W}, 10")
    e(f"buffer_load_dwordx4 {vr(12+4*9,4)}, v{V_L16}, {srd(SRD_X)}, s72 offen")
    XR = 48
    m_x = e.mark()
    wflag = " nt" if cfg.nt_w else ""
    e(f"s_lshl_b32 s72, s{S_W}, 19")
    e(f"s_lshl_b32 s73, s{S_CHUNK}, 5")
    e("s_add_u32 s72, s72, s73")
    e(f"s_lshl_b32 s73, s{S_W}, 11")
    e(f"s_add_u32 m0, s73, {L_WQ}")
    e(f"buffer_load_dwordx4 v13, {srd(SRD_WQ)}, s72 offen{wflag} lds")
    e(f"s_add_u32 s72, s72, {32*8192:#x}")
    e(f"s_add_u32 m0, s73, {L_WQ + 1024}")
    e(f"buffer_load_dwordx4 v13, {srd(SRD_WQ)}, s72 offen{wflag} lds")
    m_wq = e.mark()
    e(f"s_lshl_b32 s73, s{S_CHUNK}, 18")
    mk_srd(SRD_K, 50, 0x40000, add=73)
    mk_srd(SRD_V, 52, 0x40000, add=73)
    mK = [None] * 4; mV = [None] * 4
    mK[0] = kv_tile("k", 0, 0)
    mK[1] = kv_tile("k", 1, 1)
    e(f"s_load_dword s{S_EPOCH}, s[70:71], {WS_EPOCH}")
    mk_srd(SRD_WS, 70, WS_SIZE)
    mk_srd(SRD_WG, 60, 512 * 1792 * 2)
    mk_srd(SRD_WU, 62, 512 * 1792 * 2)
    mk_srd(SRD_WD, 64, 1792 * 512 * 2)
    mk_srd(SRD_WO, 56, 4096 * 512 * 2)
    mk_srd(SRD_OUT, 66, 8192)
    e("s_waitcnt lgkmcnt(0)")
    e(f"s_add_u32 s{S_TAG}, s{S_EPOCH}, 0x0101")
    e(f"s_mov_b32 s{S_SELLO}, 0x05040100")
    e(f"s_mov_b32 s{S_SELHI}, 0x07060302")
    e(f"s_mov_b32 s{S_M8}, 0xffffff00")
    e(f"s_mov_b32 s{S_M16}, 0xffff0000")
    e(f"s_and_b32 s{S_T0}, s{S_TAG}, 0xffff")
    e(f"v_mov_b32 v{V_T16}, s{S_T0}")
    e(f"s_and_b32 s{S_T0}, s{S_TAG}, 0xff")
    e(f"v_mov_b32 v{V_T8}, s{S_T0}")
    state["off"] = None


    e.wait_vm(m_x)
    F = 52
    for i in range(4):
        e(f"v_lshlrev_b32 v{F+2*i}, 16, v{XR+i}")
        e(f"v_and_b32 v{F+2*i+1}, s{S_M16}, v{XR+i}")
    e(f"v_add_f32 v60, v{F}, v{F+1}")
    e(f"v_add_f32 v61, v{F+2}, v{F+3}")
    e(f"v_add_f32 v62, v{F+4}, v{F+5}")
    e(f"v_add_f32 v63, v{F+6}, v{F+7}")
    e("v_add_f32 v60, v60, v61")
    e("v_add_f32 v62, v62, v63")
    e("v_add_f32 v60, v60, v62")
    wave_sum_to_sgpr(60, S_T0)
    e(f"v_mov_b32 v61, s{S_T0}")
    e(f"v_mul_f32 v61, {f2u(1.0/512):#x}, v61")
    for i in range(8): e(f"v_sub_f32 v{64+i}, v{F+i}, v61")
    e("v_mul_f32 v60, v64, v64")
    for i in range(1, 8): e(f"v_fmac_f32 v60, v{64+i}, v{64+i}")
    wave_sum_to_sgpr(60, S_T1)
    e(f"v_mov_b32 v62, s{S_T1}")
    e(f"v_mul_f32 v62, {f2u(1.0/512):#x}, v62")
    rne_single(62, 62)
    e(f"v_add_f32 v62, {f2u(1e-5):#x}, v62")
    rne_single(62, 62)
    e("v_sqrt_f32 v62, v62")
    rne_single(62, 62)
    rne_single(61, 61)
    e("v_rcp_f32 v63, v62")
    e("v_fma_f32 v60, -v62, v63, 1.0")
    e("v_fma_f32 v63, v60, v63, v63")
    for i in range(8): e(f"v_sub_f32 v{64+i}, v{F+i}, v61")
    for i in range(4): e(f"v_cvt_pk_bf16_f32 v{72+i}, v{64+2*i}, v{64+2*i+1}")
    for i in range(4):
        e(f"v_lshlrev_b32 v{64+2*i}, 16, v{72+i}")
        e(f"v_and_b32 v{64+2*i+1}, s{S_M16}, v{72+i}")
    for i in range(8): e(f"v_mul_f32 v{F+i}, v{64+i}, v63")
    for i in range(8): e(f"v_fma_f32 v{64+i}, -v{F+i}, v62, v{64+i}")
    for i in range(8): e(f"v_fma_f32 v{F+i}, v{64+i}, v63, v{F+i}")
    for i in range(4): e(f"v_cvt_pk_bf16_f32 v{72+i}, v{F+2*i}, v{F+2*i+1}")
    e(f"s_mul_i32 s{S_T0}, s{S_W}, {XN_STRIDE}")
    e(f"v_add_u32 v60, s{S_T0}, v{V_L16}")
    e(f"ds_write_b128 v60, v[72:75] offset:{L_XN}")
    e("v_and_b32 v14, 7, v0")
    e(f"v_mul_u32_u24 v14, {XN_STRIDE}, v14")
    e("v_lshrrev_b32 v15, 4, v0")
    e("v_lshl_add_u32 v14, v15, 4, v14")
    e(f"s_lshl_b32 s{S_T0}, s{S_W}, 7")
    e(f"v_add_u32 v14, s{S_T0}, v14")
    e("v_bfe_u32 v61, v0, 2, 2")
    e("v_lshl_add_u32 v61, v15, 3, v61")
    e("v_and_b32 v62, 3, v0")
    e("v_lshlrev_b32 v60, 5, v61")
    e("v_lshl_add_u32 v60, v62, 3, v60")
    e(f"s_lshl_b32 s{S_T0}, s{S_W}, 11")
    e(f"v_add_u32 v60, s{S_T0}, v60")
    e.wait_vm(m_wq, " lgkmcnt(0)")
    e("s_barrier")
    stamp("B1")
    XB = V_S
    e(f"ds_read_b128 {vr(XB)}, v14 offset:{L_XN}")
    e(f"ds_read_b128 {vr(XB+4)}, v14 offset:{L_XN + 64}")
    e(f"ds_read_b64_tr_b16 v[64:65], v60 offset:{L_WQ}")
    e(f"ds_read_b64_tr_b16 v[66:67], v60 offset:{L_WQ + 128}")
    e(f"ds_read_b64_tr_b16 v[68:69], v60 offset:{L_WQ + 1024}")
    e(f"ds_read_b64_tr_b16 v[70:71], v60 offset:{L_WQ + 1152}")
    e("v_and_b32 v12, 15, v0")
    e("v_lshlrev_b32 v12, 6, v12")
    e("v_lshl_add_u32 v15, v15, 4, v12")
    e(f"s_lshl_b32 s{S_T0}, s{S_W}, 9")
    e(f"v_add_u32 v15, s{S_T0}, v15")
    e("s_waitcnt lgkmcnt(0)")
    e(f"v_mfma_f32_16x16x32_bf16 v[72:75], v[64:67], {vr(XB)}, 0")
    e(f"v_mfma_f32_16x16x32_bf16 v[72:75], v[68:71], {vr(XB+4)}, v[72:75]")
    exec_set(0x00ff00ff, 0x00ff00ff)
    e(f"ds_write_b128 v15, v[72:75] offset:{L_RED}")
    exec_full()
    e("s_waitcnt lgkmcnt(0)")
    e("s_barrier")
    stamp("B2")

    state["off"] = None
    with Optional():
        e(f"s_cmp_ge_u32 s{S_JJ}, 28")
        e("s_cbranch_scc1 L_no_gu_ld")
        e(f"s_mul_i32 s{S_T0}, s{S_X8}, 28")
        e(f"s_add_u32 s{S_T0}, s{S_T0}, s{S_JJ}")
        e(f"s_lshl_b32 s{S_T0}, s{S_T0}, 4")
        e(f"s_mul_i32 s{S_T1}, s{S_W}, {64*3584}")
        e(f"s_add_u32 s{S_T0}, s{S_T0}, s{S_T1}")
        e(f"s_movk_i32 s{S_T1}, 3584")
        e(f"v_mul_lo_u32 v12, v0, s{S_T1}")
        e(f"s_lshl_b32 s{S_T1}, s{S_W}, 10")
        e(f"s_add_u32 m0, s{S_T1}, {L_GU}")
        e(f"buffer_load_dwordx4 v12, {srd(SRD_WG)}, s{S_T0} offen{wflag} lds")
        e(f"s_add_u32 m0, s{S_T1}, {L_GU + 8192}")
        e(f"buffer_load_dwordx4 v12, {srd(SRD_WU)}, s{S_T0} offen{wflag} lds")
        e.label("L_no_gu_ld")
    m_gu = e.mark()

    with Optional():
        e(f"s_cmp_lg_u32 s{S_W}, 0")
        e("s_cbranch_scc1 L_no_qred")
        exec_set(0xffffffff, 0)
        for w in range(8):
            e(f"ds_read_b128 {vr(48+4*w)}, v{V_L16} offset:{L_RED + 512*w}")
        e("s_waitcnt lgkmcnt(0)")
        for w in range(1, 8):
            for i in range(4): e(f"v_add_f32 v{48+i}, v{48+i}, v{48+4*w+i}")
        e("v_cvt_pk_bf16_f32 v52, v48, v49")
        e("v_cvt_pk_bf16_f32 v53, v50, v51")
        e(f"v_lshl_or_b32 v48, v52, 16, v{V_T16}")
        e(f"v_and_or_b32 v49, v52, s{S_M16}, v{V_T16}")
        e(f"v_lshl_or_b32 v50, v53, 16, v{V_T16}")
        e(f"v_and_or_b32 v51, v53, s{S_M16}, v{V_T16}")
        e("v_lshrrev_b32 v52, 2, v0")
        e("v_lshlrev_b32 v52, 14, v52")
        e("v_bfe_u32 v53, v0, 1, 1")
        e("v_lshl_add_u32 v52, v53, 7, v52")
        e("v_and_b32 v53, 1, v0")
        e("v_lshl_add_u32 v52, v53, 4, v52")
        e(f"s_bfe_u32 s{S_T0}, s{S_JJ}, 0x20001")
        e(f"s_lshl_b32 s{S_T0}, s{S_T0}, 4")
        e(f"s_and_b32 s{S_T1}, s{S_JJ}, 1")
        e(f"s_lshl_b32 s{S_T1}, s{S_T1}, 3")
        e(f"s_add_u32 s{S_T0}, s{S_T0}, s{S_T1}")
        e(f"s_lshr_b32 s{S_T1}, s{S_JJ}, 3")
        e(f"s_add_u32 s{S_T0}, s{S_T0}, s{S_T1}")
        e(f"s_lshl_b32 s{S_T0}, s{S_T0}, 5")
        e(f"s_lshl_b32 s{S_T1}, s{S_X8}, 11")
        e(f"s_add_u32 s{S_T0}, s{S_T0}, s{S_T1}")
        e(f"s_add_u32 s{S_T0}, s{S_T0}, {WS_Q:#x}")
        e(f"buffer_store_dwordx4 v[48:51], v52, {srd(SRD_WS)}, s{S_T0} offen sc1")
        exec_full()
        e.label("L_no_qred")


    W = cfg.window
    state["off"] = None
    mK[2] = kv_tile("k", 2, 2, pace=W)
    mK[3] = kv_tile("k", 3, 3, pace=W)

    with Optional():
        e(f"s_cmp_ge_u32 s{S_JJ}, 28")
        e("s_cbranch_scc1 L_no_gu")
        e("v_lshrrev_b32 v61, 4, v0")
        e("v_bfe_u32 v62, v0, 2, 2")
        e("v_lshl_add_u32 v61, v61, 3, v62")
        e("v_lshlrev_b32 v60, 4, v61")
        e("v_and_b32 v62, 1, v0")
        e("v_lshl_add_u32 v60, v62, 3, v60")
        e("v_bfe_u32 v62, v0, 1, 1")
        e("v_lshl_add_u32 v60, v62, 13, v60")
        e(f"s_lshl_b32 s{S_T0}, s{S_W}, 10")
        e(f"v_add_u32 v60, s{S_T0}, v60")
        e.wait_vm(m_gu)
        e(f"ds_read_b64_tr_b16 v[64:65], v60 offset:{L_GU}")
        e(f"ds_read_b64_tr_b16 v[66:67], v60 offset:{L_GU + 64}")
        e(f"ds_read_b64_tr_b16 v[68:69], v60 offset:{L_GU + 512}")
        e(f"ds_read_b64_tr_b16 v[70:71], v60 offset:{L_GU + 576}")
        e("s_waitcnt lgkmcnt(0)")
        e(f"v_mfma_f32_16x16x32_bf16 v[72:75], v[64:67], {vr(XB)}, 0")
        e(f"v_mfma_f32_16x16x32_bf16 v[72:75], v[68:71], {vr(XB+4)}, v[72:75]")
        exec_set(0x00ff00ff, 0x00ff00ff)
        e(f"ds_write_b128 v15, v[72:75] offset:{L_RED2}")
        exec_full()
        e("s_waitcnt lgkmcnt(0)")
        e("s_barrier")
        e(f"s_cmp_lg_u32 s{S_W}, 1")
        e("s_cbranch_scc1 L_no_gu")
        exec_set(0xffff, 0)
        e("v_lshrrev_b32 v12, 1, v0")
        e("v_lshlrev_b32 v12, 6, v12")
        e("v_and_b32 v13, 1, v0")
        e("v_lshl_add_u32 v12, v13, 4, v12")
        for w in range(8):
            e(f"ds_read_b128 {vr(48+4*w)}, v12 offset:{L_RED2 + 512*w}")
        e("s_waitcnt lgkmcnt(0)")
        for w in range(1, 8):
            for i in range(4): e(f"v_add_f32 v{48+i}, v{48+i}, v{48+4*w+i}")
        for w in range(7):
            e(f"ds_read_b128 {vr(52+4*w)}, v12 offset:{L_RED2 + 512*w + 32}")
        e("s_waitcnt lgkmcnt(0)")
        for w in range(1, 7):
            for i in range(4): e(f"v_add_f32 v{52+i}, v{52+i}, v{52+4*w+i}")
        e(f"ds_read_b128 {vr(56)}, v12 offset:{L_RED2 + 512*7 + 32}")
        e("s_waitcnt lgkmcnt(0)")
        for i in range(4): e(f"v_add_f32 v{52+i}, v{52+i}, v{56+i}")
        e("v_cvt_pk_bf16_f32 v56, v48, v49")
        e("v_cvt_pk_bf16_f32 v57, v50, v51")
        e("v_cvt_pk_bf16_f32 v58, v52, v53")
        e("v_cvt_pk_bf16_f32 v59, v54, v55")
        for i in range(2):
            e(f"v_lshlrev_b32 v{48+2*i}, 16, v{56+i}")
            e(f"v_and_b32 v{49+2*i}, s{S_M16}, v{56+i}")
            e(f"v_lshlrev_b32 v{52+2*i}, 16, v{58+i}")
            e(f"v_and_b32 v{53+2*i}, s{S_M16}, v{58+i}")
        for i in range(4): e(f"v_mul_f32 v{48+i}, {f2u(-LOG2E):#x}, v{48+i}")
        for i in range(4): e(f"v_exp_f32 v{48+i}, v{48+i}")
        for i in range(4): e(f"v_add_f32 v{48+i}, 1.0, v{48+i}")
        for i in range(4): e(f"v_rcp_f32 v{48+i}, v{48+i}")
        e("v_cvt_pk_bf16_f32 v56, v48, v49")
        e("v_cvt_pk_bf16_f32 v57, v50, v51")
        for i in range(2):
            e(f"v_lshlrev_b32 v{48+2*i}, 16, v{56+i}")
            e(f"v_and_b32 v{49+2*i}, s{S_M16}, v{56+i}")
        for i in range(4): e(f"v_mul_f32 v{48+i}, v{48+i}, v{52+i}")
        e("v_cvt_pk_bf16_f32 v56, v48, v49")
        e("v_cvt_pk_bf16_f32 v57, v50, v51")
        e(f"v_lshl_or_b32 v48, v56, 16, v{V_T16}")
        e(f"v_and_or_b32 v49, v56, s{S_M16}, v{V_T16}")
        e(f"v_lshl_or_b32 v50, v57, 16, v{V_T16}")
        e(f"v_and_or_b32 v51, v57, s{S_M16}, v{V_T16}")
        e("v_lshrrev_b32 v52, 1, v0")
        e(f"v_mul_u32_u24 v52, 7168, v52")
        e("v_lshl_add_u32 v52, v13, 4, v52")
        e(f"s_mul_i32 s{S_T0}, s{S_X8}, 28")
        e(f"s_add_u32 s{S_T0}, s{S_T0}, s{S_JJ}")
        e(f"s_lshl_b32 s{S_T0}, s{S_T0}, 5")
        e(f"s_add_u32 s{S_T0}, s{S_T0}, {WS_H:#x}")
        e(f"buffer_store_dwordx4 v[48:51], v52, {srd(SRD_WS)}, s{S_T0} offen sc1")
        exec_full()
        e.label("L_no_gu")


    QL = V_ACC
    def q_loads():
        e(f"buffer_load_dwordx4 {vr(QL)}, v12, {srd(SRD_WS)}, s{S_T0} offen sc1")
        e(f"buffer_load_dwordx4 {vr(QL+4)}, v12, {srd(SRD_WS)}, s{S_T0} offen offset:16 sc1")
    def q_check():
        for i in range(4): e(f"v_perm_b32 v{56+i}, v{QL+2*i+1}, v{QL+2*i}, s{S_SELLO}")
        e(f"v_lshl_or_b32 v60, v{V_T16}, 16, v{V_T16}")
        for i in range(4): e(f"v_xor_b32 v{56+i}, v{56+i}, v60")
        e("v_or3_b32 v56, v56, v57, v58")
        e("v_or_b32 v56, v56, v59")
        e("v_cmp_ne_u32 vcc, 0, v56")
    e("v_lshlrev_b32 v12, 5, v0")
    e(f"s_lshl_b32 s{S_T0}, s{S_X8}, 3")
    e(f"s_lshr_b32 s{S_T1}, s{S_JJ}, 2")
    e(f"s_add_u32 s{S_T0}, s{S_T0}, s{S_T1}")
    e(f"s_lshl_b32 s{S_T0}, s{S_T0}, 11")
    e(f"s_add_u32 s{S_T0}, s{S_T0}, {WS_Q:#x}")
    q_loads()
    m_q = e.mark()
    state["off"] = None
    mV[0] = kv_tile("v", 0, 4, pace=W)
    e.wait_vm(m_q)
    q_check()
    e("s_cbranch_vccz L_q_ok")
    with Optional():
        e(f"s_mov_b32 s{S_CNT}, {cfg.spin}")
        e.label("L_q_retry")
        q_loads()
        e("s_waitcnt vmcnt(0)")
        q_check()
        e("s_cbranch_vccz L_q_ok")
        e(f"s_sub_u32 s{S_CNT}, s{S_CNT}, 1")
        e(f"s_cmp_lg_u32 s{S_CNT}, 0")
        e("s_cbranch_scc1 L_q_retry")
    e.label("L_q_ok")
    for i in range(4): e(f"v_perm_b32 v{V_Q+i}, v{QL+2*i+1}, v{QL+2*i}, s{S_SELHI}")
    stamp("q_ok")

    S_T3OFF = 59; S_FR = 60; S_HOFF = 61
    TG = V_X + 20
    def late_loads():
        e("v_lshrrev_b32 v12, 4, v0")
        e("v_lshlrev_b32 v12, 17, v12")
        e("v_and_b32 v13, 15, v0")
        e("v_lshl_add_u32 v12, v13, 4, v12")
        e(f"s_lshl_b32 s{S_T0}, s{S_X8}, 19")
        e(f"s_lshr_b32 s{S_T1}, s{S_JJ}, 2")
        e(f"s_lshl_b32 s{S_T1}, s{S_T1}, 14")
        e(f"s_add_u32 s{S_T0}, s{S_T0}, s{S_T1}")
        e(f"s_and_b32 s{S_T1}, s{S_JJ}, 3")
        e(f"s_lshl_b32 s{S_T1}, s{S_T1}, 8")
        e(f"s_add_u32 s{S_T0}, s{S_T0}, s{S_T1}")
        e(f"s_lshl_b32 s{S_T1}, s{S_W}, 11")
        e(f"s_add_u32 s{S_T0}, s{S_T0}, s{S_T1}")
        e(f"s_add_u32 m0, s{S_T1}, {L_WO}")
        e(f"buffer_load_dwordx4 v12, {srd(SRD_WO)}, s{S_T0} offen nt lds")
        e(f"s_add_u32 s{S_T0}, s{S_T0}, 1024")
        e(f"s_add_u32 m0, s{S_T1}, {L_WO + 1024}")
        e(f"buffer_load_dwordx4 v12, {srd(SRD_WO)}, s{S_T0} offen nt lds")
        with Optional():
            e(f"s_cmp_lt_u32 s{S_JJ}, 18")
            e("s_cbranch_scc1 L_no_t3_ld")
            e(f"s_sub_u32 s{S_T0}, s{S_JJ}, 18")
            e(f"s_lshl_b32 s{S_T0}, s{S_T0}, 3")
            e(f"s_add_u32 s{S_T0}, s{S_T0}, s{S_X8}")
            e(f"s_lshr_b32 s{S_FR}, s{S_T0}, 2")
            e(f"s_and_b32 s{S_T0}, s{S_T0}, 3")
            e(f"s_lshl_b32 s{S_T1}, s{S_FR}, 16")
            e(f"s_lshl_b32 s{S_T2}, s{S_T0}, 8")
            e(f"s_add_u32 s{S_T1}, s{S_T1}, s{S_T2}")
            e(f"s_lshl_b32 s{S_T2}, s{S_W}, 13")
            e(f"s_add_u32 s{S_T1}, s{S_T1}, s{S_T2}")
            e("v_lshrrev_b32 v12, 4, v0")
            e("v_lshlrev_b32 v12, 10, v12")
            e("v_lshl_add_u32 v12, v13, 4, v12")
            e(f"s_lshl_b32 s{S_T2}, s{S_W}, 11")
            e(f"s_add_u32 m0, s{S_T2}, {L_WD}")
            e(f"buffer_load_dwordx4 v12, {srd(SRD_WD)}, s{S_T1} offen nt lds")
            e(f"s_add_u32 s{S_T1}, s{S_T1}, 4096")
            e(f"s_add_u32 m0, s{S_T2}, {L_WD + 1024}")
            e(f"buffer_load_dwordx4 v12, {srd(SRD_WD)}, s{S_T1} offen nt lds")
            e(f"s_lshl_b32 s{S_T3OFF}, s{S_FR}, 14")
            e(f"s_lshl_b32 s{S_T0}, s{S_T0}, 9")
            e(f"s_add_u32 s{S_T3OFF}, s{S_T3OFF}, s{S_T0}")
            e(f"s_add_u32 s{S_T3OFF}, s{S_T3OFF}, {WS_D:#x}")
            e(f"s_mul_i32 s{S_T1}, s{S_W}, 7168")
            e(f"s_lshl_b32 s{S_T2}, s{S_FR}, 8")
            e(f"s_add_u32 s{S_T1}, s{S_T1}, s{S_T2}")
            e(f"s_add_u32 s{S_HOFF}, s{S_T1}, {WS_H:#x}")
            exec_set(0xffff, 0)
            e(f"buffer_load_dwordx4 {vr(TG)}, v{V_L16}, {srd(SRD_WS)}, s{S_HOFF} offen sc1")
            exec_full()
            e.label("L_no_t3_ld")

    vslot = [4, 0, 1, 2]
    for t in range(4):
        e.wait_vm(mK[t])
        for n in range(8):
            e(f"v_mfma_f32_16x16x32_bf16 {vr(V_ACC+4*n)}, {vr(SLOT(t)+4*n)}, {vr(V_Q)}, 0")
        if t == 3:
            late_loads()
        if t < 3:
            state["off"] = None
            mV[t + 1] = kv_tile("v", t + 1, vslot[t + 1], pace=W if t > 0 else None)
        for n in range(8):
            d = V_ACC + 4 * n
            e(f"v_add_f32_dpp v{V_S+8*t+n}, v{d+1}, v{d} row_shl:4 row_mask:0xf bank_mask:0xf bound_ctrl:0")
        for n in range(8):
            d = V_ACC + 4 * n
            e(f"v_add_f32_dpp v{V_S+8*t+n}, v{d+2}, v{V_S+8*t+n} row_shl:8 row_mask:0xf bank_mask:0xf bound_ctrl:0")
        for n in range(8):
            d = V_ACC + 4 * n
            e(f"v_add_f32_dpp v{V_S+8*t+n}, v{d+3}, v{V_S+8*t+n} row_shl:12 row_mask:0xf bank_mask:0xf bound_ctrl:0")
    stamp("S_done")
    if cfg.mimic:
        e(f"s_mov_b32 s{S_T0}, {f2u(SCALE):#x}")
        for rep in range(2):
            for m in range(16): e(f"v_cvt_pk_bf16_f32 v{V_ACC+m}, v{V_S+2*m}, v{V_S+2*m+1}")
            for m in range(16):
                e(f"v_lshlrev_b32 v{V_S+2*m}, 16, v{V_ACC+m}")
                e(f"v_and_b32 v{V_S+2*m+1}, s{S_M16}, v{V_ACC+m}")
            if rep == 0:
                for n in range(32): e(f"v_mul_f32 v{V_S+n}, s{S_T0}, v{V_S+n}")
        cexp = LOG2E
    else:
        cexp = LOG2E * SCALE
    e(f"v_max3_f32 v12, v{V_S}, v{V_S+1}, v{V_S+2}")
    for n in range(3, 31, 2): e(f"v_max3_f32 v12, v12, v{V_S+n}, v{V_S+n+1}")
    e(f"v_max_f32 v12, v12, v{V_S+31}")
    xrow_reduce("v_max_f32", [12], [13])
    e(f"s_lshl_b32 s{S_T0}, s{S_W}, 4")
    e("v_and_b32 v14, 3, v0")
    e("v_lshlrev_b32 v14, 2, v14")
    e(f"v_add_u32 v15, s{S_T0}, v14")
    exec_set(0xf, 0)
    e(f"ds_write_b32 v15, v12 offset:{L_MAX}")
    exec_full()
    e("s_waitcnt lgkmcnt(0)")
    e("s_barrier")
    for w in range(8): e(f"ds_read_b32 v{V_ACC+w}, v14 offset:{L_MAX + 16*w}")
    e("s_waitcnt lgkmcnt(0)")
    e(f"v_max3_f32 v12, v{V_ACC}, v{V_ACC+1}, v{V_ACC+2}")
    e(f"v_max3_f32 v12, v12, v{V_ACC+3}, v{V_ACC+4}")
    e(f"v_max3_f32 v12, v12, v{V_ACC+5}, v{V_ACC+6}")
    e(f"v_max_f32 v12, v12, v{V_ACC+7}")
    e(f"s_mov_b32 s{S_T0}, {f2u(cexp):#x}")
    e(f"v_mul_f32 v12, s{S_T0}, v12")
    e(f"v_and_b32 v12, s{S_M8}, v12")
    e(f"v_sub_f32 v{V_NEGM}, 0, v12")
    e(f"v_mov_b32 v7, v12")
    for n in range(32): e(f"v_fma_f32 v{V_S+n}, v{V_S+n}, s{S_T0}, v{V_NEGM}")
    for n in range(32): e(f"v_exp_f32 v{V_S+n}, v{V_S+n}")
    e(f"v_add_f32 v12, v{V_S}, v{V_S+1}")
    e(f"v_add_f32 v13, v{V_S+2}, v{V_S+3}")
    for n in range(4, 32, 2):
        e(f"v_add_f32 v12, v12, v{V_S+n}")
        e(f"v_add_f32 v13, v13, v{V_S+n+1}")
    e("v_add_f32 v12, v12, v13")
    for m in range(16): e(f"v_cvt_pk_bf16_f32 v{V_S+m}, v{V_S+2*m}, v{V_S+2*m+1}")
    xrow_reduce("v_add_f32", [12], [13])
    exec_set(0xf, 0)
    e(f"ds_write_b32 v15, v12 offset:{L_LS}")
    exec_full()
    e("s_waitcnt lgkmcnt(0)")
    e("s_barrier")
    with Optional():
        e(f"s_cmp_lg_u32 s{S_W}, 2")
        e("s_cbranch_scc1 L_no_ml")
        e("v_mov_b32 v12, 0")
        for w in range(8): e(f"ds_read_b128 {vr(V_ACC+4*w)}, v12 offset:{L_LS + 16*w}")
        e("s_waitcnt lgkmcnt(0)")
        for w in range(1, 8):
            for i in range(4): e(f"v_add_f32 v{V_ACC+i}, v{V_ACC+i}, v{V_ACC+4*w+i}")
        for h in range(4): e(f"v_readlane_b32 s{S_T0+h}, v7, {h}")
        for h in range(4): e(f"v_or_b32 v{V_ACC+4+h}, s{S_T0+h}, v{V_T8}")
        for h in range(4): e(f"v_and_or_b32 v{V_ACC+h}, v{V_ACC+h}, s{S_M8}, v{V_T8}")
        e(f"s_lshl_b32 s{S_T0}, s{S_CHUNK}, 5")
        e(f"s_add_u32 s{S_T0}, s{S_T0}, {WS_ML:#x}")
        exec_set(1, 0)
        e(f"buffer_store_dwordx4 {vr(V_ACC+4)}, v12, {srd(SRD_WS)}, s{S_T0} offen sc1")
        e(f"buffer_store_dwordx4 {vr(V_ACC)}, v12, {srd(SRD_WS)}, s{S_T0} offen offset:16 sc1")
        exec_full()
        e("s_nop 1")
        e.label("L_no_ml")
    stamp("softmax")

    TA = V_X
    TB = V_X + 8
    TD = V_X + 16
    def tile_a_frags(lbase):
        e("v_lshrrev_b32 v12, 4, v0")
        e("v_bfe_u32 v13, v0, 2, 2")
        e("v_lshl_add_u32 v12, v12, 3, v13")
        e("v_lshlrev_b32 v12, 8, v12")
        e("v_and_b32 v13, 3, v0")
        e("v_lshl_add_u32 v12, v13, 3, v12")
        e(f"s_lshl_b32 s{S_T0}, s{S_W}, 5")
        e(f"v_add_u32 v12, s{S_T0}, v12")
        e(f"ds_read_b64_tr_b16 {vr(TA,2)}, v12 offset:{lbase}")
        e(f"ds_read_b64_tr_b16 {vr(TA+2,2)}, v12 offset:{lbase + 1024}")
        e(f"ds_read_b64_tr_b16 {vr(TA+4,2)}, v12 offset:{lbase + 8192}")
        e(f"ds_read_b64_tr_b16 {vr(TA+6,2)}, v12 offset:{lbase + 9216}")
    def tile_mfma_store(lact, sbase):
        e("v_and_b32 v12, 7, v0")
        e("v_mul_u32_u24 v12, 144, v12")
        e("v_lshrrev_b32 v13, 4, v0")
        e("v_lshl_add_u32 v12, v13, 4, v12")
        e(f"ds_read_b128 {vr(TB)}, v12 offset:{lact}")
        e(f"ds_read_b128 {vr(TB+4)}, v12 offset:{lact + 64}")
        e("v_and_b32 v14, 15, v0")
        e("v_lshlrev_b32 v14, 11, v14")
        e("v_lshl_add_u32 v14, v13, 4, v14")
        e(f"s_lshl_b32 s{S_T1}, s{S_W}, 6")
        e(f"v_add_u32 v14, s{S_T1}, v14")
        e("s_waitcnt lgkmcnt(0)")
        e(f"v_mfma_f32_16x16x32_bf16 {vr(TD)}, {vr(TA)}, {vr(TB)}, 0")
        e(f"v_mfma_f32_16x16x32_bf16 {vr(TD)}, {vr(TA+4)}, {vr(TB+4)}, {vr(TD)}")
        for i in range(4): e(f"v_and_or_b32 v{TD+i}, v{TD+i}, s{S_M8}, v{V_T8}")
        exec_set(0x00ff00ff, 0x00ff00ff)
        e(f"buffer_store_dwordx4 {vr(TD)}, v14, {srd(SRD_WS)}, s{sbase} offen sc1")
        exec_full()
    def tile_dma(srdw, srow, voff, lbase):
        pass

    BT = V_S + 16
    def pv_tile(t):
        vs = SLOT(vslot[t])
        P = V_S + 4 * t
        def perms(ee):
            b = BT + 4 * (ee % 4)
            sel = S_SELLO if ee % 2 == 0 else S_SELHI
            for m in range(4):
                e(f"v_perm_b32 v{b+m}, v{vs+4*(2*m+1)+(ee>>1)}, v{vs+4*(2*m)+(ee>>1)}, s{sel}")
        perms(0); perms(1)
        for ee in range(8):
            b = BT + 4 * (ee % 4)
            c = "0" if t == 0 else vr(V_ACC + 4 * ee)
            e(f"v_mfma_f32_16x16x32_bf16 {vr(V_ACC+4*ee)}, {vr(P)}, {vr(b)}, {c}")
            if ee + 2 < 8: perms(ee + 2)

    for t in range(4):
        e.wait_vm(mV[t]); pv_tile(t)
        if t == 1: stamp("PV1")
    stamp("PV3")

    e(f"s_lshl_b32 s{S_T0}, s{S_W}, 11")
    e(f"v_add_u32 v12, s{S_T0}, v{V_L16}")
    exec_set(0xffff, 0)
    for ee in range(8): e(f"ds_write_b128 v12, {vr(V_ACC+4*ee)} offset:{L_OC + 256*ee}")
    exec_full()
    e("s_waitcnt lgkmcnt(0)")
    e("s_barrier")
    with Optional():
        e(f"s_cmp_gt_u32 s{S_W}, 1")
        e("s_cbranch_scc1 L_no_opub")
        e("v_lshrrev_b32 v13, 4, v0")
        e(f"s_lshl_b32 s{S_T0}, s{S_W}, 2")
        e(f"v_add_u32 v13, s{S_T0}, v13")
        e("v_and_b32 v14, 15, v0")
        e("v_lshlrev_b32 v12, 8, v13")
        e("v_lshl_add_u32 v12, v14, 4, v12")
        for w in range(8): e(f"ds_read_b128 {vr(V_ACC+4*w)}, v12 offset:{L_OC + 2048*w}")
        e("v_lshl_add_u32 v13, v14, 3, v13")
        e("v_lshlrev_b32 v13, 4, v13")
        e(f"s_lshl_b32 s{S_T0}, s{S_CHUNK}, 11")
        e(f"s_add_u32 s{S_T0}, s{S_T0}, {WS_O:#x}")
        e("s_waitcnt lgkmcnt(0)")
        for i in range(4):
            e(f"v_add_f32 v{V_ACC+i}, v{V_ACC+i}, v{V_ACC+4+i}")
            e(f"v_add_f32 v{V_ACC+8+i}, v{V_ACC+8+i}, v{V_ACC+12+i}")
            e(f"v_add_f32 v{V_ACC+16+i}, v{V_ACC+16+i}, v{V_ACC+20+i}")
            e(f"v_add_f32 v{V_ACC+24+i}, v{V_ACC+24+i}, v{V_ACC+28+i}")
        for i in range(4):
            e(f"v_add_f32 v{V_ACC+i}, v{V_ACC+i}, v{V_ACC+8+i}")
            e(f"v_add_f32 v{V_ACC+16+i}, v{V_ACC+16+i}, v{V_ACC+24+i}")
        for i in range(4): e(f"v_add_f32 v{V_ACC+i}, v{V_ACC+i}, v{V_ACC+16+i}")
        for i in range(4): e(f"v_and_or_b32 v{V_ACC+i}, v{V_ACC+i}, s{S_M8}, v{V_T8}")
        e(f"buffer_store_dwordx4 {vr(V_ACC)}, v13, {srd(SRD_WS)}, s{S_T0} offen sc1")
        e("s_waitcnt vmcnt(1)")
        e("s_branch L_opub_done")
        e.label("L_no_opub")
        e("s_waitcnt vmcnt(0)")
        e.label("L_opub_done")
    stamp("O_pub")

    def h_check():
        for i in range(4): e(f"v_xor_b32 v{TG+4+i}, v{TG+i}, v{V_T16}")
        e(f"v_or3_b32 v{TG+4}, v{TG+4}, v{TG+5}, v{TG+6}")
        e(f"v_or_b32 v{TG+4}, v{TG+4}, v{TG+7}")
        e(f"v_and_b32 v{TG+4}, 0xffff, v{TG+4}")
        e(f"v_cmp_ne_u32 vcc, 0, v{TG+4}")
    with Optional():
        e(f"s_cmp_lt_u32 s{S_JJ}, 18")
        e("s_cbranch_scc1 L_no_t3a")
        exec_set(0xffff, 0)
        h_check()
        e("s_cbranch_vccz L_h_ok")
        e(f"s_mov_b32 s{S_CNT}, {cfg.spin}")
        e.label("L_h_retry")
        e(f"buffer_load_dwordx4 {vr(TG)}, v{V_L16}, {srd(SRD_WS)}, s{S_HOFF} offen sc1")
        e("s_waitcnt vmcnt(0)")
        h_check()
        e("s_cbranch_vccz L_h_ok")
        e(f"s_sub_u32 s{S_CNT}, s{S_CNT}, 1")
        e(f"s_cmp_lg_u32 s{S_CNT}, 0")
        e("s_cbranch_scc1 L_h_retry")
        e.label("L_h_ok")
        e(f"v_perm_b32 v{TG+4}, v{TG+1}, v{TG}, s{S_SELHI}")
        e(f"v_perm_b32 v{TG+5}, v{TG+3}, v{TG+2}, s{S_SELHI}")
        e(f"s_mul_i32 s{S_T0}, s{S_W}, 144")
        e("v_lshlrev_b32 v12, 3, v0")
        e(f"v_add_u32 v12, s{S_T0}, v12")
        e(f"ds_write_b64 v12, {vr(TG+4,2)} offset:{L_ACT2}")
        exec_full()
        e.label("L_no_t3a")
    e("s_waitcnt lgkmcnt(0)")
    e("s_barrier")
    with Optional():
        e(f"s_cmp_lt_u32 s{S_JJ}, 18")
        e("s_cbranch_scc1 L_no_t3b")
        tile_a_frags(L_WD)
        tile_mfma_store(L_ACT2, S_T3OFF)
        e.label("L_no_t3b")
    stamp("T3")

    tile_a_frags(L_WO)
    ML = V_S
    WT = V_S + 8
    OG = V_S + 12
    TM = V_S + 16
    e("v_lshrrev_b32 v12, 4, v0")
    e(f"s_lshl_b32 s{S_T0}, s{S_W}, 5")
    e(f"s_lshl_b32 s{S_T1}, s{S_X8}, 2")
    e(f"s_add_u32 s{S_T0}, s{S_T0}, s{S_T1}")
    e(f"v_add_u32 v12, s{S_T0}, v12")
    e("v_lshlrev_b32 v13, 5, v12")
    e("v_lshlrev_b32 v14, 11, v12")
    e("v_and_b32 v15, 15, v0")
    e("v_lshl_add_u32 v14, v15, 4, v14")
    e(f"s_lshr_b32 s{S_T2}, s{S_JJ}, 2")
    e(f"s_lshl_b32 s{S_T2}, s{S_T2}, 8")
    e(f"s_add_u32 s{S_T2}, s{S_T2}, {WS_O:#x}")
    e(f"s_mov_b32 s{S_T3}, {WS_ML:#x}")
    def ml_loads():
        e(f"buffer_load_dwordx4 {vr(ML)}, v13, {srd(SRD_WS)}, s{S_T3} offen sc1")
        e(f"buffer_load_dwordx4 {vr(ML+4)}, v13, {srd(SRD_WS)}, s{S_T3} offen offset:16 sc1")
    def chk8(regs, tmp):
        n = len(regs)
        for i, r in enumerate(regs): e(f"v_xor_b32 v{tmp+i}, v{r}, v{V_T8}")
        acc = tmp
        i = 1
        while i < n:
            if i + 1 < n:
                e(f"v_or3_b32 v{acc}, v{acc}, v{tmp+i}, v{tmp+i+1}"); i += 2
            else:
                e(f"v_or_b32 v{acc}, v{acc}, v{tmp+i}"); i += 1
        e(f"v_and_b32 v{acc}, 0xff, v{acc}")
        e(f"v_cmp_ne_u32 vcc, 0, v{acc}")
    with Optional():
        e(f"s_mov_b32 s{S_CNT}, {cfg.spin}")
        e.label("L_ml_retry")
        ml_loads()
        e("s_waitcnt vmcnt(0)")
        chk8(list(range(ML, ML + 8)), TM)
        e("s_cbranch_vccz L_ml_ok")
        e(f"s_sub_u32 s{S_CNT}, s{S_CNT}, 1")
        e(f"s_cmp_lg_u32 s{S_CNT}, 0")
        e("s_cbranch_scc1 L_ml_retry")
        e.label("L_ml_ok")
    e(f"buffer_load_dwordx4 {vr(OG)}, v14, {srd(SRD_WS)}, s{S_T2} offen sc1")
    for i in range(8): e(f"v_and_b32 v{ML+i}, s{S_M8}, v{ML+i}")
    for h in range(4): e(f"v_mov_b32 v{TM+h}, v{ML+h}")
    xrow_reduce("v_max_f32", [TM + h for h in range(4)], [TM + 4 + h for h in range(4)])
    for h in range(4): e(f"v_sub_f32 v{WT+h}, v{ML+h}, v{TM+h}")
    for h in range(4): e(f"v_exp_f32 v{WT+h}, v{WT+h}")
    for h in range(4): e(f"v_mul_f32 v{TM+h}, v{WT+h}, v{ML+4+h}")
    xrow_reduce("v_add_f32", [TM + h for h in range(4)], [TM + 4 + h for h in range(4)])
    for h in range(4): e(f"v_rcp_f32 v{TM+4+h}, v{TM+h}")
    for h in range(4): e(f"v_fma_f32 v{TM+8+h}, -v{TM+h}, v{TM+4+h}, 1.0")
    for h in range(4): e(f"v_fma_f32 v{TM+4+h}, v{TM+8+h}, v{TM+4+h}, v{TM+4+h}")
    for h in range(4): e(f"v_mul_f32 v{WT+h}, v{WT+h}, v{TM+4+h}")
    e("s_waitcnt vmcnt(0)")
    chk8(list(range(OG, OG + 4)), TM)
    e("s_cbranch_vccz L_o_ok")
    with Optional():
        e(f"s_mov_b32 s{S_CNT}, {cfg.spin}")
        e.label("L_o_retry")
        e(f"buffer_load_dwordx4 {vr(OG)}, v14, {srd(SRD_WS)}, s{S_T2} offen sc1")
        e("s_waitcnt vmcnt(0)")
        chk8(list(range(OG, OG + 4)), TM)
        e("s_cbranch_vccz L_o_ok")
        e(f"s_sub_u32 s{S_CNT}, s{S_CNT}, 1")
        e(f"s_cmp_lg_u32 s{S_CNT}, 0")
        e("s_cbranch_scc1 L_o_retry")
    e.label("L_o_ok")
    stamp("O_got")
    for h in range(4): e(f"v_and_b32 v{OG+h}, s{S_M8}, v{OG+h}")
    for h in range(4): e(f"v_mul_f32 v{OG+h}, v{OG+h}, v{WT+h}")
    xrow_reduce("v_add_f32", [OG + h for h in range(4)], [TM + h for h in range(4)])
    e(f"v_cvt_pk_bf16_f32 v{TM}, v{OG}, v{OG+1}")
    e(f"v_cvt_pk_bf16_f32 v{TM+1}, v{OG+2}, v{OG+3}")
    e(f"s_mul_i32 s{S_T0}, s{S_W}, 144")
    e("v_lshlrev_b32 v12, 3, v0")
    e(f"v_add_u32 v12, s{S_T0}, v12")
    exec_set(0xffff, 0)
    e(f"ds_write_b64 v12, {vr(TM,2)} offset:{L_ACT}")
    exec_full()
    e("s_waitcnt lgkmcnt(0)")
    e("s_barrier")
    e(f"s_lshl_b32 s{S_T2}, s{S_X8}, 3")
    e(f"s_lshr_b32 s{S_T3}, s{S_JJ}, 2")
    e(f"s_add_u32 s{S_T2}, s{S_T2}, s{S_T3}")
    e(f"s_lshl_b32 s{S_T2}, s{S_T2}, 14")
    e(f"s_and_b32 s{S_T3}, s{S_JJ}, 3")
    e(f"s_lshl_b32 s{S_T3}, s{S_T3}, 9")
    e(f"s_add_u32 s{S_T2}, s{S_T2}, s{S_T3}")
    e(f"s_add_u32 s{S_T2}, s{S_T2}, {WS_Y:#x}")
    tile_mfma_store(L_ACT, S_T2)
    stamp("y_pub")

    e(f"s_cmp_lg_u32 s{S_W}, 0")
    e("s_cbranch_scc1 L_end")
    Y = 16
    DD = 32
    e("v_lshrrev_b32 v12, 2, v0")
    e("v_lshlrev_b32 v12, 14, v12")
    e("v_and_b32 v13, 3, v0")
    e("v_lshl_add_u32 v12, v13, 4, v12")
    e(f"s_lshl_b32 s{S_T0}, s{S_X8}, 11")
    e(f"s_lshl_b32 s{S_T1}, s{S_JJ}, 6")
    e(f"s_add_u32 s{S_T0}, s{S_T0}, s{S_T1}")
    e(f"s_add_u32 s{S_T1}, s{S_T0}, {WS_D:#x}")
    e(f"s_add_u32 s{S_T0}, s{S_T0}, {WS_Y:#x}")
    e(f"s_lshl_b32 s{S_T2}, s{S_X8}, 10")
    e(f"s_lshl_b32 s{S_T3}, s{S_JJ}, 5")
    e(f"s_add_u32 s{S_T2}, s{S_T2}, s{S_T3}")
    e("v_lshlrev_b32 v14, 3, v13")
    e(f"buffer_load_dwordx2 v[40:41], v14, {srd(SRD_X)}, s{S_T2} offen")
    e(f"s_mov_b32 s62, {16*16384:#x}")
    def fin_loads():
        for i in range(4):
            if i: e(f"s_add_u32 s63, s{S_T0}, {i*16*16384:#x}")
            e(f"buffer_load_dwordx4 {vr(Y+4*i)}, v12, {srd(SRD_WS)}, s{63 if i else S_T0} offen sc1")
        e(f"buffer_load_dwordx4 {vr(DD)}, v12, {srd(SRD_WS)}, s{S_T1} offen sc1")
        e(f"s_add_u32 s63, s{S_T1}, s62")
        exec_set(0xffffffff, 0xffff)
        e(f"buffer_load_dwordx4 {vr(DD+4)}, v12, {srd(SRD_WS)}, s63 offen sc1")
        exec_full()
    for i in range(4): e(f"v_mov_b32 v{DD+4+i}, v{V_T8}")
    e(f"s_mov_b32 s{S_CNT}, {cfg.spin}")
    e.label("L_fin_retry")
    with Optional():
        fin_loads()
    e("s_waitcnt vmcnt(0)")
    chk8(list(range(Y, Y + 24)), 44)
    e("s_cbranch_vccz L_fin_ok")
    e(f"s_sub_u32 s{S_CNT}, s{S_CNT}, 1")
    e(f"s_cmp_lg_u32 s{S_CNT}, 0")
    e("s_cbranch_scc1 L_fin_retry")
    e.label("L_fin_ok")
    stamp("fin_got")
    for i in range(24): e(f"v_and_b32 v{Y+i}, s{S_M8}, v{Y+i}")
    for i in range(4):
        e(f"v_add_f32 v{Y+i}, v{Y+i}, v{Y+4+i}")
        e(f"v_add_f32 v{Y+8+i}, v{Y+8+i}, v{Y+12+i}")
        e(f"v_add_f32 v{DD+i}, v{DD+i}, v{DD+4+i}")
    for i in range(4): e(f"v_add_f32 v{Y+i}, v{Y+i}, v{Y+8+i}")
    R = [Y + i for i in range(4)] + [DD + i for i in range(4)]
    for ror in (4, 8):
        for r in R: e(f"v_add_f32_dpp v{r}, v{r}, v{r} row_ror:{ror} row_mask:0xf bank_mask:0xf")
    xrow_reduce("v_add_f32", R, [44 + i for i in range(8)])
    e(f"v_cvt_pk_bf16_f32 v44, v{Y}, v{Y+1}")
    e(f"v_cvt_pk_bf16_f32 v45, v{Y+2}, v{Y+3}")
    e(f"v_cvt_pk_bf16_f32 v46, v{DD}, v{DD+1}")
    e(f"v_cvt_pk_bf16_f32 v47, v{DD+2}, v{DD+3}")
    for i in range(2):
        e(f"v_lshlrev_b32 v{Y+2*i}, 16, v{44+i}")
        e(f"v_and_b32 v{Y+2*i+1}, s{S_M16}, v{44+i}")
        e(f"v_lshlrev_b32 v{DD+2*i}, 16, v{46+i}")
        e(f"v_and_b32 v{DD+2*i+1}, s{S_M16}, v{46+i}")
    for i in range(4): e(f"v_mul_f32 v{44+i}, {f2u(-LOG2E):#x}, v{DD+i}")
    for i in range(4): e(f"v_exp_f32 v{44+i}, v{44+i}")
    for i in range(4): e(f"v_add_f32 v{44+i}, 1.0, v{44+i}")
    for i in range(4): e(f"v_rcp_f32 v{48+i}, v{44+i}")
    for i in range(4): e(f"v_mul_f32 v{44+i}, v{DD+i}, v{48+i}")
    e("v_cvt_pk_bf16_f32 v48, v44, v45")
    e("v_cvt_pk_bf16_f32 v49, v46, v47")
    for i in range(2):
        e(f"v_lshlrev_b32 v{44+2*i}, 16, v{48+i}")
        e(f"v_and_b32 v{45+2*i}, s{S_M16}, v{48+i}")
    for i in range(4): e(f"v_mul_f32 v{44+i}, v{Y+i}, v{44+i}")
    e("v_cvt_pk_bf16_f32 v48, v44, v45")
    e("v_cvt_pk_bf16_f32 v49, v46, v47")
    for i in range(2):
        e(f"v_lshlrev_b32 v{44+2*i}, 16, v{48+i}")
        e(f"v_and_b32 v{45+2*i}, s{S_M16}, v{48+i}")
        e(f"v_lshlrev_b32 v{52+2*i}, 16, v{40+i}")
        e(f"v_and_b32 v{53+2*i}, s{S_M16}, v{40+i}")
    for i in range(4): e(f"v_add_f32 v{44+i}, v{44+i}, v{52+i}")
    e("v_cvt_pk_bf16_f32 v48, v44, v45")
    e("v_cvt_pk_bf16_f32 v49, v46, v47")
    exec_set(0xf, 0)
    e(f"buffer_store_dwordx2 v[48:49], v14, {srd(SRD_OUT)}, s{S_T2} offen")
    e("s_cmp_lg_u32 s2, 0")
    e("s_cbranch_scc1 L_no_epoch")
    exec_set(1, 0)
    e(f"v_mov_b32 v50, s{S_TAG}")
    e("v_mov_b32 v51, 0")
    e(f"buffer_store_dword v50, v51, {srd(SRD_WS)}, 0 offen offset:{WS_EPOCH}")
    e.label("L_no_epoch")
    exec_full()
    if cfg.stamps:
        pass
    e.label("L_end")
    if cfg.stamps:
        e("s_cmp_ge_u32 s2, 256")
        e("s_cbranch_scc1 L_end2")
        e("s_memrealtime s[100:101]")
        e("s_waitcnt lgkmcnt(0)")
        e("s_lshl_b32 s55, s2, 3")
        e(f"s_add_u32 s55, s55, s{S_W}")
        e("s_lshl_b32 s55, s55, 7")
        e(f"s_add_u32 s55, s55, {WS_ST:#x}")
        exec_set(1, 0)
        e("v_mov_b32 v51, 0")
        n = nstamp[0]
        gen.names = names + ["end"]
        for i in list(range(n)) + [13]:
            e(f"v_mov_b32 v48, s{S_STAMP+2*i}")
            e(f"v_mov_b32 v49, s{S_STAMP+2*i+1}")
            e(f"buffer_store_dwordx2 v[48:49], v51, {srd(SRD_WS)}, s55 offen offset:{8*i}")
            e("s_nop 1")
        e.label("L_end2")
    e("s_endpgm")

    hdr = open("cdna_kernels/" + NAME + ".s.ref").read().split("\n")
    head = [l for l in hdr if l.startswith(";") and "@launch" not in l and "Override" not in l and "grid=ceil" not in l]
    out = "\n".join(head) + "\n"
    out += f"; @launch grid=(256,1,1) block=(512,1,1) lds={L_END}\n"
    out += '.amdgcn_target "amdgcn-amd-amdhsa--gfx950"\n.text\n'
    out += f".globl {KNAME}\n.p2align 8\n.type {KNAME},@function\n{KNAME}:\n"
    out += e.text()
    out += f""".section .rodata,"a"
.p2align 6
.amdhsa_kernel {KNAME}
  .amdhsa_next_free_vgpr 240
  .amdhsa_next_free_sgpr 102
  .amdhsa_accum_offset 240
  .amdhsa_group_segment_fixed_size 0
  .amdhsa_kernarg_size 96
  .amdhsa_user_sgpr_count 2
  .amdhsa_user_sgpr_kernarg_segment_ptr 1
  .amdhsa_system_sgpr_workgroup_id_x 1
  .amdhsa_float_denorm_mode_32 3
.end_amdhsa_kernel
"""
    return out

if __name__ == "__main__":
    kw = eval("dict(%s)" % (sys.argv[2] if len(sys.argv) > 2 else ""))
    txt = gen(Cfg(**kw))
    path = sys.argv[1] if len(sys.argv) > 1 else "cdna_kernels/" + NAME + ".s"
    open(path, "w").write(txt)
    print("wrote", path, len(txt), "bytes; LDS", L_END)
```

```python
import sys, struct
sys.path.insert(0, "dev")
from emit import Emit

NAME = "recurrent_scan__gqa_block_cached__glu_gated_glu__decode"
KNAME = NAME + "_kernel"

WS_EPOCH = 0
WS_H   = 0x40000
WS_ML  = 0x50000
WS_O   = 0x60000
WS_Y   = 0x100000
WS_D   = 0x200000
WS_ST  = 0x300000
WS_Q   = 0x400000
WS_G   = 0x500000
WS_SIZE = 0x600000

XN_STRIDE = 1040
L_XN  = 0
L_T1  = 8448
L_T2  = L_T1 + 16384
L_WD  = L_T2 + 16384
L_MAX = L_WD + 16384
L_LS  = L_MAX + 128
L_ACT = L_LS + 128
L_ACT2 = L_ACT + 1152
L_QS  = L_ACT2 + 1152
L_END = L_QS + 16384
L_WO  = L_T1
L_OC  = L_T2
assert L_WD + 9216 < 65536 and L_QS < 65536 and L_QS % 16 == 0

V_KOFF, V_VOFF, V_L16, V_T16, V_T8, V_NEGM, V_MP = 1, 2, 3, 4, 5, 6, 7
V_Q = 8
V_S = 16
V_ACC = 48
def SLOT(i): return 80 + 32 * i
V_X = SLOT(3)
V_Z = 240
NVGPR = 248

S_W, S_X8, S_JJ, S_CHUNK, S_TAG = 3, 44, 45, 46, 47
SRD_K, SRD_V, SRD_WS, SRD_X, SRD_WQ, SRD_WG, SRD_WD, SRD_WO, SRD_OUT = 4, 8, 12, 16, 20, 24, 32, 36, 40
S_IDX, S_MAT, S_CT2, S_KP = 28, 29, 30, 31
S_OFFA, S_RED, S_SELLO, S_SELHI, S_M8, S_M16, S_CNT = 48, 49, 50, 51, 52, 53, 54
S_T0, S_T1, S_T2, S_T3 = 55, 56, 57, 58
S_T3OFF, S_FR, S_HOFF = 59, 60, 61
S_EPOCH = 62
S_T4 = 63
KA = 64
def stamp_reg(i): return 88 + 2 * i if i < 6 else 64 + 2 * (i - 6)

def srd(i): return f"s[{i}:{i+3}]"
def vr(a, n=4): return f"v[{a}:{a+n-1}]"
LOG2E = 1.4426950408889634
SCALE = 128 ** -0.5
def f2u(x): return struct.unpack("<I", struct.pack("<f", x))[0]

class Cfg:
    mimic = True
    window = 5
    stamps = False
    spin = 200000
    pre_a = 0
    pre_b = 1
    ln_k = (1, 1, 1)
    qp_k = 0
    wd_at = 20
    abl = ''
    bar0 = True
    slp = 0
    q_at = 32
    def __init__(self, **kw):
        for k, v in kw.items(): setattr(self, k, v)

def gen(cfg=None):
    cfg = cfg or Cfg()
    e = Emit()
    W = cfg.window
    names = []
    def stamp(name):
        if cfg.stamps:
            i = len(names); names.append(name)
            assert i < 15
            e(f"s_memrealtime s[{stamp_reg(i)}:{stamp_reg(i)+1}]")
    def exec_set(lo, hi):
        e(f"s_mov_b32 exec_lo, {lo:#x}")
        e(f"s_mov_b32 exec_hi, {hi:#x}")
    def exec_full(): e("s_mov_b64 exec, -1")
    class Optional:
        def __enter__(self): self.vm = e.vm
        def __exit__(self, *a): e.vm = self.vm

    def wave_sum_to_sgpr(v, s):
        for sh in (1, 2, 4, 8):
            e(f"v_add_f32_dpp v{v}, v{v}, v{v} row_shr:{sh} row_mask:0xf bank_mask:0xf bound_ctrl:0")
        e(f"v_add_f32_dpp v{v}, v{v}, v{v} row_bcast:15 row_mask:0xa bank_mask:0xf")
        e(f"v_add_f32_dpp v{v}, v{v}, v{v} row_bcast:31 row_mask:0xc bank_mask:0xf")
        e(f"v_readlane_b32 s{s}, v{v}, 63")
    def xrow_reduce(op, regs, tmps):
        for sw in ("v_permlane16_swap_b32", "v_permlane32_swap_b32"):
            for r, t in zip(regs, tmps): e(f"v_mov_b32 v{t}, v{r}")
            for r, t in zip(regs, tmps): e(f"{sw} v{r}, v{t}")
            for r, t in zip(regs, tmps): e(f"{op} v{r}, v{r}, v{t}")
    def rne_single(dst, src):
        e(f"v_cvt_pk_bf16_f32 v{dst}, v{src}, v{src}")
        e(f"v_lshlrev_b32 v{dst}, 16, v{dst}")
    def poll_tail(label_retry, label_ok):
        e(f"s_cbranch_vccz {label_ok}")
        e(f"s_sub_u32 s{S_CNT}, s{S_CNT}, 1")
        e(f"s_cmp_lg_u32 s{S_CNT}, 0")
        e(f"s_cbranch_scc1 {label_retry}")
    def chk(regs, tmp, tagv, mask):
        n = len(regs)
        for r in regs: e(f"v_xor_b32 v{r}, v{r}, v{tagv}")
        accs = [tmp, tmp + 1] if n >= 8 else [tmp]
        parts = [regs[i::len(accs)] for i in range(len(accs))]
        steps = []
        for a, pr in zip(accs, parts):
            st = []
            if len(pr) >= 3: st.append(f"v_or3_b32 v{a}, v{pr[0]}, v{pr[1]}, v{pr[2]}"); i = 3
            else: st.append(f"v_or_b32 v{a}, v{pr[0]}, v{pr[1]}"); i = 2
            while i < len(pr):
                if i + 1 < len(pr): st.append(f"v_or3_b32 v{a}, v{a}, v{pr[i]}, v{pr[i+1]}"); i += 2
                else: st.append(f"v_or_b32 v{a}, v{a}, v{pr[i]}"); i += 1
            steps.append(st)
        for i in range(max(len(x) for x in steps)):
            for st in steps:
                if i < len(st): e(st[i])
        if len(accs) == 2: e(f"v_or_b32 v{tmp}, v{tmp}, v{tmp+1}")
        e(f"v_and_b32 v{tmp}, {mask:#x}, v{tmp}")
        e(f"v_cmp_ne_u32 vcc, 0, v{tmp}")
    def gather_checked(name, loads, regs, tmp, tagv, mask, pre=None):
        chk(regs, tmp, tagv, mask)
        e(f"s_cbranch_vccz L_{name}_ok")
        with Optional():
            if pre: pre()
            e(f"s_mov_b32 s{S_CNT}, {cfg.spin}")
            e.label(f"L_{name}_retry")
            if cfg.slp and name in ("fin", "o"): e(f"s_sleep {cfg.slp}")
            loads()
            e("s_waitcnt vmcnt(0)")
            chk(regs, tmp, tagv, mask)
            poll_tail(f"L_{name}_retry", f"L_{name}_ok")
        e.label(f"L_{name}_ok")

    offstate = [None]
    def kv_load(which, t, n, slot, pace):
        so = t * 65536 + (n >> 2) * 4096
        if offstate[0] != so:
            e(f"s_mov_b32 s{S_OFFA}, {so:#x}"); offstate[0] = so
        r = SLOT(slot) + 4 * n
        voff, s = (V_KOFF, SRD_K) if which == "k" else (V_VOFF, SRD_V)
        e(f"buffer_load_dwordx4 {vr(r)}, v{voff}, {srd(s)}, s{S_OFFA} offen offset:{(n & 3) * 1024} nt")
        if pace: e(f"s_waitcnt vmcnt({W})")
    vslot = [4, 0, 1, 2]
    seq = [("k", t, n) for t in range(4) for n in range(8)] + [("v", t, n) for t in range(4) for n in range(8)]
    pos = [0]
    mK = [None] * 4; mV = [None] * 4
    hooks = {}
    def pump(cnt, pace=True, upto=64):
        for _ in range(cnt):
            if pos[0] >= upto: return
            which, t, n = seq[pos[0]]; pos[0] += 1
            kv_load(which, t, n, t if which == "k" else vslot[t], pace)
            if n == 7: (mK if which == "k" else mV)[t] = e.mark()
            if pos[0] in hooks: hooks[pos[0]]()

    def tile_dma(srdn, voff, soff, rowstep4, lbase, flags=" nt"):
        e(f"s_lshl_b32 s{S_T4}, s{S_W}, 11")
        e(f"s_add_u32 m0, s{S_T4}, {lbase}")
        e(f"buffer_load_dwordx4 v{voff}, {srd(srdn)}, s{soff} offen{flags} lds")
        e(f"s_add_u32 s{soff}, s{soff}, {rowstep4}")
        e(f"s_add_u32 m0, s{S_T4}, {lbase + 1024}")
        e(f"buffer_load_dwordx4 v{voff}, {srd(srdn)}, s{soff} offen{flags} lds")
    def tile_voff(dst, rowstride):
        e(f"v_lshrrev_b32 v{dst}, 4, v0")
        e(f"v_mul_u32_u24 v{dst}, {rowstride}, v{dst}")
        e(f"v_and_b32 v15, 15, v0")
        e(f"v_lshl_add_u32 v{dst}, v15, 4, v{dst}")
    def a_addr(dst):
        e(f"v_lshrrev_b32 v{dst}, 4, v0")
        e("v_bfe_u32 v15, v0, 2, 2")
        e(f"v_lshl_add_u32 v{dst}, v{dst}, 3, v15")
        e(f"v_lshlrev_b32 v{dst}, 8, v{dst}")
        e("v_and_b32 v15, 3, v0")
        e(f"v_lshl_add_u32 v{dst}, v15, 3, v{dst}")
        e(f"s_lshl_b32 s{S_T4}, s{S_W}, 5")
        e(f"v_add_u32 v{dst}, s{S_T4}, v{dst}")
    def a_frags(ta, va, lbase):
        e(f"ds_read_b64_tr_b16 {vr(ta,2)}, v{va} offset:{lbase}")
        e(f"ds_read_b64_tr_b16 {vr(ta+2,2)}, v{va} offset:{lbase + 1024}")
        e(f"ds_read_b64_tr_b16 {vr(ta+4,2)}, v{va} offset:{lbase + 8192}")
        e(f"ds_read_b64_tr_b16 {vr(ta+6,2)}, v{va} offset:{lbase + 9216}")
    def mfma_tag_store(td, ta, tb, vs, sbase):
        e(f"v_mfma_f32_16x16x32_bf16 {vr(td)}, {vr(ta)}, {vr(tb)}, 0")
        e(f"v_mfma_f32_16x16x32_bf16 {vr(td)}, {vr(ta+4)}, {vr(tb+4)}, {vr(td)}")
        exec_set(0x00ff00ff, 0x00ff00ff)
        for i in range(4): e(f"v_and_or_b32 v{td+i}, v{td+i}, s{S_M8}, v{V_T8}")
        e(f"buffer_store_dwordx4 {vr(td)}, v{vs}, {srd(SRD_WS)}, s{sbase} offen sc1")
        exec_full()

    e("s_cmp_ge_u32 s2, 256")
    e("s_cbranch_scc1 L_end")
    stamp("start")
    e(f"s_load_dwordx16 s[{KA}:{KA+15}], s[0:1], 0")
    e(f"s_load_dwordx8 s[{KA+16}:{KA+23}], s[0:1], 64")
    P_X, P_K, P_V, P_WQ, P_WO, P_WG, P_WU, P_WD, P_OUT, P_WS = KA, KA+2, KA+4, KA+6, KA+8, KA+12, KA+14, KA+16, KA+18, KA+22
    e("v_lshrrev_b32 v12, 6, v0")
    e("v_and_b32 v0, 63, v0")
    e(f"v_readfirstlane_b32 s{S_W}, v12")
    e(f"s_and_b32 s{S_X8}, s2, 7")
    e(f"s_lshr_b32 s{S_JJ}, s2, 3")
    e(f"s_lshl_b32 s{S_CHUNK}, s{S_X8}, 5")
    e(f"s_add_u32 s{S_CHUNK}, s{S_CHUNK}, s{S_JJ}")
    e(f"v_lshlrev_b32 v{V_L16}, 4, v0")
    e("v_bfe_u32 v12, v0, 2, 2")
    e(f"v_lshlrev_b32 v{V_KOFF}, 8, v12")
    e("v_lshrrev_b32 v12, 4, v0")
    e(f"v_lshl_add_u32 v{V_KOFF}, v12, 6, v{V_KOFF}")
    e("v_and_b32 v12, 3, v0")
    e(f"v_lshl_add_u32 v{V_KOFF}, v12, 4, v{V_KOFF}")
    e(f"s_lshl_b32 s{S_T0}, s{S_W}, 13")
    e(f"v_add_u32 v{V_KOFF}, s{S_T0}, v{V_KOFF}")
    e(f"v_add_u32 v{V_VOFF}, s{S_T0}, v{V_L16}")
    tile_voff(13, 8192)
    tile_voff(14, 3584)
    e(f"s_and_b32 s{S_KP}, s{S_JJ}, 7")
    e(f"s_lshr_b32 s{S_T0}, s{S_JJ}, 3")
    e(f"s_lshl_b32 s{S_IDX}, s{S_T0}, 3")
    e(f"s_add_u32 s{S_IDX}, s{S_IDX}, s{S_X8}")
    e(f"s_and_b32 s{S_MAT}, s{S_IDX}, 1")
    e(f"s_lshr_b32 s{S_CT2}, s{S_IDX}, 1")
    e(f"s_lshl_b32 s{S_T1}, s{S_X8}, 2")
    e(f"s_add_u32 s{S_T0}, s{S_T0}, s{S_T1}")
    e(f"s_lshl_b32 s{S_T0}, s{S_T0}, 8")
    e(f"s_lshl_b32 s{S_T1}, s{S_KP}, 3")
    e(f"s_add_u32 s{S_T1}, s{S_T1}, s{S_W}")
    e(f"s_lshl_b32 s{S_T2}, s{S_T1}, 16")
    e(f"s_add_u32 s{S_T0}, s{S_T0}, s{S_T2}")
    e(f"s_mul_i32 s{S_T1}, s{S_T1}, {8*3584}")
    e(f"s_lshl_b32 s{S_T2}, s{S_CT2}, 8")
    e(f"s_add_u32 s{S_T1}, s{S_T1}, s{S_T2}")
    e(f"s_lshl_b32 s{S_T2}, s{S_W}, 10")
    e(f"s_lshl_b32 s{S_T3}, s{S_CHUNK}, 18")
    e("s_waitcnt lgkmcnt(0)")
    def mk_srd(dst, src, size, add=None):
        if add is None:
            e(f"s_mov_b32 s{dst}, s{src}")
            e(f"s_mov_b32 s{dst+1}, s{src+1}")
        else:
            e(f"s_add_u32 s{dst}, s{src}, s{add}")
            e(f"s_addc_u32 s{dst+1}, s{src+1}, 0")
        e(f"s_mov_b32 s{dst+2}, {size:#x}")
        e(f"s_mov_b32 s{dst+3}, 0x00020000")
    XR = 48
    mk_srd(SRD_X, P_X, 8192)
    e(f"buffer_load_dwordx4 {vr(XR)}, v{V_L16}, {srd(SRD_X)}, s{S_T2} offen")
    m_x = e.mark()
    if cfg.bar0: e("s_barrier")
    mk_srd(SRD_K, P_K, 0x40000, add=S_T3)
    pump(cfg.pre_a, pace=False)
    mk_srd(SRD_WQ, P_WQ, 512 * 4096 * 2)
    tile_dma(SRD_WQ, 13, S_T0, 4 * 8192, L_T1)
    m_t1 = e.mark()
    e(f"s_cmp_eq_u32 s{S_MAT}, 0")
    e(f"s_cselect_b32 s{SRD_WG}, s{P_WG}, s{P_WU}")
    e(f"s_cselect_b32 s{SRD_WG+1}, s{P_WG+1}, s{P_WU+1}")
    e(f"s_mov_b32 s{SRD_WG+2}, {512*1792*2:#x}")
    e(f"s_mov_b32 s{SRD_WG+3}, 0x00020000")
    with Optional():
        e(f"s_cmp_ge_u32 s{S_IDX}, 28")
        e("s_cbranch_scc1 L_no_gu_ld")
        tile_dma(SRD_WG, 14, S_T1, 4 * 3584, L_T2)
        e.label("L_no_gu_ld")
    m_t2 = e.mark()
    pump(cfg.pre_b, pace=False)
    mk_srd(SRD_V, P_V, 0x40000, add=S_T3)
    e(f"s_load_dword s{S_EPOCH}, s[{P_WS}:{P_WS+1}], {WS_EPOCH}")
    mk_srd(SRD_WS, P_WS, WS_SIZE)
    mk_srd(SRD_WD, P_WD, 1792 * 512 * 2)
    mk_srd(SRD_WO, P_WO, 4096 * 512 * 2)
    mk_srd(SRD_OUT, P_OUT, 8192)
    e(f"s_mov_b32 s{S_SELLO}, 0x05040100")
    e(f"s_mov_b32 s{S_SELHI}, 0x07060302")
    e(f"s_mov_b32 s{S_M8}, 0xffffff00")
    e(f"s_mov_b32 s{S_M16}, 0xffff0000")
    e("s_waitcnt lgkmcnt(0)")
    e(f"s_add_u32 s{S_TAG}, s{S_EPOCH}, 0x0101")
    e(f"s_and_b32 s{S_T0}, s{S_TAG}, 0xffff")
    e(f"v_mov_b32 v{V_T16}, s{S_T0}")
    e(f"s_and_b32 s{S_T0}, s{S_TAG}, 0xff")
    e(f"v_mov_b32 v{V_T8}, s{S_T0}")

    e.wait_vm(m_x)
    stamp("x_got")
    F = 52
    for i in range(4):
        e(f"v_lshlrev_b32 v{F+2*i}, 16, v{XR+i}")
        e(f"v_and_b32 v{F+2*i+1}, s{S_M16}, v{XR+i}")
    e(f"v_add_f32 v60, v{F}, v{F+1}")
    e(f"v_add_f32 v61, v{F+2}, v{F+3}")
    e(f"v_add_f32 v62, v{F+4}, v{F+5}")
    e(f"v_add_f32 v63, v{F+6}, v{F+7}")
    e("v_add_f32 v60, v60, v61")
    e("v_add_f32 v62, v62, v63")
    e("v_add_f32 v60, v60, v62")
    pump(cfg.ln_k[0], pace=False)
    wave_sum_to_sgpr(60, S_T0)
    e(f"v_mov_b32 v61, s{S_T0}")
    e(f"v_mul_f32 v61, {f2u(1.0/512):#x}, v61")
    for i in range(8): e(f"v_sub_f32 v{64+i}, v{F+i}, v61")
    e("v_mul_f32 v60, v64, v64")
    for i in range(1, 8): e(f"v_fmac_f32 v60, v{64+i}, v{64+i}")
    pump(cfg.ln_k[1], pace=False)
    wave_sum_to_sgpr(60, S_T1)
    e(f"v_mov_b32 v62, s{S_T1}")
    e(f"v_mul_f32 v62, {f2u(1.0/512):#x}, v62")
    rne_single(62, 62)
    e(f"v_add_f32 v62, {f2u(1e-5):#x}, v62")
    rne_single(62, 62)
    e("v_sqrt_f32 v62, v62")
    rne_single(62, 62)
    rne_single(61, 61)
    e("v_rcp_f32 v63, v62")
    e("v_fma_f32 v60, -v62, v63, 1.0")
    e("v_fma_f32 v63, v60, v63, v63")
    for i in range(8): e(f"v_sub_f32 v{64+i}, v{F+i}, v61")
    for i in range(4): e(f"v_cvt_pk_bf16_f32 v{72+i}, v{64+2*i}, v{64+2*i+1}")
    for i in range(4):
        e(f"v_lshlrev_b32 v{64+2*i}, 16, v{72+i}")
        e(f"v_and_b32 v{64+2*i+1}, s{S_M16}, v{72+i}")
    for i in range(8): e(f"v_mul_f32 v{F+i}, v{64+i}, v63")
    for i in range(8): e(f"v_fma_f32 v{64+i}, -v{F+i}, v62, v{64+i}")
    for i in range(8): e(f"v_fma_f32 v{F+i}, v{64+i}, v63, v{F+i}")
    for i in range(4): e(f"v_cvt_pk_bf16_f32 v{72+i}, v{F+2*i}, v{F+2*i+1}")
    e(f"s_mul_i32 s{S_T0}, s{S_W}, {XN_STRIDE}")
    e(f"v_add_u32 v60, s{S_T0}, v{V_L16}")
    e(f"ds_write_b128 v60, v[72:75] offset:{L_XN}")
    pump(cfg.ln_k[2], pace=False)
    e("v_and_b32 v14, 7, v0")
    e(f"v_mul_u32_u24 v14, {XN_STRIDE}, v14")
    e("v_lshrrev_b32 v12, 4, v0")
    e("v_lshl_add_u32 v14, v12, 4, v14")
    e(f"s_lshl_b32 s{S_T0}, s{S_KP}, 7")
    e(f"v_add_u32 v14, s{S_T0}, v14")
    a_addr(13)
    e("v_and_b32 v60, 15, v0")
    e("v_lshlrev_b32 v60, 17, v60")
    e("v_lshl_add_u32 v60, v12, 4, v60")
    e(f"s_lshl_b32 s{S_T0}, s{S_X8}, 3")
    e(f"s_add_u32 s{S_T0}, s{S_T0}, s{S_KP}")
    e(f"s_lshl_b32 s{S_T0}, s{S_T0}, 11")
    e(f"s_lshr_b32 s{S_T1}, s{S_JJ}, 3")
    e(f"s_lshl_b32 s{S_T1}, s{S_T1}, 9")
    e(f"s_add_u32 s{S_T0}, s{S_T0}, s{S_T1}")
    e(f"s_lshl_b32 s{S_T1}, s{S_W}, 6")
    e(f"s_add_u32 s{S_T0}, s{S_T0}, s{S_T1}")
    e(f"s_add_u32 s{S_T0}, s{S_T0}, {WS_Q:#x}")
    e("v_and_b32 v61, 15, v0")
    e("v_mul_u32_u24 v61, 7168, v61")
    e("v_lshl_add_u32 v61, v12, 4, v61")
    e(f"s_lshl_b32 s{S_T1}, s{S_MAT}, 3")
    e(f"s_add_u32 s{S_T1}, s{S_T1}, s{S_KP}")
    e(f"s_mul_i32 s{S_T1}, s{S_T1}, {8*7168}")
    e(f"s_lshl_b32 s{S_T2}, s{S_CT2}, 9")
    e(f"s_add_u32 s{S_T1}, s{S_T1}, s{S_T2}")
    e(f"s_lshl_b32 s{S_T2}, s{S_W}, 6")
    e(f"s_add_u32 s{S_T1}, s{S_T1}, s{S_T2}")
    e(f"s_add_u32 s{S_T1}, s{S_T1}, {WS_G:#x}")
    e.wait_vm(m_t2, " lgkmcnt(0)")
    e("s_barrier")
    stamp("B1")
    e(f"ds_read_b128 v[64:67], v14 offset:{L_XN}")
    e(f"ds_read_b128 v[68:71], v14 offset:{L_XN + 64}")
    a_frags(48, 13, L_T1)
    pump(cfg.qp_k, pace=False)
    e("s_waitcnt lgkmcnt(0)")
    with Optional():
        mfma_tag_store(72, 48, 64, 60, S_T0)
        e(f"s_cmp_ge_u32 s{S_IDX}, 28")
        e("s_cbranch_scc1 L_no_gu1")
        a_frags(48, 13, L_T2)
        e("s_waitcnt lgkmcnt(0)")
        mfma_tag_store(76, 48, 64, 61, S_T1)
        e.label("L_no_gu1")
    stamp("proj")

    T3LIM = 99 if 't' in cfg.abl else 18
    def wd_hook():
        with Optional():
            e(f"s_cmp_lt_u32 s{S_JJ}, {T3LIM}")
            e("s_cbranch_scc1 L_no_wd")
            e(f"s_sub_u32 s{S_T0}, s{S_JJ}, 18")
            e(f"s_lshl_b32 s{S_T0}, s{S_T0}, 3")
            e(f"s_add_u32 s{S_T0}, s{S_T0}, s{S_X8}")
            e(f"s_lshr_b32 s{S_FR}, s{S_T0}, 2")
            e(f"s_and_b32 s{S_T0}, s{S_T0}, 3")
            e(f"s_lshl_b32 s{S_T1}, s{S_FR}, 16")
            e(f"s_lshl_b32 s{S_T2}, s{S_T0}, 8")
            e(f"s_add_u32 s{S_T1}, s{S_T1}, s{S_T2}")
            e(f"s_lshl_b32 s{S_T2}, s{S_W}, 13")
            e(f"s_add_u32 s{S_T1}, s{S_T1}, s{S_T2}")
            tile_voff(12, 1024)
            tile_dma(SRD_WD, 12, S_T1, 4096, L_WD)
            e(f"s_lshl_b32 s{S_T3OFF}, s{S_T0}, 3")
            e(f"s_add_u32 s{S_T3OFF}, s{S_T3OFF}, s{S_W}")
            e(f"s_lshl_b32 s{S_T3OFF}, s{S_T3OFF}, 11")
            e(f"s_lshl_b32 s{S_T0}, s{S_FR}, 6")
            e(f"s_add_u32 s{S_T3OFF}, s{S_T3OFF}, s{S_T0}")
            e(f"s_add_u32 s{S_T3OFF}, s{S_T3OFF}, {WS_D:#x}")
            e(f"s_mul_i32 s{S_T1}, s{S_W}, 7168")
            e(f"s_lshl_b32 s{S_T2}, s{S_FR}, 8")
            e(f"s_add_u32 s{S_T1}, s{S_T1}, s{S_T2}")
            e(f"s_add_u32 s{S_HOFF}, s{S_T1}, {WS_H:#x}")
            e.label("L_no_wd")
    hooks[cfg.wd_at] = wd_hook
    assert pos[0] < cfg.wd_at
    pump(64, upto=32)

    QL = V_ACC
    def q_addr():
        e(f"s_lshl_b32 s{S_T0}, s{S_X8}, 3")
        e(f"s_lshr_b32 s{S_T1}, s{S_JJ}, 2")
        e(f"s_add_u32 s{S_T0}, s{S_T0}, s{S_T1}")
        e(f"s_lshl_b32 s{S_T0}, s{S_T0}, 3")
        e(f"s_add_u32 s{S_T0}, s{S_T0}, s{S_W}")
        e(f"s_lshl_b32 s{S_T0}, s{S_T0}, 11")
        e(f"s_add_u32 s{S_T0}, s{S_T0}, {WS_Q:#x}")
    def q_loads():
        e(f"buffer_load_dwordx4 {vr(QL)}, v14, {srd(SRD_WS)}, s{S_T0} offen sc1")
        e(f"buffer_load_dwordx4 {vr(QL+4)}, v14, {srd(SRD_WS)}, s{S_T0} offen offset:16 sc1")
    def q_vaddr():
        e("v_and_b32 v14, 3, v0")
        e("v_lshlrev_b32 v14, 9, v14")
        e("v_lshrrev_b32 v15, 2, v0")
        e("v_lshl_add_u32 v14, v15, 5, v14")
    _qa = q_addr
    def q_addr():
        _qa(); q_vaddr()
    q_addr()
    q_loads()
    m_q = e.mark()
    GR = V_S
    def g_addr():
        e("v_lshrrev_b32 v12, 4, v0")
        e(f"v_mul_u32_u24 v12, {8*7168}, v12")
        e("v_and_b32 v13, 15, v0")
        e("v_lshl_add_u32 v12, v13, 4, v12")
        e(f"s_mul_i32 s{S_T1}, s{S_W}, 7168")
        e(f"s_lshl_b32 s{S_T2}, s{S_RED}, 8")
        e(f"s_add_u32 s{S_T1}, s{S_T1}, s{S_T2}")
        e(f"s_add_u32 s{S_T1}, s{S_T1}, {WS_G:#x}")
    def g_loads():
        for i in range(4):
            e(f"s_add_u32 s{S_T2}, s{S_T1}, {((i >> 1) * 8 + 4 * (i & 1)) * 8 * 7168}")
            e(f"buffer_load_dwordx4 {vr(GR+4*i)}, v12, {srd(SRD_WS)}, s{S_T2} offen sc1")
    e(f"s_sub_u32 s{S_RED}, s{S_X8}, 4")
    e(f"s_lshl_b32 s{S_RED}, s{S_RED}, 3")
    e(f"s_add_u32 s{S_RED}, s{S_RED}, s{S_JJ}")
    e(f"s_sub_u32 s{S_RED}, s{S_RED}, 24")
    e(f"s_cmp_ge_u32 s{S_IDX}, 28")
    e(f"s_cselect_b32 s{S_RED}, s{S_RED}, 99")
    with Optional():
        e(f"s_cmp_ge_u32 s{S_RED}, 28")
        e("s_cbranch_scc1 L_no_gred_ld")
        g_addr()
        g_loads()
        e.label("L_no_gred_ld")
    m_g = e.mark()
    pump(8)
    e.wait_vm(m_q)
    gather_checked("q", q_loads, list(range(QL, QL + 8)), 56, V_T8, 0xff, pre=q_addr)
    e(f"v_add_u32 v13, {L_QS}, v{V_L16}")
    e(f"s_lshl_b32 s{S_T0}, s{S_W}, 11")
    e(f"v_add_u32 v12, s{S_T0}, v13")
    e(f"ds_write_b128 v12, {vr(QL)}")
    e(f"ds_write_b128 v12, {vr(QL+4)} offset:1024")
    e("s_waitcnt lgkmcnt(0)")
    if "q" not in cfg.abl: e("s_barrier")
    for w in range(4):
        e(f"ds_read_b128 {vr(48+8*w)}, v13 offset:{2048*w}")
        e(f"ds_read_b128 {vr(48+8*w+4)}, v13 offset:{2048*w + 1024}")
    e("s_waitcnt lgkmcnt(0)")
    for i in range(8):
        e(f"v_add_f32 v{48+i}, v{48+i}, v{56+i}")
        e(f"v_add_f32 v{64+i}, v{64+i}, v{72+i}")
    for w in range(4, 8):
        e(f"ds_read_b128 {vr(56 if w % 2 == 0 else 72)}, v13 offset:{2048*w}")
        e(f"ds_read_b128 {vr((56 if w % 2 == 0 else 72)+4)}, v13 offset:{2048*w + 1024}")
        if w % 2 == 1:
            e("s_waitcnt lgkmcnt(0)")
            for i in range(8):
                e(f"v_add_f32 v{48+i}, v{48+i}, v{56+i}")
                e(f"v_add_f32 v{64+i}, v{64+i}, v{72+i}")
    for i in range(8): e(f"v_add_f32 v{48+i}, v{48+i}, v{64+i}")
    for i in range(4): e(f"v_cvt_pk_bf16_f32 v{V_Q+i}, v{48+2*i}, v{48+2*i+1}")
    stamp("q_ok")

    with Optional():
        e(f"s_cmp_ge_u32 s{S_RED}, 28")
        e("s_cbranch_scc1 L_no_gred")
        e.wait_vm(m_g)
        def g_pre(): g_addr()
        gather_checked("g", g_loads, list(range(GR, GR + 16)), 48, V_T8, 0xff, pre=g_pre)
        G_, U_ = GR, GR + 8
        for i in range(4):
            e(f"v_add_f32 v{G_+i}, v{G_+i}, v{G_+4+i}")
            e(f"v_add_f32 v{U_+i}, v{U_+i}, v{U_+4+i}")
        for i in range(4): e(f"v_permlane32_swap_b32 v{G_+i}, v{U_+i}")
        for i in range(4): e(f"v_add_f32 v{G_+i}, v{G_+i}, v{U_+i}")
        e(f"v_permlane16_swap_b32 v{G_}, v{G_+1}")
        e(f"v_permlane16_swap_b32 v{G_+2}, v{G_+3}")
        e(f"v_add_f32 v{G_}, v{G_}, v{G_+1}")
        e(f"v_add_f32 v{G_+2}, v{G_+2}, v{G_+3}")
        e(f"v_mov_b32 v{U_}, v{G_}")
        e(f"v_mov_b32 v{U_+1}, v{G_+2}")
        e(f"v_permlane32_swap_b32 v{G_}, v{U_}")
        e(f"v_permlane32_swap_b32 v{G_+2}, v{U_+1}")
        e(f"v_cvt_pk_bf16_f32 v48, v{G_}, v{G_+2}")
        e(f"v_cvt_pk_bf16_f32 v49, v{U_}, v{U_+1}")
        e("v_lshlrev_b32 v50, 16, v48")
        e(f"v_and_b32 v51, s{S_M16}, v48")
        e(f"v_mul_f32 v50, {f2u(-LOG2E):#x}, v50")
        e(f"v_mul_f32 v51, {f2u(-LOG2E):#x}, v51")
        e("v_exp_f32 v50, v50")
        e("v_exp_f32 v51, v51")
        e("v_add_f32 v50, 1.0, v50")
        e("v_add_f32 v51, 1.0, v51")
        e("v_rcp_f32 v50, v50")
        e("v_rcp_f32 v51, v51")
        e("v_cvt_pk_bf16_f32 v48, v50, v51")
        e("v_lshlrev_b32 v50, 16, v48")
        e(f"v_and_b32 v51, s{S_M16}, v48")
        e("v_lshlrev_b32 v52, 16, v49")
        e(f"v_and_b32 v53, s{S_M16}, v49")
        e("v_mul_f32 v50, v50, v52")
        e("v_mul_f32 v51, v51, v53")
        e("v_cvt_pk_bf16_f32 v48, v50, v51")
        e(f"v_lshl_or_b32 v52, v48, 16, v{V_T16}")
        e(f"v_and_or_b32 v54, v48, s{S_M16}, v{V_T16}")
        e("v_mov_b32 v53, v52")
        e("v_mov_b32 v55, v54")
        e("v_mov_b32 v56, v52")
        e("v_mov_b32 v57, v54")
        e("v_permlane16_swap_b32 v56, v53")
        e("v_permlane16_swap_b32 v57, v55")
        e(f"s_mul_i32 s{S_T1}, s{S_W}, 7168")
        e(f"s_lshl_b32 s{S_T2}, s{S_RED}, 8")
        e(f"s_add_u32 s{S_T1}, s{S_T1}, s{S_T2}")
        e(f"s_add_u32 s{S_T1}, s{S_T1}, {WS_H:#x}")
        exec_set(0xffff, 0)
        e(f"buffer_store_dwordx4 v[52:55], v{V_L16}, {srd(SRD_WS)}, s{S_T1} offen sc1")
        exec_full()
        e("s_nop 1")
        e.label("L_no_gred")

    for t in range(4):
        for n in range(8):
            e(f"v_mfma_f32_16x16x32_bf16 {vr(V_ACC+4*n)}, {vr(SLOT(t)+4*n)}, {vr(V_Q)}, 0")
        pump(2, upto=48)
        for n in range(8):
            d = V_ACC + 4 * n
            e(f"v_add_f32_dpp v{V_S+8*t+n}, v{d+1}, v{d} row_shl:4 row_mask:0xf bank_mask:0xf bound_ctrl:0")
        for n in range(8):
            d = V_ACC + 4 * n
            e(f"v_add_f32_dpp v{V_S+8*t+n}, v{d+2}, v{V_S+8*t+n} row_shl:8 row_mask:0xf bank_mask:0xf bound_ctrl:0")
        for n in range(8):
            d = V_ACC + 4 * n
            e(f"v_add_f32_dpp v{V_S+8*t+n}, v{d+3}, v{V_S+8*t+n} row_shl:12 row_mask:0xf bank_mask:0xf bound_ctrl:0")
    stamp("S_done")
    pump(2, upto=56)
    if cfg.mimic:
        e(f"s_mov_b32 s{S_T0}, {f2u(SCALE):#x}")
        for rep in range(2):
            for m in range(16): e(f"v_cvt_pk_bf16_f32 v{V_ACC+m}, v{V_S+2*m}, v{V_S+2*m+1}")
            for m in range(16):
                e(f"v_lshlrev_b32 v{V_S+2*m}, 16, v{V_ACC+m}")
                e(f"v_and_b32 v{V_S+2*m+1}, s{S_M16}, v{V_ACC+m}")
            if rep == 0:
                for n in range(32): e(f"v_mul_f32 v{V_S+n}, s{S_T0}, v{V_S+n}")
            pump(1, upto=56)
        cexp = LOG2E
    else:
        cexp = LOG2E * SCALE
    e(f"v_max3_f32 v12, v{V_S}, v{V_S+1}, v{V_S+2}")
    for n in range(3, 31, 2): e(f"v_max3_f32 v12, v12, v{V_S+n}, v{V_S+n+1}")
    e(f"v_max_f32 v12, v12, v{V_S+31}")
    xrow_reduce("v_max_f32", [12], [13])
    e(f"s_lshl_b32 s{S_T0}, s{S_W}, 4")
    e("v_and_b32 v14, 3, v0")
    e("v_lshlrev_b32 v14, 2, v14")
    e(f"v_add_u32 v15, s{S_T0}, v14")
    exec_set(0xf, 0)
    e(f"ds_write_b32 v15, v12 offset:{L_MAX}")
    exec_full()
    e("s_waitcnt lgkmcnt(0)")
    if "4" not in cfg.abl: e("s_barrier")
    for w in range(8): e(f"ds_read_b32 v{V_ACC+w}, v14 offset:{L_MAX + 16*w}")
    pump(1, upto=56)
    e("s_waitcnt lgkmcnt(0)")
    e(f"v_max3_f32 v12, v{V_ACC}, v{V_ACC+1}, v{V_ACC+2}")
    e(f"v_max3_f32 v12, v12, v{V_ACC+3}, v{V_ACC+4}")
    e(f"v_max3_f32 v12, v12, v{V_ACC+5}, v{V_ACC+6}")
    e(f"v_max_f32 v12, v12, v{V_ACC+7}")
    e(f"s_mov_b32 s{S_T0}, {f2u(cexp):#x}")
    e(f"v_mul_f32 v12, s{S_T0}, v12")
    e(f"v_and_b32 v{V_MP}, s{S_M8}, v12")
    e(f"v_sub_f32 v{V_NEGM}, 0, v{V_MP}")
    for n in range(32): e(f"v_fma_f32 v{V_S+n}, v{V_S+n}, s{S_T0}, v{V_NEGM}")
    pump(1, upto=56)
    for n in range(32): e(f"v_exp_f32 v{V_S+n}, v{V_S+n}")
    pump(1, upto=56)
    e(f"v_add_f32 v12, v{V_S}, v{V_S+1}")
    e(f"v_add_f32 v13, v{V_S+2}, v{V_S+3}")
    for n in range(4, 32, 2):
        e(f"v_add_f32 v12, v12, v{V_S+n}")
        e(f"v_add_f32 v13, v13, v{V_S+n+1}")
    e("v_add_f32 v12, v12, v13")
    for m in range(16): e(f"v_cvt_pk_bf16_f32 v{V_S+m}, v{V_S+2*m}, v{V_S+2*m+1}")
    xrow_reduce("v_add_f32", [12], [13])
    exec_set(0xf, 0)
    e(f"ds_write_b32 v15, v12 offset:{L_LS}")
    exec_full()
    pump(8, upto=56)
    e("s_waitcnt lgkmcnt(0)")
    if "5" not in cfg.abl: e("s_barrier")
    stamp("softmax")
    with Optional():
        e(f"s_cmp_lg_u32 s{S_W}, 2")
        e("s_cbranch_scc1 L_no_ml")
        e("v_mov_b32 v12, 0")
        for w in range(8): e(f"ds_read_b128 {vr(V_ACC+4*w)}, v12 offset:{L_LS + 16*w}")
        e("s_waitcnt lgkmcnt(0)")
        for w in range(1, 8):
            for i in range(4): e(f"v_add_f32 v{V_ACC+i}, v{V_ACC+i}, v{V_ACC+4*w+i}")
        for h in range(4): e(f"v_readlane_b32 s{S_T0+h}, v{V_MP}, {h}")
        for h in range(4): e(f"v_or_b32 v{V_ACC+4+h}, s{S_T0+h}, v{V_T8}")
        for h in range(4): e(f"v_and_or_b32 v{V_ACC+h}, v{V_ACC+h}, s{S_M8}, v{V_T8}")
        e(f"s_lshl_b32 s{S_T0}, s{S_CHUNK}, 5")
        e(f"s_add_u32 s{S_T0}, s{S_T0}, {WS_ML:#x}")
        exec_set(1, 0)
        e(f"buffer_store_dwordx4 {vr(V_ACC+4)}, v12, {srd(SRD_WS)}, s{S_T0} offen sc1")
        e(f"buffer_store_dwordx4 {vr(V_ACC)}, v12, {srd(SRD_WS)}, s{S_T0} offen offset:16 sc1")
        exec_full()
        e("s_nop 1")
        e.label("L_no_ml")

    TA = V_X
    TB = V_X + 8
    TD = V_X + 16
    TG = V_X + 20
    WT = V_X + 28
    ML = V_Z
    def tile_addr(vb, vs, pstride):
        e(f"v_and_b32 v{vb}, 7, v0")
        e(f"v_mul_u32_u24 v{vb}, 144, v{vb}")
        e(f"v_lshrrev_b32 v{vs}, 4, v0")
        e(f"v_lshl_add_u32 v{vb}, v{vs}, 4, v{vb}")
        e(f"v_lshlrev_b32 v{vs}, 4, v{vs}")
        e(f"v_and_b32 v15, 15, v0")
        e(f"v_mul_u32_u24 v15, {32*pstride}, v15")
        e(f"v_add_u32 v{vs}, v{vs}, v15")
    def h_loads():
        e(f"buffer_load_dwordx4 {vr(TG)}, v{V_L16}, {srd(SRD_WS)}, s{S_HOFF} offen sc1")
    with Optional():
        e(f"s_cmp_lt_u32 s{S_JJ}, {T3LIM}")
        e("s_cbranch_scc1 L_no_h_ld")
        exec_set(0xffff, 0)
        h_loads()
        exec_full()
        e.label("L_no_h_ld")
    m_h = e.mark()

    BT = V_S + 16
    def pv_tile(t, sprinkle=0):
        vs = SLOT(vslot[t])
        P = V_S + 4 * t
        def perms(ee):
            b = BT + 4 * (ee % 4)
            sel = S_SELLO if ee % 2 == 0 else S_SELHI
            for m in range(4):
                e(f"v_perm_b32 v{b+m}, v{vs+4*(2*m+1)+(ee>>1)}, v{vs+4*(2*m)+(ee>>1)}, s{sel}")
        perms(0); perms(1)
        for ee in range(8):
            b = BT + 4 * (ee % 4)
            c = "0" if t == 0 else vr(V_ACC + 4 * ee)
            e(f"v_mfma_f32_16x16x32_bf16 {vr(V_ACC+4*ee)}, {vr(P)}, {vr(b)}, {c}")
            if sprinkle: pump(1)
            if ee + 2 < 8: perms(ee + 2)
    e.wait_vm(mV[0]); pv_tile(0, sprinkle=1)
    assert pos[0] == 64
    tile_voff(12, 131072)
    e(f"s_lshl_b32 s{S_T0}, s{S_X8}, 19")
    e(f"s_lshr_b32 s{S_T1}, s{S_JJ}, 2")
    e(f"s_lshl_b32 s{S_T1}, s{S_T1}, 14")
    e(f"s_add_u32 s{S_T0}, s{S_T0}, s{S_T1}")
    e(f"s_and_b32 s{S_T1}, s{S_JJ}, 3")
    e(f"s_lshl_b32 s{S_T1}, s{S_T1}, 8")
    e(f"s_add_u32 s{S_T0}, s{S_T0}, s{S_T1}")
    e(f"s_lshl_b32 s{S_T1}, s{S_W}, 11")
    e(f"s_add_u32 s{S_T0}, s{S_T0}, s{S_T1}")
    tile_dma(SRD_WO, 12, S_T0, 1024, L_WO)
    m_wo = e.mark()
    def ml_addr():
        e("v_lshrrev_b32 v12, 4, v0")
        e(f"s_lshl_b32 s{S_T0}, s{S_W}, 5")
        e(f"s_lshl_b32 s{S_T1}, s{S_X8}, 2")
        e(f"s_add_u32 s{S_T0}, s{S_T0}, s{S_T1}")
        e(f"v_add_u32 v12, s{S_T0}, v12")
        e("v_lshlrev_b32 v13, 5, v12")
        e(f"s_mov_b32 s{S_T3}, {WS_ML:#x}")
    def ml_loads():
        e(f"buffer_load_dwordx4 {vr(ML)}, v13, {srd(SRD_WS)}, s{S_T3} offen sc1")
        e(f"buffer_load_dwordx4 {vr(ML+4)}, v13, {srd(SRD_WS)}, s{S_T3} offen offset:16 sc1")
    ml_addr()
    ml_loads()
    m_ml = e.mark()
    stamp("PV0")

    with Optional():
        e(f"s_cmp_lt_u32 s{S_JJ}, {T3LIM}")
        e("s_cbranch_scc1 L_no_t3")
        e.wait_vm(m_h)
        exec_set(0xffff, 0)
        gather_checked("h", h_loads, list(range(TG, TG + 4)), TG + 4, V_T16, 0xffff)
        e(f"v_perm_b32 v{TG+4}, v{TG+1}, v{TG}, s{S_SELHI}")
        e(f"v_perm_b32 v{TG+5}, v{TG+3}, v{TG+2}, s{S_SELHI}")
        e(f"s_mul_i32 s{S_T0}, s{S_W}, 144")
        e("v_lshlrev_b32 v12, 3, v0")
        e(f"v_add_u32 v12, s{S_T0}, v12")
        e(f"ds_write_b64 v12, {vr(TG+4,2)} offset:{L_ACT2}")
        exec_full()
        a_addr(12)
        tile_addr(13, 14, 2048)
        e("s_waitcnt lgkmcnt(0)")
        e("s_barrier")
        a_frags(TA, 12, L_WD)
        e(f"ds_read_b128 {vr(TB)}, v13 offset:{L_ACT2}")
        e(f"ds_read_b128 {vr(TB+4)}, v13 offset:{L_ACT2 + 64}")
        e("s_waitcnt lgkmcnt(0)")
        mfma_tag_store(TD, TA, TB, 14, S_T3OFF)
        e.label("L_no_t3")
    stamp("T3")
    e.wait_vm(mV[1]); pv_tile(1)
    e.wait_vm(mV[2]); pv_tile(2)
    A_OC, A_OG, A_ACT, A_TB, A_TS, A_TA = 232, 233, 234, 235, 236, 237
    e(f"s_lshl_b32 s{S_T0}, s{S_W}, 11")
    e(f"v_add_u32 v{A_OC}, s{S_T0}, v{V_L16}")
    e("v_lshrrev_b32 v12, 4, v0")
    e(f"s_lshl_b32 s{S_T0}, s{S_W}, 5")
    e(f"s_lshl_b32 s{S_T1}, s{S_X8}, 2")
    e(f"s_add_u32 s{S_T0}, s{S_T0}, s{S_T1}")
    e(f"v_add_u32 v12, s{S_T0}, v12")
    e("v_lshlrev_b32 v12, 11, v12")
    e("v_and_b32 v13, 15, v0")
    e(f"v_lshl_add_u32 v{A_OG}, v13, 4, v12")
    S_OG, S_YOFF = 59, 60
    e(f"s_lshr_b32 s{S_OG}, s{S_JJ}, 2")
    e(f"s_lshl_b32 s{S_OG}, s{S_OG}, 8")
    e(f"s_add_u32 s{S_OG}, s{S_OG}, {WS_O:#x}")
    e(f"s_mul_i32 s{S_T0}, s{S_W}, 144")
    e("v_lshlrev_b32 v13, 3, v13")
    e("v_lshrrev_b32 v12, 4, v0")
    e("v_lshl_add_u32 v13, v12, 1, v13")
    e(f"v_add_u32 v{A_ACT}, s{S_T0}, v13")
    tile_addr(A_TB, A_TS, 4096)
    a_addr(A_TA)
    e(f"s_and_b32 s{S_YOFF}, s{S_JJ}, 3")
    e(f"s_lshl_b32 s{S_YOFF}, s{S_YOFF}, 3")
    e(f"s_add_u32 s{S_YOFF}, s{S_YOFF}, s{S_W}")
    e(f"s_lshl_b32 s{S_YOFF}, s{S_YOFF}, 12")
    e(f"s_lshl_b32 s{S_T0}, s{S_X8}, 3")
    e(f"s_lshr_b32 s{S_T1}, s{S_JJ}, 2")
    e(f"s_add_u32 s{S_T0}, s{S_T0}, s{S_T1}")
    e(f"s_lshl_b32 s{S_T0}, s{S_T0}, 6")
    e(f"s_add_u32 s{S_YOFF}, s{S_YOFF}, s{S_T0}")
    e(f"s_add_u32 s{S_YOFF}, s{S_YOFF}, {WS_Y:#x}")
    e("v_lshrrev_b32 v13, 4, v0")
    e(f"s_lshl_b32 s{S_T0}, s{S_W}, 2")
    e(f"v_add_u32 v13, s{S_T0}, v13")
    e("v_and_b32 v14, 15, v0")
    e("v_lshlrev_b32 v238, 8, v13")
    e("v_lshl_add_u32 v238, v14, 4, v238")
    e("v_lshl_add_u32 v13, v14, 3, v13")
    e("v_lshlrev_b32 v239, 4, v13")
    e(f"s_lshl_b32 s{S_HOFF}, s{S_CHUNK}, 11")
    e(f"s_add_u32 s{S_HOFF}, s{S_HOFF}, {WS_O:#x}")
    e.wait_vm(mV[3]); pv_tile(3)
    stamp("PV3")

    exec_set(0xffff, 0)
    for ee in range(8): e(f"ds_write_b128 v{A_OC}, {vr(V_ACC+4*ee)} offset:{L_OC + 256*ee}")
    exec_full()
    e.wait_vm(m_ml, " lgkmcnt(0)")
    e("s_barrier")
    OG = V_S + 12
    TM = V_S + 16
    with Optional():
        e(f"s_cmp_gt_u32 s{S_W}, 1")
        e("s_cbranch_scc1 L_no_opub")
        for w in range(8): e(f"ds_read_b128 {vr(V_ACC+4*w)}, v238 offset:{L_OC + 2048*w}")
        e("s_waitcnt lgkmcnt(0)")
        for i in range(4):
            e(f"v_add_f32 v{V_ACC+i}, v{V_ACC+i}, v{V_ACC+4+i}")
            e(f"v_add_f32 v{V_ACC+8+i}, v{V_ACC+8+i}, v{V_ACC+12+i}")
            e(f"v_add_f32 v{V_ACC+16+i}, v{V_ACC+16+i}, v{V_ACC+20+i}")
            e(f"v_add_f32 v{V_ACC+24+i}, v{V_ACC+24+i}, v{V_ACC+28+i}")
        for i in range(4):
            e(f"v_add_f32 v{V_ACC+i}, v{V_ACC+i}, v{V_ACC+8+i}")
            e(f"v_add_f32 v{V_ACC+16+i}, v{V_ACC+16+i}, v{V_ACC+24+i}")
        for i in range(4): e(f"v_add_f32 v{V_ACC+i}, v{V_ACC+i}, v{V_ACC+16+i}")
        for i in range(4): e(f"v_and_or_b32 v{V_ACC+i}, v{V_ACC+i}, s{S_M8}, v{V_T8}")
        e(f"buffer_store_dwordx4 {vr(V_ACC)}, v239, {srd(SRD_WS)}, s{S_HOFF} offen sc1")
        e.label("L_no_opub")
    stamp("O_pub")

    def o_loads():
        e(f"buffer_load_dwordx4 {vr(OG)}, v{A_OG}, {srd(SRD_WS)}, s{S_OG} offen sc1")
    o_loads()
    a_frags(TA, A_TA, L_WO)
    gather_checked("ml", ml_loads, list(range(ML, ML + 8)), TM, V_T8, 0xff, pre=ml_addr)
    for h in range(4): e(f"v_mov_b32 v{TM+h}, v{ML+h}")
    xrow_reduce("v_max_f32", [TM + h for h in range(4)], [TM + 4 + h for h in range(4)])
    for h in range(4): e(f"v_sub_f32 v{WT+h}, v{ML+h}, v{TM+h}")
    for h in range(4): e(f"v_exp_f32 v{WT+h}, v{WT+h}")
    for h in range(4): e(f"v_mul_f32 v{TM+h}, v{WT+h}, v{ML+4+h}")
    xrow_reduce("v_add_f32", [TM + h for h in range(4)], [TM + 4 + h for h in range(4)])
    for h in range(4): e(f"v_rcp_f32 v{TM+4+h}, v{TM+h}")
    for h in range(4): e(f"v_fma_f32 v{TM+8+h}, -v{TM+h}, v{TM+4+h}, 1.0")
    for h in range(4): e(f"v_fma_f32 v{TM+4+h}, v{TM+8+h}, v{TM+4+h}, v{TM+4+h}")
    for h in range(4): e(f"v_mul_f32 v{WT+h}, v{WT+h}, v{TM+4+h}")
    e("s_waitcnt vmcnt(0)")
    gather_checked("o", o_loads, list(range(OG, OG + 4)), TM, V_T8, 0xff)
    stamp("O_got")
    for h in range(4): e(f"v_mul_f32 v{OG+h}, v{OG+h}, v{WT+h}")
    e(f"v_permlane32_swap_b32 v{OG}, v{OG+2}")
    e(f"v_permlane32_swap_b32 v{OG+1}, v{OG+3}")
    e(f"v_add_f32 v{OG}, v{OG}, v{OG+2}")
    e(f"v_add_f32 v{OG+1}, v{OG+1}, v{OG+3}")
    e(f"v_permlane16_swap_b32 v{OG}, v{OG+1}")
    e(f"v_add_f32 v{OG}, v{OG}, v{OG+1}")
    e(f"v_cvt_pk_bf16_f32 v{OG}, v{OG}, v{OG}")
    e(f"ds_write_b16 v{A_ACT}, v{OG} offset:{L_ACT}")
    e("s_waitcnt lgkmcnt(0)")
    e("s_barrier")
    e(f"ds_read_b128 {vr(TB)}, v{A_TB} offset:{L_ACT}")
    e(f"ds_read_b128 {vr(TB+4)}, v{A_TB} offset:{L_ACT + 64}")
    e("s_waitcnt lgkmcnt(0)")
    with Optional():
        mfma_tag_store(TD, TA, TB, A_TS, S_YOFF)
    stamp("y_pub")

    e(f"s_cmp_lg_u32 s{S_W}, 0")
    e("s_cbranch_scc1 L_end")
    Y = 16
    DD = 32
    e(f"s_lshl_b32 s{S_T0}, s{S_CHUNK}, 12")
    e(f"s_add_u32 s{S_T0}, s{S_T0}, {WS_Y:#x}")
    e(f"s_lshl_b32 s{S_T1}, s{S_CHUNK}, 11")
    e(f"s_add_u32 s{S_T1}, s{S_T1}, {WS_D:#x}")
    def fin_loads():
        for i in range(4): e(f"v_mov_b32 v{DD+4+i}, v{V_T8}")
        for i in range(4):
            e(f"buffer_load_dwordx4 {vr(Y+4*i)}, v{V_L16}, {srd(SRD_WS)}, s{S_T0} offen offset:{1024*i} sc1")
        e(f"buffer_load_dwordx4 {vr(DD)}, v{V_L16}, {srd(SRD_WS)}, s{S_T1} offen sc1")
        exec_set(0xffffffff, 0xffff)
        e(f"buffer_load_dwordx4 {vr(DD+4)}, v{V_L16}, {srd(SRD_WS)}, s{S_T1} offen offset:1024 sc1")
        exec_full()
    with Optional():
        fin_loads()
    e("v_and_b32 v13, 3, v0")
    e("v_bfe_u32 v14, v0, 4, 1")
    e("v_lshl_add_u32 v14, v13, 2, v14")
    e("v_lshlrev_b32 v14, 1, v14")
    e(f"s_lshl_b32 s{S_T2}, s{S_CHUNK}, 5")
    with Optional():
        e(f"buffer_load_ushort v40, v14, {srd(SRD_X)}, s{S_T2} offen")
        e(f"buffer_load_ushort v41, v14, {srd(SRD_X)}, s{S_T2} offen offset:4")
    e("s_waitcnt vmcnt(0)")
    gather_checked("fin", fin_loads, list(range(Y, Y + 24)), 44, V_T8, 0xff)
    stamp("fin_got")
    for i in range(4):
        e(f"v_add_f32 v{Y+i}, v{Y+i}, v{Y+4+i}")
        e(f"v_add_f32 v{Y+8+i}, v{Y+8+i}, v{Y+12+i}")
        e(f"v_add_f32 v{DD+i}, v{DD+i}, v{DD+4+i}")
    for i in range(4): e(f"v_add_f32 v{Y+i}, v{Y+i}, v{Y+8+i}")
    for i in range(4): e(f"v_permlane32_swap_b32 v{Y+i}, v{DD+i}")
    for i in range(4): e(f"v_add_f32 v{Y+i}, v{Y+i}, v{DD+i}")
    e(f"v_permlane16_swap_b32 v{Y}, v{Y+1}")
    e(f"v_permlane16_swap_b32 v{Y+2}, v{Y+3}")
    e(f"v_add_f32 v{Y}, v{Y}, v{Y+1}")
    e(f"v_add_f32 v{Y+2}, v{Y+2}, v{Y+3}")
    for ror in (4, 8):
        e(f"v_add_f32_dpp v{Y}, v{Y}, v{Y} row_ror:{ror} row_mask:0xf bank_mask:0xf")
        e(f"v_add_f32_dpp v{Y+2}, v{Y+2}, v{Y+2} row_ror:{ror} row_mask:0xf bank_mask:0xf")
    e(f"v_mov_b32 v{DD}, v{Y}")
    e(f"v_mov_b32 v{DD+1}, v{Y+2}")
    e(f"v_permlane32_swap_b32 v{Y}, v{DD}")
    e(f"v_permlane32_swap_b32 v{Y+2}, v{DD+1}")
    e(f"v_cvt_pk_bf16_f32 v44, v{Y}, v{Y+2}")
    e(f"v_cvt_pk_bf16_f32 v45, v{DD}, v{DD+1}")
    e(f"v_lshlrev_b32 v46, 16, v45")
    e(f"v_and_b32 v47, s{S_M16}, v45")
    e(f"v_mul_f32 v48, {f2u(-LOG2E):#x}, v46")
    e(f"v_mul_f32 v49, {f2u(-LOG2E):#x}, v47")
    e("v_exp_f32 v48, v48")
    e("v_exp_f32 v49, v49")
    e("v_add_f32 v48, 1.0, v48")
    e("v_add_f32 v49, 1.0, v49")
    e("v_rcp_f32 v48, v48")
    e("v_rcp_f32 v49, v49")
    e("v_lshlrev_b32 v50, 16, v44")
    e(f"v_and_b32 v51, s{S_M16}, v44")
    e("v_mul_f32 v48, v46, v48")
    e("v_mul_f32 v49, v47, v49")
    e("v_cvt_pk_bf16_f32 v48, v48, v49")
    e("v_lshlrev_b32 v46, 16, v48")
    e(f"v_and_b32 v47, s{S_M16}, v48")
    e("v_mul_f32 v46, v50, v46")
    e("v_mul_f32 v47, v51, v47")
    e("v_cvt_pk_bf16_f32 v48, v46, v47")
    e("v_lshlrev_b32 v46, 16, v48")
    e(f"v_and_b32 v47, s{S_M16}, v48")
    e("v_lshlrev_b32 v40, 16, v40")
    e("v_lshlrev_b32 v41, 16, v41")
    e("v_add_f32 v46, v46, v40")
    e("v_add_f32 v47, v47, v41")
    e("v_cvt_pk_bf16_f32 v48, v46, v47")
    exec_set(0x000f000f, 0)
    e(f"buffer_store_short v48, v14, {srd(SRD_OUT)}, s{S_T2} offen")
    e(f"buffer_store_short_d16_hi v48, v14, {srd(SRD_OUT)}, s{S_T2} offen offset:4")
    e("s_cmp_lg_u32 s2, 0")
    e("s_cbranch_scc1 L_no_epoch")
    exec_set(1, 0)
    e(f"v_mov_b32 v50, s{S_TAG}")
    e("v_mov_b32 v51, 0")
    e(f"buffer_store_dword v50, v51, {srd(SRD_WS)}, 0 offen offset:{WS_EPOCH}")
    e.label("L_no_epoch")
    exec_full()
    e.label("L_end")
    if cfg.stamps:
        e("s_cmp_ge_u32 s2, 256")
        e("s_cbranch_scc1 L_end2")
        e("s_memrealtime s[100:101]")
        e("s_waitcnt lgkmcnt(0)")
        e("s_lshl_b32 s55, s2, 3")
        e(f"s_add_u32 s55, s55, s{S_W}")
        e("s_lshl_b32 s55, s55, 7")
        e(f"s_add_u32 s55, s55, {WS_ST:#x}")
        exec_set(1, 0)
        e("v_mov_b32 v51, 0")
        for i in list(range(len(names))) + [15]:
            r = stamp_reg(i) if i < 15 else 100
            e(f"v_mov_b32 v48, s{r}")
            e(f"v_mov_b32 v49, s{r+1}")
            e(f"buffer_store_dwordx2 v[48:49], v51, {srd(SRD_WS)}, s55 offen offset:{8*i}")
            e("s_nop 1")
        e.label("L_end2")
    gen.names = names + ["end"]
    e("s_endpgm")

    hdr = open("cdna_kernels/" + NAME + ".s.ref").read().split("\n")
    head = [l for l in hdr if l.startswith(";") and "@launch" not in l and "Override" not in l and "grid=ceil" not in l]
    out = "\n".join(head) + "\n"
    out += f"; @launch grid=(256,1,1) block=(512,1,1) lds={L_END}\n"
    out += '.amdgcn_target "amdgcn-amd-amdhsa--gfx950"\n.text\n'
    out += f".globl {KNAME}\n.p2align 8\n.type {KNAME},@function\n{KNAME}:\n"
    out += e.text()
    out += f""".section .rodata,"a"
.p2align 6
.amdhsa_kernel {KNAME}
  .amdhsa_next_free_vgpr {NVGPR}
  .amdhsa_next_free_sgpr 102
  .amdhsa_accum_offset {NVGPR}
  .amdhsa_group_segment_fixed_size 0
  .amdhsa_kernarg_size 96
  .amdhsa_user_sgpr_count 2
  .amdhsa_user_sgpr_kernarg_segment_ptr 1
  .amdhsa_system_sgpr_workgroup_id_x 1
  .amdhsa_float_denorm_mode_32 3
.end_amdhsa_kernel
"""
    return out

if __name__ == "__main__":
    kw = eval("dict(%s)" % (sys.argv[2] if len(sys.argv) > 2 else ""))
    txt = gen(Cfg(**kw))
    path = sys.argv[1] if len(sys.argv) > 1 else "cdna_kernels/" + NAME + ".s"
    open(path, "w").write(txt)
    print("wrote", path, len(txt), "bytes; LDS", L_END)
```

```python
import sys, struct
sys.path.insert(0, "dev")
from emit import Emit

NAME = "recurrent_scan__gqa_block_cached__glu_gated_glu__decode"
KNAME = NAME + "_kernel"

WS_EPOCH = 0
WS_H   = 0x40000
WS_ML  = 0x50000
WS_O   = 0x60000
WS_Y   = 0x100000
WS_D   = 0x200000
WS_ST  = 0x300000
WS_Q   = 0x400000
WS_G   = 0x500000
WS_SIZE = 0x600000

XN_STRIDE = 1040
L_XN  = 0
L_T1  = 8448
L_T2  = L_T1 + 16384
L_WD  = L_T2 + 16384
L_MAX = L_WD + 16384
L_LS  = L_MAX + 128
L_ACT = L_LS + 128
L_ACT2 = L_ACT + 1152
L_QS  = L_ACT2 + 1152
L_END = L_QS + 16384
L_WO  = L_T1
L_OC  = L_T2
assert L_WD + 9216 < 65536 and L_QS < 65536 and L_QS % 16 == 0

V_KOFF, V_VOFF, V_L16, V_T16, V_T8, V_NEGM, V_MP = 1, 2, 3, 4, 5, 6, 7
V_Q = 8
V_S = 16
V_ACC = 48
def SLOT(i): return 80 + 32 * i
V_X = SLOT(3)
V_Z = 240
NVGPR = 248

S_W, S_X8, S_JJ, S_CHUNK, S_TAG = 3, 44, 45, 46, 47
SRD_K, SRD_V, SRD_WS, SRD_X, SRD_WQ, SRD_WG, SRD_WD, SRD_WO, SRD_OUT = 4, 8, 12, 16, 20, 24, 32, 36, 40
S_IDX, S_MAT, S_CT2, S_KP = 28, 29, 30, 31
S_OFFA, S_RED, S_SELLO, S_SELHI, S_M8, S_M16, S_CNT = 48, 49, 50, 51, 52, 53, 54
S_T0, S_T1, S_T2, S_T3 = 55, 56, 57, 58
S_T3OFF, S_FR, S_HOFF = 59, 60, 61
S_EPOCH = 62
S_T4 = 63
KA = 64
def stamp_reg(i): return 88 + 2 * i if i < 6 else 64 + 2 * (i - 6)

def srd(i): return f"s[{i}:{i+3}]"
def vr(a, n=4): return f"v[{a}:{a+n-1}]"
LOG2E = 1.4426950408889634
SCALE = 128 ** -0.5
def f2u(x): return struct.unpack("<I", struct.pack("<f", x))[0]

class Cfg:
    mimic = True
    window = 5
    stamps = False
    spin = 200000
    pre_a = 0
    pre_b = 1
    ln_k = (1, 1, 1)
    qp_k = 0
    wd_at = 20
    abl = ''
    dbgspan = False
    rnd = True
    bar0 = True
    slp = 0
    q_at = 32
    def __init__(self, **kw):
        for k, v in kw.items(): setattr(self, k, v)

def gen(cfg=None):
    cfg = cfg or Cfg()
    e = Emit()
    W = cfg.window
    names = []
    def stamp(name):
        if cfg.stamps:
            i = len(names); names.append(name)
            assert i < 15
            e(f"s_memrealtime s[{stamp_reg(i)}:{stamp_reg(i)+1}]")
    def exec_set(lo, hi):
        e(f"s_mov_b32 exec_lo, {lo:#x}")
        e(f"s_mov_b32 exec_hi, {hi:#x}")
    def exec_full(): e("s_mov_b64 exec, -1")
    class Optional:
        def __enter__(self): self.vm = e.vm
        def __exit__(self, *a): e.vm = self.vm

    def wave_sum_to_sgpr(v, s):
        for sh in (1, 2, 4, 8):
            e(f"v_add_f32_dpp v{v}, v{v}, v{v} row_shr:{sh} row_mask:0xf bank_mask:0xf bound_ctrl:0")
        e(f"v_add_f32_dpp v{v}, v{v}, v{v} row_bcast:15 row_mask:0xa bank_mask:0xf")
        e(f"v_add_f32_dpp v{v}, v{v}, v{v} row_bcast:31 row_mask:0xc bank_mask:0xf")
        e(f"v_readlane_b32 s{s}, v{v}, 63")
    def xrow_reduce(op, regs, tmps):
        for sw in ("v_permlane16_swap_b32", "v_permlane32_swap_b32"):
            for r, t in zip(regs, tmps): e(f"v_mov_b32 v{t}, v{r}")
            for r, t in zip(regs, tmps): e(f"{sw} v{r}, v{t}")
            for r, t in zip(regs, tmps): e(f"{op} v{r}, v{r}, v{t}")
    def rne_single(dst, src):
        e(f"v_cvt_pk_bf16_f32 v{dst}, v{src}, v{src}")
        e(f"v_lshlrev_b32 v{dst}, 16, v{dst}")
    def poll_tail(label_retry, label_ok):
        e(f"s_cbranch_vccz {label_ok}")
        e(f"s_sub_u32 s{S_CNT}, s{S_CNT}, 1")
        e(f"s_cmp_lg_u32 s{S_CNT}, 0")
        e(f"s_cbranch_scc1 {label_retry}")
    def chk(regs, tmp, tagv, mask):
        n = len(regs)
        for r in regs: e(f"v_xor_b32 v{r}, v{r}, v{tagv}")
        accs = [tmp, tmp + 1] if n >= 8 else [tmp]
        parts = [regs[i::len(accs)] for i in range(len(accs))]
        steps = []
        for a, pr in zip(accs, parts):
            st = []
            if len(pr) >= 3: st.append(f"v_or3_b32 v{a}, v{pr[0]}, v{pr[1]}, v{pr[2]}"); i = 3
            else: st.append(f"v_or_b32 v{a}, v{pr[0]}, v{pr[1]}"); i = 2
            while i < len(pr):
                if i + 1 < len(pr): st.append(f"v_or3_b32 v{a}, v{a}, v{pr[i]}, v{pr[i+1]}"); i += 2
                else: st.append(f"v_or_b32 v{a}, v{a}, v{pr[i]}"); i += 1
            steps.append(st)
        for i in range(max(len(x) for x in steps)):
            for st in steps:
                if i < len(st): e(st[i])
        if len(accs) == 2: e(f"v_or_b32 v{tmp}, v{tmp}, v{tmp+1}")
        e(f"v_and_b32 v{tmp}, {mask:#x}, v{tmp}")
        e(f"v_cmp_ne_u32 vcc, 0, v{tmp}")
    def gather_checked(name, loads, regs, tmp, tagv, mask, pre=None):
        chk(regs, tmp, tagv, mask)
        e(f"s_cbranch_vccz L_{name}_ok")
        with Optional():
            if pre: pre()
            e(f"s_mov_b32 s{S_CNT}, {cfg.spin}")
            e.label(f"L_{name}_retry")
            if cfg.slp and name in ("fin", "o"): e(f"s_sleep {cfg.slp}")
            loads()
            e("s_waitcnt vmcnt(0)")
            chk(regs, tmp, tagv, mask)
            poll_tail(f"L_{name}_retry", f"L_{name}_ok")
        e.label(f"L_{name}_ok")

    offstate = [None]
    def kv_load(which, t, n, slot, pace):
        so = t * 65536 + (n >> 2) * 4096
        if offstate[0] != so:
            e(f"s_mov_b32 s{S_OFFA}, {so:#x}"); offstate[0] = so
        r = SLOT(slot) + 4 * n
        voff, s = (V_KOFF, SRD_K) if which == "k" else (V_VOFF, SRD_V)
        e(f"buffer_load_dwordx4 {vr(r)}, v{voff}, {srd(s)}, s{S_OFFA} offen offset:{(n & 3) * 1024} nt")
        if pace: e(f"s_waitcnt vmcnt({W})")
    vslot = [4, 0, 1, 2]
    seq = [("k", t, n) for t in range(4) for n in range(8)] + [("v", t, n) for t in range(4) for n in range(8)]
    pos = [0]
    mK = [None] * 4; mV = [None] * 4
    hooks = {}
    def pump(cnt, pace=True, upto=64):
        for _ in range(cnt):
            if pos[0] >= upto: return
            which, t, n = seq[pos[0]]; pos[0] += 1
            kv_load(which, t, n, t if which == "k" else vslot[t], pace)
            if n == 7: (mK if which == "k" else mV)[t] = e.mark()
            if pos[0] in hooks: hooks[pos[0]]()

    def tile_dma(srdn, voff, soff, rowstep4, lbase, flags=" nt"):
        e(f"s_lshl_b32 s{S_T4}, s{S_W}, 11")
        e(f"s_add_u32 m0, s{S_T4}, {lbase}")
        e(f"buffer_load_dwordx4 v{voff}, {srd(srdn)}, s{soff} offen{flags} lds")
        e(f"s_add_u32 s{soff}, s{soff}, {rowstep4}")
        e(f"s_add_u32 m0, s{S_T4}, {lbase + 1024}")
        e(f"buffer_load_dwordx4 v{voff}, {srd(srdn)}, s{soff} offen{flags} lds")
    def tile_voff(dst, rowstride):
        e(f"v_lshrrev_b32 v{dst}, 4, v0")
        e(f"v_mul_u32_u24 v{dst}, {rowstride}, v{dst}")
        e(f"v_and_b32 v15, 15, v0")
        e(f"v_lshl_add_u32 v{dst}, v15, 4, v{dst}")
    def a_addr(dst):
        e(f"v_lshrrev_b32 v{dst}, 4, v0")
        e("v_bfe_u32 v15, v0, 2, 2")
        e(f"v_lshl_add_u32 v{dst}, v{dst}, 3, v15")
        e(f"v_lshlrev_b32 v{dst}, 8, v{dst}")
        e("v_and_b32 v15, 3, v0")
        e(f"v_lshl_add_u32 v{dst}, v15, 3, v{dst}")
        e(f"s_lshl_b32 s{S_T4}, s{S_W}, 5")
        e(f"v_add_u32 v{dst}, s{S_T4}, v{dst}")
    def a_frags(ta, va, lbase):
        e(f"ds_read_b64_tr_b16 {vr(ta,2)}, v{va} offset:{lbase}")
        e(f"ds_read_b64_tr_b16 {vr(ta+2,2)}, v{va} offset:{lbase + 1024}")
        e(f"ds_read_b64_tr_b16 {vr(ta+4,2)}, v{va} offset:{lbase + 8192}")
        e(f"ds_read_b64_tr_b16 {vr(ta+6,2)}, v{va} offset:{lbase + 9216}")
    def mfma_tag_store(td, ta, tb, vs, sbase):
        e(f"v_mfma_f32_16x16x32_bf16 {vr(td)}, {vr(ta)}, {vr(tb)}, 0")
        e(f"v_mfma_f32_16x16x32_bf16 {vr(td)}, {vr(ta+4)}, {vr(tb+4)}, {vr(td)}")
        exec_set(0x00ff00ff, 0x00ff00ff)
        if cfg.rnd:
            for i in range(4): e(f"v_add_u32 v{td+i}, 0x80, v{td+i}")
        for i in range(4): e(f"v_and_or_b32 v{td+i}, v{td+i}, s{S_M8}, v{V_T8}")
        e(f"buffer_store_dwordx4 {vr(td)}, v{vs}, {srd(SRD_WS)}, s{sbase} offen sc1")
        exec_full()

    e("s_cmp_ge_u32 s2, 256")
    e("s_cbranch_scc1 L_end")
    stamp("start")
    e(f"s_load_dwordx16 s[{KA}:{KA+15}], s[0:1], 0")
    e(f"s_load_dwordx8 s[{KA+16}:{KA+23}], s[0:1], 64")
    P_X, P_K, P_V, P_WQ, P_WO, P_WG, P_WU, P_WD, P_OUT, P_WS = KA, KA+2, KA+4, KA+6, KA+8, KA+12, KA+14, KA+16, KA+18, KA+22
    e("v_lshrrev_b32 v12, 6, v0")
    e("v_and_b32 v0, 63, v0")
    e(f"v_readfirstlane_b32 s{S_W}, v12")
    e(f"s_and_b32 s{S_X8}, s2, 7")
    e(f"s_lshr_b32 s{S_JJ}, s2, 3")
    e(f"s_lshl_b32 s{S_CHUNK}, s{S_X8}, 5")
    e(f"s_add_u32 s{S_CHUNK}, s{S_CHUNK}, s{S_JJ}")
    e(f"v_lshlrev_b32 v{V_L16}, 4, v0")
    e("v_bfe_u32 v12, v0, 2, 2")
    e(f"v_lshlrev_b32 v{V_KOFF}, 8, v12")
    e("v_lshrrev_b32 v12, 4, v0")
    e(f"v_lshl_add_u32 v{V_KOFF}, v12, 6, v{V_KOFF}")
    e("v_and_b32 v12, 3, v0")
    e(f"v_lshl_add_u32 v{V_KOFF}, v12, 4, v{V_KOFF}")
    e(f"s_lshl_b32 s{S_T0}, s{S_W}, 13")
    e(f"v_add_u32 v{V_KOFF}, s{S_T0}, v{V_KOFF}")
    e(f"v_add_u32 v{V_VOFF}, s{S_T0}, v{V_L16}")
    tile_voff(13, 8192)
    tile_voff(14, 3584)
    e(f"s_and_b32 s{S_KP}, s{S_JJ}, 7")
    e(f"s_lshr_b32 s{S_T0}, s{S_JJ}, 3")
    e(f"s_lshl_b32 s{S_IDX}, s{S_T0}, 3")
    e(f"s_add_u32 s{S_IDX}, s{S_IDX}, s{S_X8}")
    e(f"s_and_b32 s{S_MAT}, s{S_IDX}, 1")
    e(f"s_lshr_b32 s{S_CT2}, s{S_IDX}, 1")
    e(f"s_lshl_b32 s{S_T1}, s{S_X8}, 2")
    e(f"s_add_u32 s{S_T0}, s{S_T0}, s{S_T1}")
    e(f"s_lshl_b32 s{S_T0}, s{S_T0}, 8")
    e(f"s_lshl_b32 s{S_T1}, s{S_KP}, 3")
    e(f"s_add_u32 s{S_T1}, s{S_T1}, s{S_W}")
    e(f"s_lshl_b32 s{S_T2}, s{S_T1}, 16")
    e(f"s_add_u32 s{S_T0}, s{S_T0}, s{S_T2}")
    e(f"s_mul_i32 s{S_T1}, s{S_T1}, {8*3584}")
    e(f"s_lshl_b32 s{S_T2}, s{S_CT2}, 8")
    e(f"s_add_u32 s{S_T1}, s{S_T1}, s{S_T2}")
    e(f"s_lshl_b32 s{S_T2}, s{S_W}, 10")
    e(f"s_lshl_b32 s{S_T3}, s{S_CHUNK}, 18")
    e("s_waitcnt lgkmcnt(0)")
    def mk_srd(dst, src, size, add=None):
        if add is None:
            e(f"s_mov_b32 s{dst}, s{src}")
            e(f"s_mov_b32 s{dst+1}, s{src+1}")
        else:
            e(f"s_add_u32 s{dst}, s{src}, s{add}")
            e(f"s_addc_u32 s{dst+1}, s{src+1}, 0")
        e(f"s_mov_b32 s{dst+2}, {size:#x}")
        e(f"s_mov_b32 s{dst+3}, 0x00020000")
    XR = 48
    mk_srd(SRD_X, P_X, 8192)
    e(f"buffer_load_dwordx4 {vr(XR)}, v{V_L16}, {srd(SRD_X)}, s{S_T2} offen")
    m_x = e.mark()
    if cfg.bar0: e("s_barrier")
    mk_srd(SRD_K, P_K, 0x40000, add=S_T3)
    pump(cfg.pre_a, pace=False)
    mk_srd(SRD_WQ, P_WQ, 512 * 4096 * 2)
    tile_dma(SRD_WQ, 13, S_T0, 4 * 8192, L_T1)
    m_t1 = e.mark()
    e(f"s_cmp_eq_u32 s{S_MAT}, 0")
    e(f"s_cselect_b32 s{SRD_WG}, s{P_WG}, s{P_WU}")
    e(f"s_cselect_b32 s{SRD_WG+1}, s{P_WG+1}, s{P_WU+1}")
    e(f"s_mov_b32 s{SRD_WG+2}, {512*1792*2:#x}")
    e(f"s_mov_b32 s{SRD_WG+3}, 0x00020000")
    with Optional():
        e(f"s_cmp_ge_u32 s{S_IDX}, 28")
        e("s_cbranch_scc1 L_no_gu_ld")
        tile_dma(SRD_WG, 14, S_T1, 4 * 3584, L_T2)
        e.label("L_no_gu_ld")
    m_t2 = e.mark()
    pump(cfg.pre_b, pace=False)
    mk_srd(SRD_V, P_V, 0x40000, add=S_T3)
    e(f"s_load_dword s{S_EPOCH}, s[{P_WS}:{P_WS+1}], {WS_EPOCH}")
    mk_srd(SRD_WS, P_WS, WS_SIZE)
    mk_srd(SRD_WD, P_WD, 1792 * 512 * 2)
    mk_srd(SRD_WO, P_WO, 4096 * 512 * 2)
    mk_srd(SRD_OUT, P_OUT, 8192)
    e(f"s_mov_b32 s{S_SELLO}, 0x05040100")
    e(f"s_mov_b32 s{S_SELHI}, 0x07060302")
    e(f"s_mov_b32 s{S_M8}, 0xffffff00")
    e(f"s_mov_b32 s{S_M16}, 0xffff0000")
    e("s_waitcnt lgkmcnt(0)")
    e(f"s_add_u32 s{S_TAG}, s{S_EPOCH}, 0x0101")
    e(f"s_and_b32 s{S_T0}, s{S_TAG}, 0xffff")
    e(f"v_mov_b32 v{V_T16}, s{S_T0}")
    e(f"s_and_b32 s{S_T0}, s{S_TAG}, 0xff")
    e(f"v_mov_b32 v{V_T8}, s{S_T0}")

    e.wait_vm(m_x)
    stamp("x_got")
    F = 52
    for i in range(4):
        e(f"v_lshlrev_b32 v{F+2*i}, 16, v{XR+i}")
        e(f"v_and_b32 v{F+2*i+1}, s{S_M16}, v{XR+i}")
    e(f"v_add_f32 v60, v{F}, v{F+1}")
    e(f"v_add_f32 v61, v{F+2}, v{F+3}")
    e(f"v_add_f32 v62, v{F+4}, v{F+5}")
    e(f"v_add_f32 v63, v{F+6}, v{F+7}")
    e("v_add_f32 v60, v60, v61")
    e("v_add_f32 v62, v62, v63")
    e("v_add_f32 v60, v60, v62")
    pump(cfg.ln_k[0], pace=False)
    wave_sum_to_sgpr(60, S_T0)
    e(f"v_mov_b32 v61, s{S_T0}")
    e(f"v_mul_f32 v61, {f2u(1.0/512):#x}, v61")
    for i in range(8): e(f"v_sub_f32 v{64+i}, v{F+i}, v61")
    e("v_mul_f32 v60, v64, v64")
    for i in range(1, 8): e(f"v_fmac_f32 v60, v{64+i}, v{64+i}")
    pump(cfg.ln_k[1], pace=False)
    wave_sum_to_sgpr(60, S_T1)
    e(f"v_mov_b32 v62, s{S_T1}")
    e(f"v_mul_f32 v62, {f2u(1.0/512):#x}, v62")
    rne_single(62, 62)
    e(f"v_add_f32 v62, {f2u(1e-5):#x}, v62")
    rne_single(62, 62)
    e("v_sqrt_f32 v62, v62")
    rne_single(62, 62)
    rne_single(61, 61)
    e("v_rcp_f32 v63, v62")
    e("v_fma_f32 v60, -v62, v63, 1.0")
    e("v_fma_f32 v63, v60, v63, v63")
    for i in range(8): e(f"v_sub_f32 v{64+i}, v{F+i}, v61")
    for i in range(4): e(f"v_cvt_pk_bf16_f32 v{72+i}, v{64+2*i}, v{64+2*i+1}")
    for i in range(4):
        e(f"v_lshlrev_b32 v{64+2*i}, 16, v{72+i}")
        e(f"v_and_b32 v{64+2*i+1}, s{S_M16}, v{72+i}")
    for i in range(8): e(f"v_mul_f32 v{F+i}, v{64+i}, v63")
    for i in range(8): e(f"v_fma_f32 v{64+i}, -v{F+i}, v62, v{64+i}")
    for i in range(8): e(f"v_fma_f32 v{F+i}, v{64+i}, v63, v{F+i}")
    for i in range(4): e(f"v_cvt_pk_bf16_f32 v{72+i}, v{F+2*i}, v{F+2*i+1}")
    e(f"s_mul_i32 s{S_T0}, s{S_W}, {XN_STRIDE}")
    e(f"v_add_u32 v60, s{S_T0}, v{V_L16}")
    e(f"ds_write_b128 v60, v[72:75] offset:{L_XN}")
    pump(cfg.ln_k[2], pace=False)
    e("v_and_b32 v14, 7, v0")
    e(f"v_mul_u32_u24 v14, {XN_STRIDE}, v14")
    e("v_lshrrev_b32 v12, 4, v0")
    e("v_lshl_add_u32 v14, v12, 4, v14")
    e(f"s_lshl_b32 s{S_T0}, s{S_KP}, 7")
    e(f"v_add_u32 v14, s{S_T0}, v14")
    a_addr(13)
    e("v_and_b32 v60, 15, v0")
    e("v_lshlrev_b32 v60, 17, v60")
    e("v_lshl_add_u32 v60, v12, 4, v60")
    e(f"s_lshl_b32 s{S_T0}, s{S_X8}, 3")
    e(f"s_add_u32 s{S_T0}, s{S_T0}, s{S_KP}")
    e(f"s_lshl_b32 s{S_T0}, s{S_T0}, 11")
    e(f"s_lshr_b32 s{S_T1}, s{S_JJ}, 3")
    e(f"s_lshl_b32 s{S_T1}, s{S_T1}, 9")
    e(f"s_add_u32 s{S_T0}, s{S_T0}, s{S_T1}")
    e(f"s_lshl_b32 s{S_T1}, s{S_W}, 6")
    e(f"s_add_u32 s{S_T0}, s{S_T0}, s{S_T1}")
    e(f"s_add_u32 s{S_T0}, s{S_T0}, {WS_Q:#x}")
    e("v_and_b32 v61, 15, v0")
    e("v_mul_u32_u24 v61, 7168, v61")
    e("v_lshl_add_u32 v61, v12, 4, v61")
    e(f"s_lshl_b32 s{S_T1}, s{S_MAT}, 3")
    e(f"s_add_u32 s{S_T1}, s{S_T1}, s{S_KP}")
    e(f"s_mul_i32 s{S_T1}, s{S_T1}, {8*7168}")
    e(f"s_lshl_b32 s{S_T2}, s{S_CT2}, 9")
    e(f"s_add_u32 s{S_T1}, s{S_T1}, s{S_T2}")
    e(f"s_lshl_b32 s{S_T2}, s{S_W}, 6")
    e(f"s_add_u32 s{S_T1}, s{S_T1}, s{S_T2}")
    e(f"s_add_u32 s{S_T1}, s{S_T1}, {WS_G:#x}")
    e.wait_vm(m_t2, " lgkmcnt(0)")
    e("s_barrier")
    stamp("B1")
    e(f"ds_read_b128 v[64:67], v14 offset:{L_XN}")
    e(f"ds_read_b128 v[68:71], v14 offset:{L_XN + 64}")
    a_frags(48, 13, L_T1)
    pump(cfg.qp_k, pace=False)
    e("s_waitcnt lgkmcnt(0)")
    with Optional():
        mfma_tag_store(72, 48, 64, 60, S_T0)
        e(f"s_cmp_ge_u32 s{S_IDX}, 28")
        e("s_cbranch_scc1 L_no_gu1")
        a_frags(48, 13, L_T2)
        e("s_waitcnt lgkmcnt(0)")
        mfma_tag_store(76, 48, 64, 61, S_T1)
        e.label("L_no_gu1")
    stamp("proj")

    T3LIM = 99 if 't' in cfg.abl else 18
    def wd_hook():
        with Optional():
            e(f"s_cmp_lt_u32 s{S_JJ}, {T3LIM}")
            e("s_cbranch_scc1 L_no_wd")
            e(f"s_sub_u32 s{S_T0}, s{S_JJ}, 18")
            e(f"s_lshl_b32 s{S_T0}, s{S_T0}, 3")
            e(f"s_add_u32 s{S_T0}, s{S_T0}, s{S_X8}")
            e(f"s_lshr_b32 s{S_FR}, s{S_T0}, 2")
            e(f"s_and_b32 s{S_T0}, s{S_T0}, 3")
            e(f"s_lshl_b32 s{S_T1}, s{S_FR}, 16")
            e(f"s_lshl_b32 s{S_T2}, s{S_T0}, 8")
            e(f"s_add_u32 s{S_T1}, s{S_T1}, s{S_T2}")
            e(f"s_lshl_b32 s{S_T2}, s{S_W}, 13")
            e(f"s_add_u32 s{S_T1}, s{S_T1}, s{S_T2}")
            tile_voff(12, 1024)
            tile_dma(SRD_WD, 12, S_T1, 4096, L_WD)
            e(f"s_lshl_b32 s{S_T3OFF}, s{S_T0}, 3")
            e(f"s_add_u32 s{S_T3OFF}, s{S_T3OFF}, s{S_W}")
            e(f"s_lshl_b32 s{S_T3OFF}, s{S_T3OFF}, 11")
            e(f"s_lshl_b32 s{S_T0}, s{S_FR}, 6")
            e(f"s_add_u32 s{S_T3OFF}, s{S_T3OFF}, s{S_T0}")
            e(f"s_add_u32 s{S_T3OFF}, s{S_T3OFF}, {WS_D:#x}")
            e(f"s_mul_i32 s{S_T1}, s{S_W}, 7168")
            e(f"s_lshl_b32 s{S_T2}, s{S_FR}, 8")
            e(f"s_add_u32 s{S_T1}, s{S_T1}, s{S_T2}")
            e(f"s_add_u32 s{S_HOFF}, s{S_T1}, {WS_H:#x}")
            e.label("L_no_wd")
    hooks[cfg.wd_at] = wd_hook
    assert pos[0] < cfg.wd_at
    pump(64, upto=32)

    QL = V_ACC
    def q_addr():
        e(f"s_lshl_b32 s{S_T0}, s{S_X8}, 3")
        e(f"s_lshr_b32 s{S_T1}, s{S_JJ}, 2")
        e(f"s_add_u32 s{S_T0}, s{S_T0}, s{S_T1}")
        e(f"s_lshl_b32 s{S_T0}, s{S_T0}, 3")
        e(f"s_add_u32 s{S_T0}, s{S_T0}, s{S_W}")
        e(f"s_lshl_b32 s{S_T0}, s{S_T0}, 11")
        e(f"s_add_u32 s{S_T0}, s{S_T0}, {WS_Q:#x}")
    def q_loads():
        e(f"buffer_load_dwordx4 {vr(QL)}, v14, {srd(SRD_WS)}, s{S_T0} offen sc1")
        e(f"buffer_load_dwordx4 {vr(QL+4)}, v14, {srd(SRD_WS)}, s{S_T0} offen offset:16 sc1")
    def q_vaddr():
        e("v_and_b32 v14, 3, v0")
        e("v_lshlrev_b32 v14, 9, v14")
        e("v_lshrrev_b32 v15, 2, v0")
        e("v_lshl_add_u32 v14, v15, 5, v14")
    _qa = q_addr
    def q_addr():
        _qa(); q_vaddr()
    q_addr()
    q_loads()
    m_q = e.mark()
    GR = V_S
    def g_addr():
        e("v_lshrrev_b32 v12, 4, v0")
        e(f"v_mul_u32_u24 v12, {8*7168}, v12")
        e("v_and_b32 v13, 15, v0")
        e("v_lshl_add_u32 v12, v13, 4, v12")
        e(f"s_mul_i32 s{S_T1}, s{S_W}, 7168")
        e(f"s_lshl_b32 s{S_T2}, s{S_RED}, 8")
        e(f"s_add_u32 s{S_T1}, s{S_T1}, s{S_T2}")
        e(f"s_add_u32 s{S_T1}, s{S_T1}, {WS_G:#x}")
    def g_loads():
        for i in range(4):
            e(f"s_add_u32 s{S_T2}, s{S_T1}, {((i >> 1) * 8 + 4 * (i & 1)) * 8 * 7168}")
            e(f"buffer_load_dwordx4 {vr(GR+4*i)}, v12, {srd(SRD_WS)}, s{S_T2} offen sc1")
    e(f"s_sub_u32 s{S_RED}, s{S_X8}, 4")
    e(f"s_lshl_b32 s{S_RED}, s{S_RED}, 3")
    e(f"s_add_u32 s{S_RED}, s{S_RED}, s{S_JJ}")
    e(f"s_sub_u32 s{S_RED}, s{S_RED}, 24")
    e(f"s_cmp_ge_u32 s{S_IDX}, 28")
    e(f"s_cselect_b32 s{S_RED}, s{S_RED}, 99")
    with Optional():
        e(f"s_cmp_ge_u32 s{S_RED}, 28")
        e("s_cbranch_scc1 L_no_gred_ld")
        g_addr()
        g_loads()
        e.label("L_no_gred_ld")
    m_g = e.mark()
    pump(8)
    e.wait_vm(m_q)
    gather_checked("q", q_loads, list(range(QL, QL + 8)), 56, V_T8, 0xff, pre=q_addr)
    e(f"v_add_u32 v13, {L_QS}, v{V_L16}")
    e(f"s_lshl_b32 s{S_T0}, s{S_W}, 11")
    e(f"v_add_u32 v12, s{S_T0}, v13")
    e(f"ds_write_b128 v12, {vr(QL)}")
    e(f"ds_write_b128 v12, {vr(QL+4)} offset:1024")
    e("s_waitcnt lgkmcnt(0)")
    if "q" not in cfg.abl: e("s_barrier")
    for w in range(4):
        e(f"ds_read_b128 {vr(48+8*w)}, v13 offset:{2048*w}")
        e(f"ds_read_b128 {vr(48+8*w+4)}, v13 offset:{2048*w + 1024}")
    e("s_waitcnt lgkmcnt(0)")
    for i in range(8):
        e(f"v_add_f32 v{48+i}, v{48+i}, v{56+i}")
        e(f"v_add_f32 v{64+i}, v{64+i}, v{72+i}")
    for w in range(4, 8):
        e(f"ds_read_b128 {vr(56 if w % 2 == 0 else 72)}, v13 offset:{2048*w}")
        e(f"ds_read_b128 {vr((56 if w % 2 == 0 else 72)+4)}, v13 offset:{2048*w + 1024}")
        if w % 2 == 1:
            e("s_waitcnt lgkmcnt(0)")
            for i in range(8):
                e(f"v_add_f32 v{48+i}, v{48+i}, v{56+i}")
                e(f"v_add_f32 v{64+i}, v{64+i}, v{72+i}")
    for i in range(8): e(f"v_add_f32 v{48+i}, v{48+i}, v{64+i}")
    for i in range(4): e(f"v_cvt_pk_bf16_f32 v{V_Q+i}, v{48+2*i}, v{48+2*i+1}")
    stamp("q_ok")

    with Optional():
        e(f"s_cmp_ge_u32 s{S_RED}, 28")
        e("s_cbranch_scc1 L_no_gred")
        e.wait_vm(m_g)
        def g_pre(): g_addr()
        gather_checked("g", g_loads, list(range(GR, GR + 16)), 48, V_T8, 0xff, pre=g_pre)
        G_, U_ = GR, GR + 8
        for i in range(4):
            e(f"v_add_f32 v{G_+i}, v{G_+i}, v{G_+4+i}")
            e(f"v_add_f32 v{U_+i}, v{U_+i}, v{U_+4+i}")
        for i in range(4): e(f"v_permlane32_swap_b32 v{G_+i}, v{U_+i}")
        for i in range(4): e(f"v_add_f32 v{G_+i}, v{G_+i}, v{U_+i}")
        e(f"v_permlane16_swap_b32 v{G_}, v{G_+1}")
        e(f"v_permlane16_swap_b32 v{G_+2}, v{G_+3}")
        e(f"v_add_f32 v{G_}, v{G_}, v{G_+1}")
        e(f"v_add_f32 v{G_+2}, v{G_+2}, v{G_+3}")
        e(f"v_mov_b32 v{U_}, v{G_}")
        e(f"v_mov_b32 v{U_+1}, v{G_+2}")
        e(f"v_permlane32_swap_b32 v{G_}, v{U_}")
        e(f"v_permlane32_swap_b32 v{G_+2}, v{U_+1}")
        e(f"v_cvt_pk_bf16_f32 v48, v{G_}, v{G_+2}")
        e(f"v_cvt_pk_bf16_f32 v49, v{U_}, v{U_+1}")
        e("v_lshlrev_b32 v50, 16, v48")
        e(f"v_and_b32 v51, s{S_M16}, v48")
        e(f"v_mul_f32 v50, {f2u(-LOG2E):#x}, v50")
        e(f"v_mul_f32 v51, {f2u(-LOG2E):#x}, v51")
        e("v_exp_f32 v50, v50")
        e("v_exp_f32 v51, v51")
        e("v_add_f32 v50, 1.0, v50")
        e("v_add_f32 v51, 1.0, v51")
        e("v_rcp_f32 v50, v50")
        e("v_rcp_f32 v51, v51")
        e("v_cvt_pk_bf16_f32 v48, v50, v51")
        e("v_lshlrev_b32 v50, 16, v48")
        e(f"v_and_b32 v51, s{S_M16}, v48")
        e("v_lshlrev_b32 v52, 16, v49")
        e(f"v_and_b32 v53, s{S_M16}, v49")
        e("v_mul_f32 v50, v50, v52")
        e("v_mul_f32 v51, v51, v53")
        e("v_cvt_pk_bf16_f32 v48, v50, v51")
        e(f"v_lshl_or_b32 v52, v48, 16, v{V_T16}")
        e(f"v_and_or_b32 v54, v48, s{S_M16}, v{V_T16}")
        e("v_mov_b32 v53, v52")
        e("v_mov_b32 v55, v54")
        e("v_mov_b32 v56, v52")
        e("v_mov_b32 v57, v54")
        e("v_permlane16_swap_b32 v56, v53")
        e("v_permlane16_swap_b32 v57, v55")
        e(f"s_mul_i32 s{S_T1}, s{S_W}, 7168")
        e(f"s_lshl_b32 s{S_T2}, s{S_RED}, 8")
        e(f"s_add_u32 s{S_T1}, s{S_T1}, s{S_T2}")
        e(f"s_add_u32 s{S_T1}, s{S_T1}, {WS_H:#x}")
        exec_set(0xffff, 0)
        e(f"buffer_store_dwordx4 v[52:55], v{V_L16}, {srd(SRD_WS)}, s{S_T1} offen sc1")
        exec_full()
        e("s_nop 1")
        e.label("L_no_gred")

    for t in range(4):
        for n in range(8):
            e(f"v_mfma_f32_16x16x32_bf16 {vr(V_ACC+4*n)}, {vr(SLOT(t)+4*n)}, {vr(V_Q)}, 0")
        pump(2, upto=48)
        for n in range(8):
            d = V_ACC + 4 * n
            e(f"v_add_f32_dpp v{V_S+8*t+n}, v{d+1}, v{d} row_shl:4 row_mask:0xf bank_mask:0xf bound_ctrl:0")
        for n in range(8):
            d = V_ACC + 4 * n
            e(f"v_add_f32_dpp v{V_S+8*t+n}, v{d+2}, v{V_S+8*t+n} row_shl:8 row_mask:0xf bank_mask:0xf bound_ctrl:0")
        for n in range(8):
            d = V_ACC + 4 * n
            e(f"v_add_f32_dpp v{V_S+8*t+n}, v{d+3}, v{V_S+8*t+n} row_shl:12 row_mask:0xf bank_mask:0xf bound_ctrl:0")
    stamp("S_done")
    pump(2, upto=56)
    if cfg.mimic:
        e(f"s_mov_b32 s{S_T0}, {f2u(SCALE):#x}")
        for rep in range(2):
            for m in range(16): e(f"v_cvt_pk_bf16_f32 v{V_ACC+m}, v{V_S+2*m}, v{V_S+2*m+1}")
            for m in range(16):
                e(f"v_lshlrev_b32 v{V_S+2*m}, 16, v{V_ACC+m}")
                e(f"v_and_b32 v{V_S+2*m+1}, s{S_M16}, v{V_ACC+m}")
            if rep == 0:
                for n in range(32): e(f"v_mul_f32 v{V_S+n}, s{S_T0}, v{V_S+n}")
            pump(1, upto=56)
        cexp = LOG2E
    else:
        cexp = LOG2E * SCALE
    e(f"v_max3_f32 v12, v{V_S}, v{V_S+1}, v{V_S+2}")
    for n in range(3, 31, 2): e(f"v_max3_f32 v12, v12, v{V_S+n}, v{V_S+n+1}")
    e(f"v_max_f32 v12, v12, v{V_S+31}")
    xrow_reduce("v_max_f32", [12], [13])
    e(f"s_lshl_b32 s{S_T0}, s{S_W}, 4")
    e("v_and_b32 v14, 3, v0")
    e("v_lshlrev_b32 v14, 2, v14")
    e(f"v_add_u32 v15, s{S_T0}, v14")
    exec_set(0xf, 0)
    e(f"ds_write_b32 v15, v12 offset:{L_MAX}")
    exec_full()
    e("s_waitcnt lgkmcnt(0)")
    if "4" not in cfg.abl: e("s_barrier")
    for w in range(8): e(f"ds_read_b32 v{V_ACC+w}, v14 offset:{L_MAX + 16*w}")
    pump(1, upto=56)
    e("s_waitcnt lgkmcnt(0)")
    e(f"v_max3_f32 v12, v{V_ACC}, v{V_ACC+1}, v{V_ACC+2}")
    e(f"v_max3_f32 v12, v12, v{V_ACC+3}, v{V_ACC+4}")
    e(f"v_max3_f32 v12, v12, v{V_ACC+5}, v{V_ACC+6}")
    e(f"v_max_f32 v12, v12, v{V_ACC+7}")
    e(f"s_mov_b32 s{S_T0}, {f2u(cexp):#x}")
    e(f"v_mul_f32 v12, s{S_T0}, v12")
    e(f"v_and_b32 v{V_MP}, s{S_M8}, v12")
    e(f"v_sub_f32 v{V_NEGM}, 0, v{V_MP}")
    for n in range(32): e(f"v_fma_f32 v{V_S+n}, v{V_S+n}, s{S_T0}, v{V_NEGM}")
    pump(1, upto=56)
    for n in range(32): e(f"v_exp_f32 v{V_S+n}, v{V_S+n}")
    pump(1, upto=56)
    e(f"v_add_f32 v12, v{V_S}, v{V_S+1}")
    e(f"v_add_f32 v13, v{V_S+2}, v{V_S+3}")
    for n in range(4, 32, 2):
        e(f"v_add_f32 v12, v12, v{V_S+n}")
        e(f"v_add_f32 v13, v13, v{V_S+n+1}")
    e("v_add_f32 v12, v12, v13")
    for m in range(16): e(f"v_cvt_pk_bf16_f32 v{V_S+m}, v{V_S+2*m}, v{V_S+2*m+1}")
    xrow_reduce("v_add_f32", [12], [13])
    exec_set(0xf, 0)
    e(f"ds_write_b32 v15, v12 offset:{L_LS}")
    exec_full()
    pump(8, upto=56)
    e("s_waitcnt lgkmcnt(0)")
    if "5" not in cfg.abl: e("s_barrier")
    stamp("softmax")
    with Optional():
        e(f"s_cmp_lg_u32 s{S_W}, 2")
        e("s_cbranch_scc1 L_no_ml")
        e("v_mov_b32 v12, 0")
        for w in range(8): e(f"ds_read_b128 {vr(V_ACC+4*w)}, v12 offset:{L_LS + 16*w}")
        e("s_waitcnt lgkmcnt(0)")
        for w in range(1, 8):
            for i in range(4): e(f"v_add_f32 v{V_ACC+i}, v{V_ACC+i}, v{V_ACC+4*w+i}")
        for h in range(4): e(f"v_readlane_b32 s{S_T0+h}, v{V_MP}, {h}")
        for h in range(4): e(f"v_or_b32 v{V_ACC+4+h}, s{S_T0+h}, v{V_T8}")
        for h in range(4): e(f"v_and_or_b32 v{V_ACC+h}, v{V_ACC+h}, s{S_M8}, v{V_T8}")
        e(f"s_lshl_b32 s{S_T0}, s{S_CHUNK}, 5")
        e(f"s_add_u32 s{S_T0}, s{S_T0}, {WS_ML:#x}")
        exec_set(1, 0)
        e(f"buffer_store_dwordx4 {vr(V_ACC+4)}, v12, {srd(SRD_WS)}, s{S_T0} offen sc1")
        e(f"buffer_store_dwordx4 {vr(V_ACC)}, v12, {srd(SRD_WS)}, s{S_T0} offen offset:16 sc1")
        exec_full()
        e("s_nop 1")
        e.label("L_no_ml")

    TA = V_X
    TB = V_X + 8
    TD = V_X + 16
    TG = V_X + 20
    WT = V_X + 28
    ML = V_Z
    def tile_addr(vb, vs, pstride):
        e(f"v_and_b32 v{vb}, 7, v0")
        e(f"v_mul_u32_u24 v{vb}, 144, v{vb}")
        e(f"v_lshrrev_b32 v{vs}, 4, v0")
        e(f"v_lshl_add_u32 v{vb}, v{vs}, 4, v{vb}")
        e(f"v_lshlrev_b32 v{vs}, 4, v{vs}")
        e(f"v_and_b32 v15, 15, v0")
        e(f"v_mul_u32_u24 v15, {32*pstride}, v15")
        e(f"v_add_u32 v{vs}, v{vs}, v15")
    def h_loads():
        e(f"buffer_load_dwordx4 {vr(TG)}, v{V_L16}, {srd(SRD_WS)}, s{S_HOFF} offen sc1")
    with Optional():
        e(f"s_cmp_lt_u32 s{S_JJ}, {T3LIM}")
        e("s_cbranch_scc1 L_no_h_ld")
        exec_set(0xffff, 0)
        h_loads()
        exec_full()
        e.label("L_no_h_ld")
    m_h = e.mark()

    BT = V_S + 16
    def pv_tile(t, sprinkle=0):
        vs = SLOT(vslot[t])
        P = V_S + 4 * t
        def perms(ee):
            b = BT + 4 * (ee % 4)
            sel = S_SELLO if ee % 2 == 0 else S_SELHI
            for m in range(4):
                e(f"v_perm_b32 v{b+m}, v{vs+4*(2*m+1)+(ee>>1)}, v{vs+4*(2*m)+(ee>>1)}, s{sel}")
        perms(0); perms(1)
        for ee in range(8):
            b = BT + 4 * (ee % 4)
            c = "0" if t == 0 else vr(V_ACC + 4 * ee)
            e(f"v_mfma_f32_16x16x32_bf16 {vr(V_ACC+4*ee)}, {vr(P)}, {vr(b)}, {c}")
            if sprinkle: pump(1)
            if ee + 2 < 8: perms(ee + 2)
    e.wait_vm(mV[0]); pv_tile(0, sprinkle=1)
    assert pos[0] == 64
    tile_voff(12, 131072)
    e(f"s_lshl_b32 s{S_T0}, s{S_X8}, 19")
    e(f"s_lshr_b32 s{S_T1}, s{S_JJ}, 2")
    e(f"s_lshl_b32 s{S_T1}, s{S_T1}, 14")
    e(f"s_add_u32 s{S_T0}, s{S_T0}, s{S_T1}")
    e(f"s_and_b32 s{S_T1}, s{S_JJ}, 3")
    e(f"s_lshl_b32 s{S_T1}, s{S_T1}, 8")
    e(f"s_add_u32 s{S_T0}, s{S_T0}, s{S_T1}")
    e(f"s_lshl_b32 s{S_T1}, s{S_W}, 11")
    e(f"s_add_u32 s{S_T0}, s{S_T0}, s{S_T1}")
    tile_dma(SRD_WO, 12, S_T0, 1024, L_WO)
    m_wo = e.mark()
    def ml_addr():
        e("v_lshrrev_b32 v12, 4, v0")
        e(f"s_lshl_b32 s{S_T0}, s{S_W}, 5")
        e(f"s_lshl_b32 s{S_T1}, s{S_X8}, 2")
        e(f"s_add_u32 s{S_T0}, s{S_T0}, s{S_T1}")
        e(f"v_add_u32 v12, s{S_T0}, v12")
        e("v_lshlrev_b32 v13, 5, v12")
        e(f"s_mov_b32 s{S_T3}, {WS_ML:#x}")
    def ml_loads():
        e(f"buffer_load_dwordx4 {vr(ML)}, v13, {srd(SRD_WS)}, s{S_T3} offen sc1")
        e(f"buffer_load_dwordx4 {vr(ML+4)}, v13, {srd(SRD_WS)}, s{S_T3} offen offset:16 sc1")
    ml_addr()
    ml_loads()
    m_ml = e.mark()
    stamp("PV0")

    with Optional():
        e(f"s_cmp_lt_u32 s{S_JJ}, {T3LIM}")
        e("s_cbranch_scc1 L_no_t3")
        e.wait_vm(m_h)
        exec_set(0xffff, 0)
        gather_checked("h", h_loads, list(range(TG, TG + 4)), TG + 4, V_T16, 0xffff)
        e(f"v_perm_b32 v{TG+4}, v{TG+1}, v{TG}, s{S_SELHI}")
        e(f"v_perm_b32 v{TG+5}, v{TG+3}, v{TG+2}, s{S_SELHI}")
        e(f"s_mul_i32 s{S_T0}, s{S_W}, 144")
        e("v_lshlrev_b32 v12, 3, v0")
        e(f"v_add_u32 v12, s{S_T0}, v12")
        e(f"ds_write_b64 v12, {vr(TG+4,2)} offset:{L_ACT2}")
        exec_full()
        a_addr(12)
        tile_addr(13, 14, 2048)
        e("s_waitcnt lgkmcnt(0)")
        e("s_barrier")
        a_frags(TA, 12, L_WD)
        e(f"ds_read_b128 {vr(TB)}, v13 offset:{L_ACT2}")
        e(f"ds_read_b128 {vr(TB+4)}, v13 offset:{L_ACT2 + 64}")
        e("s_waitcnt lgkmcnt(0)")
        mfma_tag_store(TD, TA, TB, 14, S_T3OFF)
        e.label("L_no_t3")
    stamp("T3")
    e.wait_vm(mV[1]); pv_tile(1)
    e.wait_vm(mV[2]); pv_tile(2)
    A_OC, A_OG, A_ACT, A_TB, A_TS, A_TA = 232, 233, 234, 235, 236, 237
    e(f"s_lshl_b32 s{S_T0}, s{S_W}, 11")
    e(f"v_add_u32 v{A_OC}, s{S_T0}, v{V_L16}")
    e("v_lshrrev_b32 v12, 4, v0")
    e(f"s_lshl_b32 s{S_T0}, s{S_W}, 5")
    e(f"s_lshl_b32 s{S_T1}, s{S_X8}, 2")
    e(f"s_add_u32 s{S_T0}, s{S_T0}, s{S_T1}")
    e(f"v_add_u32 v12, s{S_T0}, v12")
    e("v_lshlrev_b32 v12, 11, v12")
    e("v_and_b32 v13, 15, v0")
    e(f"v_lshl_add_u32 v{A_OG}, v13, 4, v12")
    S_OG, S_YOFF = 59, 60
    e(f"s_lshr_b32 s{S_OG}, s{S_JJ}, 2")
    e(f"s_lshl_b32 s{S_OG}, s{S_OG}, 8")
    e(f"s_add_u32 s{S_OG}, s{S_OG}, {WS_O:#x}")
    e(f"s_mul_i32 s{S_T0}, s{S_W}, 144")
    e("v_lshlrev_b32 v13, 3, v13")
    e("v_lshrrev_b32 v12, 4, v0")
    e("v_lshl_add_u32 v13, v12, 1, v13")
    e(f"v_add_u32 v{A_ACT}, s{S_T0}, v13")
    tile_addr(A_TB, A_TS, 4096)
    a_addr(A_TA)
    e(f"s_and_b32 s{S_YOFF}, s{S_JJ}, 3")
    e(f"s_lshl_b32 s{S_YOFF}, s{S_YOFF}, 3")
    e(f"s_add_u32 s{S_YOFF}, s{S_YOFF}, s{S_W}")
    e(f"s_lshl_b32 s{S_YOFF}, s{S_YOFF}, 12")
    e(f"s_lshl_b32 s{S_T0}, s{S_X8}, 3")
    e(f"s_lshr_b32 s{S_T1}, s{S_JJ}, 2")
    e(f"s_add_u32 s{S_T0}, s{S_T0}, s{S_T1}")
    e(f"s_lshl_b32 s{S_T0}, s{S_T0}, 6")
    e(f"s_add_u32 s{S_YOFF}, s{S_YOFF}, s{S_T0}")
    e(f"s_add_u32 s{S_YOFF}, s{S_YOFF}, {WS_Y:#x}")
    e("v_lshrrev_b32 v13, 4, v0")
    e(f"s_lshl_b32 s{S_T0}, s{S_W}, 2")
    e(f"v_add_u32 v13, s{S_T0}, v13")
    e("v_and_b32 v14, 15, v0")
    e("v_lshlrev_b32 v238, 8, v13")
    e("v_lshl_add_u32 v238, v14, 4, v238")
    e("v_lshl_add_u32 v13, v14, 3, v13")
    e("v_lshlrev_b32 v239, 4, v13")
    e(f"s_lshl_b32 s{S_HOFF}, s{S_CHUNK}, 11")
    e(f"s_add_u32 s{S_HOFF}, s{S_HOFF}, {WS_O:#x}")
    e.wait_vm(mV[3]); pv_tile(3)
    stamp("PV3")

    exec_set(0xffff, 0)
    for ee in range(8): e(f"ds_write_b128 v{A_OC}, {vr(V_ACC+4*ee)} offset:{L_OC + 256*ee}")
    exec_full()
    e.wait_vm(m_ml, " lgkmcnt(0)")
    e("s_barrier")
    OG = V_S + 12
    TM = V_S + 16
    with Optional():
        e(f"s_cmp_gt_u32 s{S_W}, 1")
        e("s_cbranch_scc1 L_no_opub")
        for w in range(8): e(f"ds_read_b128 {vr(V_ACC+4*w)}, v238 offset:{L_OC + 2048*w}")
        e("s_waitcnt lgkmcnt(0)")
        for i in range(4):
            e(f"v_add_f32 v{V_ACC+i}, v{V_ACC+i}, v{V_ACC+4+i}")
            e(f"v_add_f32 v{V_ACC+8+i}, v{V_ACC+8+i}, v{V_ACC+12+i}")
            e(f"v_add_f32 v{V_ACC+16+i}, v{V_ACC+16+i}, v{V_ACC+20+i}")
            e(f"v_add_f32 v{V_ACC+24+i}, v{V_ACC+24+i}, v{V_ACC+28+i}")
        for i in range(4):
            e(f"v_add_f32 v{V_ACC+i}, v{V_ACC+i}, v{V_ACC+8+i}")
            e(f"v_add_f32 v{V_ACC+16+i}, v{V_ACC+16+i}, v{V_ACC+24+i}")
        for i in range(4): e(f"v_add_f32 v{V_ACC+i}, v{V_ACC+i}, v{V_ACC+16+i}")
        if cfg.rnd:
            for i in range(4): e(f"v_add_u32 v{V_ACC+i}, 0x80, v{V_ACC+i}")
        for i in range(4): e(f"v_and_or_b32 v{V_ACC+i}, v{V_ACC+i}, s{S_M8}, v{V_T8}")
        e(f"buffer_store_dwordx4 {vr(V_ACC)}, v239, {srd(SRD_WS)}, s{S_HOFF} offen sc1")
        e.label("L_no_opub")
    stamp("O_pub")

    def o_loads():
        e(f"buffer_load_dwordx4 {vr(OG)}, v{A_OG}, {srd(SRD_WS)}, s{S_OG} offen sc1")
    o_loads()
    a_frags(TA, A_TA, L_WO)
    gather_checked("ml", ml_loads, list(range(ML, ML + 8)), TM, V_T8, 0xff, pre=ml_addr)
    for h in range(4): e(f"v_mov_b32 v{TM+h}, v{ML+h}")
    xrow_reduce("v_max_f32", [TM + h for h in range(4)], [TM + 4 + h for h in range(4)])
    for h in range(4): e(f"v_sub_f32 v{WT+h}, v{ML+h}, v{TM+h}")
    for h in range(4): e(f"v_exp_f32 v{WT+h}, v{WT+h}")
    for h in range(4): e(f"v_mul_f32 v{TM+h}, v{WT+h}, v{ML+4+h}")
    xrow_reduce("v_add_f32", [TM + h for h in range(4)], [TM + 4 + h for h in range(4)])
    for h in range(4): e(f"v_rcp_f32 v{TM+4+h}, v{TM+h}")
    for h in range(4): e(f"v_fma_f32 v{TM+8+h}, -v{TM+h}, v{TM+4+h}, 1.0")
    for h in range(4): e(f"v_fma_f32 v{TM+4+h}, v{TM+8+h}, v{TM+4+h}, v{TM+4+h}")
    for h in range(4): e(f"v_mul_f32 v{WT+h}, v{WT+h}, v{TM+4+h}")
    e("s_waitcnt vmcnt(0)")
    gather_checked("o", o_loads, list(range(OG, OG + 4)), TM, V_T8, 0xff)
    stamp("O_got")
    for h in range(4): e(f"v_mul_f32 v{OG+h}, v{OG+h}, v{WT+h}")
    e(f"v_permlane32_swap_b32 v{OG}, v{OG+2}")
    e(f"v_permlane32_swap_b32 v{OG+1}, v{OG+3}")
    e(f"v_add_f32 v{OG}, v{OG}, v{OG+2}")
    e(f"v_add_f32 v{OG+1}, v{OG+1}, v{OG+3}")
    e(f"v_permlane16_swap_b32 v{OG}, v{OG+1}")
    e(f"v_add_f32 v{OG}, v{OG}, v{OG+1}")
    e(f"v_cvt_pk_bf16_f32 v{OG}, v{OG}, v{OG}")
    e(f"ds_write_b16 v{A_ACT}, v{OG} offset:{L_ACT}")
    e("s_waitcnt lgkmcnt(0)")
    e("s_barrier")
    e(f"ds_read_b128 {vr(TB)}, v{A_TB} offset:{L_ACT}")
    e(f"ds_read_b128 {vr(TB+4)}, v{A_TB} offset:{L_ACT + 64}")
    e("s_waitcnt lgkmcnt(0)")
    with Optional():
        mfma_tag_store(TD, TA, TB, A_TS, S_YOFF)
    stamp("y_pub")

    e(f"s_cmp_lg_u32 s{S_W}, 0")
    e("s_cbranch_scc1 L_end")
    Y = 16
    DD = 32
    e(f"s_lshl_b32 s{S_T0}, s{S_CHUNK}, 12")
    e(f"s_add_u32 s{S_T0}, s{S_T0}, {WS_Y:#x}")
    e(f"s_lshl_b32 s{S_T1}, s{S_CHUNK}, 11")
    e(f"s_add_u32 s{S_T1}, s{S_T1}, {WS_D:#x}")
    def fin_loads():
        for i in range(4): e(f"v_mov_b32 v{DD+4+i}, v{V_T8}")
        for i in range(4):
            e(f"buffer_load_dwordx4 {vr(Y+4*i)}, v{V_L16}, {srd(SRD_WS)}, s{S_T0} offen offset:{1024*i} sc1")
        e(f"buffer_load_dwordx4 {vr(DD)}, v{V_L16}, {srd(SRD_WS)}, s{S_T1} offen sc1")
        exec_set(0xffffffff, 0xffff)
        e(f"buffer_load_dwordx4 {vr(DD+4)}, v{V_L16}, {srd(SRD_WS)}, s{S_T1} offen offset:1024 sc1")
        exec_full()
    with Optional():
        fin_loads()
    e("v_and_b32 v13, 3, v0")
    e("v_bfe_u32 v14, v0, 4, 1")
    e("v_lshl_add_u32 v14, v13, 2, v14")
    e("v_lshlrev_b32 v14, 1, v14")
    e(f"s_lshl_b32 s{S_T2}, s{S_CHUNK}, 5")
    with Optional():
        e(f"buffer_load_ushort v40, v14, {srd(SRD_X)}, s{S_T2} offen")
        e(f"buffer_load_ushort v41, v14, {srd(SRD_X)}, s{S_T2} offen offset:4")
    e("s_waitcnt vmcnt(0)")
    gather_checked("fin", fin_loads, list(range(Y, Y + 24)), 44, V_T8, 0xff)
    stamp("fin_got")
    for i in range(4):
        e(f"v_add_f32 v{Y+i}, v{Y+i}, v{Y+4+i}")
        e(f"v_add_f32 v{Y+8+i}, v{Y+8+i}, v{Y+12+i}")
        e(f"v_add_f32 v{DD+i}, v{DD+i}, v{DD+4+i}")
    for i in range(4): e(f"v_add_f32 v{Y+i}, v{Y+i}, v{Y+8+i}")
    for i in range(4): e(f"v_permlane32_swap_b32 v{Y+i}, v{DD+i}")
    for i in range(4): e(f"v_add_f32 v{Y+i}, v{Y+i}, v{DD+i}")
    e(f"v_permlane16_swap_b32 v{Y}, v{Y+1}")
    e(f"v_permlane16_swap_b32 v{Y+2}, v{Y+3}")
    e(f"v_add_f32 v{Y}, v{Y}, v{Y+1}")
    e(f"v_add_f32 v{Y+2}, v{Y+2}, v{Y+3}")
    for ror in (4, 8):
        e(f"v_add_f32_dpp v{Y}, v{Y}, v{Y} row_ror:{ror} row_mask:0xf bank_mask:0xf")
        e(f"v_add_f32_dpp v{Y+2}, v{Y+2}, v{Y+2} row_ror:{ror} row_mask:0xf bank_mask:0xf")
    e(f"v_mov_b32 v{DD}, v{Y}")
    e(f"v_mov_b32 v{DD+1}, v{Y+2}")
    e(f"v_permlane32_swap_b32 v{Y}, v{DD}")
    e(f"v_permlane32_swap_b32 v{Y+2}, v{DD+1}")
    e(f"v_cvt_pk_bf16_f32 v44, v{Y}, v{Y+2}")
    e(f"v_cvt_pk_bf16_f32 v45, v{DD}, v{DD+1}")
    e(f"v_lshlrev_b32 v46, 16, v45")
    e(f"v_and_b32 v47, s{S_M16}, v45")
    e(f"v_mul_f32 v48, {f2u(-LOG2E):#x}, v46")
    e(f"v_mul_f32 v49, {f2u(-LOG2E):#x}, v47")
    e("v_exp_f32 v48, v48")
    e("v_exp_f32 v49, v49")
    e("v_add_f32 v48, 1.0, v48")
    e("v_add_f32 v49, 1.0, v49")
    e("v_rcp_f32 v48, v48")
    e("v_rcp_f32 v49, v49")
    e("v_lshlrev_b32 v50, 16, v44")
    e(f"v_and_b32 v51, s{S_M16}, v44")
    e("v_mul_f32 v48, v46, v48")
    e("v_mul_f32 v49, v47, v49")
    e("v_cvt_pk_bf16_f32 v48, v48, v49")
    e("v_lshlrev_b32 v46, 16, v48")
    e(f"v_and_b32 v47, s{S_M16}, v48")
    e("v_mul_f32 v46, v50, v46")
    e("v_mul_f32 v47, v51, v47")
    e("v_cvt_pk_bf16_f32 v48, v46, v47")
    e("v_lshlrev_b32 v46, 16, v48")
    e(f"v_and_b32 v47, s{S_M16}, v48")
    e("v_lshlrev_b32 v40, 16, v40")
    e("v_lshlrev_b32 v41, 16, v41")
    e("v_add_f32 v46, v46, v40")
    e("v_add_f32 v47, v47, v41")
    e("v_cvt_pk_bf16_f32 v48, v46, v47")
    exec_set(0x000f000f, 0)
    e(f"buffer_store_short v48, v14, {srd(SRD_OUT)}, s{S_T2} offen")
    e(f"buffer_store_short_d16_hi v48, v14, {srd(SRD_OUT)}, s{S_T2} offen offset:4")
    e("s_cmp_lg_u32 s2, 0")
    e("s_cbranch_scc1 L_no_epoch")
    exec_set(1, 0)
    e(f"v_mov_b32 v50, s{S_TAG}")
    e("v_mov_b32 v51, 0")
    e(f"buffer_store_dword v50, v51, {srd(SRD_WS)}, 0 offen offset:{WS_EPOCH}")
    e.label("L_no_epoch")
    exec_full()
    e.label("L_end")
    if cfg.stamps:
        e("s_cmp_ge_u32 s2, 256")
        e("s_cbranch_scc1 L_end2")
        e("s_memrealtime s[100:101]")
        e("s_waitcnt lgkmcnt(0)")
        if cfg.dbgspan:
            e("s_load_dwordx2 s[4:5], s[0:1], 80")
            e("s_waitcnt lgkmcnt(0)")
            e("s_mov_b32 s6, 256")
            e("s_mov_b32 s7, 0x00020000")
            exec_set(1, 0)
            e("v_mov_b32 v51, 0")
            e(f"s_not_b32 s55, s{stamp_reg(0)}")
            e("v_mov_b32 v48, s55")
            e("buffer_atomic_umax v48, v51, s[4:7], 0 offen")
            sel = cfg.dbgspan
            for k, nm in enumerate(sel):
                i = names.index(nm) if nm != "end" else 15
                r = stamp_reg(i) if i < 15 else 100
                if nm in ("fin_got",):
                    e(f"s_cmp_lg_u32 s{S_W}, 0"); e(f"s_cbranch_scc1 L_dbg_skip{k}")
                e(f"v_mov_b32 v48, s{r}")
                e(f"buffer_atomic_umax v48, v51, s[4:7], 0 offen offset:{4*(k+1)}")
                if nm in ("fin_got",): e.label(f"L_dbg_skip{k}")
            e("s_waitcnt vmcnt(0)")
            e("s_branch L_end2")
        e("s_lshl_b32 s55, s2, 3")
        e(f"s_add_u32 s55, s55, s{S_W}")
        e("s_lshl_b32 s55, s55, 7")
        e(f"s_add_u32 s55, s55, {WS_ST:#x}")
        exec_set(1, 0)
        e("v_mov_b32 v51, 0")
        for i in list(range(len(names))) + [15]:
            r = stamp_reg(i) if i < 15 else 100
            e(f"v_mov_b32 v48, s{r}")
            e(f"v_mov_b32 v49, s{r+1}")
            e(f"buffer_store_dwordx2 v[48:49], v51, {srd(SRD_WS)}, s55 offen offset:{8*i}")
            e("s_nop 1")
        e.label("L_end2")
    gen.names = names + ["end"]
    e("s_endpgm")

    hdr = open("cdna_kernels/" + NAME + ".s.ref").read().split("\n")
    head = [l for l in hdr if l.startswith(";") and "@launch" not in l and "Override" not in l and "grid=ceil" not in l]
    out = "\n".join(head) + "\n"
    out += f"; @launch grid=(256,1,1) block=(512,1,1) lds={L_END}\n"
    out += '.amdgcn_target "amdgcn-amd-amdhsa--gfx950"\n.text\n'
    out += f".globl {KNAME}\n.p2align 8\n.type {KNAME},@function\n{KNAME}:\n"
    out += e.text()
    out += f""".section .rodata,"a"
.p2align 6
.amdhsa_kernel {KNAME}
  .amdhsa_next_free_vgpr {NVGPR}
  .amdhsa_next_free_sgpr 102
  .amdhsa_accum_offset {NVGPR}
  .amdhsa_group_segment_fixed_size 0
  .amdhsa_kernarg_size 96
  .amdhsa_user_sgpr_count 2
  .amdhsa_user_sgpr_kernarg_segment_ptr 1
  .amdhsa_system_sgpr_workgroup_id_x 1
  .amdhsa_float_denorm_mode_32 3
.end_amdhsa_kernel
"""
    return out

if __name__ == "__main__":
    kw = eval("dict(%s)" % (sys.argv[2] if len(sys.argv) > 2 else ""))
    txt = gen(Cfg(**kw))
    path = sys.argv[1] if len(sys.argv) > 1 else "cdna_kernels/" + NAME + ".s"
    open(path, "w").write(txt)
    print("wrote", path, len(txt), "bytes; LDS", L_END)
```

```python
import re

TRANS = ("v_exp_f32", "v_log_f32", "v_rcp_f32", "v_rsq_f32", "v_sqrt_f32", "v_sin_f32", "v_cos_f32")

def parse_reg(tok):
    tok = tok.strip()
    neg = False
    if tok.startswith("-"): tok = tok[1:]
    if tok.startswith("abs(") and tok.endswith(")"): tok = tok[4:-1]
    if tok.startswith("|") and tok.endswith("|"): tok = tok[1:-1]
    m = re.fullmatch(r"([vsa])(\d+)", tok)
    if m: return {m.group(1) + m.group(2)}
    m = re.fullmatch(r"([vsa])\[(\d+):(\d+)\]", tok)
    if m: return {m.group(1) + str(i) for i in range(int(m.group(2)), int(m.group(3)) + 1)}
    if tok in ("vcc", "vcc_lo", "vcc_hi"): return {"vcc"}
    if tok in ("exec", "exec_lo", "exec_hi"): return {"exec"}
    if tok == "m0": return {"m0"}
    return set()

class Ins:
    def __init__(self, text):
        self.text = text
        t = text.split(";")[0].strip()
        self.label = t.endswith(":")
        self.mn = t.split()[0] if t else ""
        rest = t[len(self.mn):].strip()
        ops = []
        depth = 0; cur = ""
        for ch in rest:
            if ch == "[": depth += 1
            if ch == "]": depth -= 1
            if ch == "," and depth == 0:
                ops.append(cur.strip()); cur = ""
            else: cur += ch
        if cur.strip(): ops.append(cur.strip())
        mods = []
        if ops:
            parts = ops[-1].split()
            ops[-1] = parts[0] if parts else ""
            mods = parts[1:]
        self.ops = ops; self.mods = mods
        mn = self.mn
        self.is_valu = mn.startswith("v_") and not mn.startswith("v_mfma")
        self.is_mfma = mn.startswith("v_mfma")
        self.is_salu = mn.startswith("s_")
        self.is_ds = mn.startswith("ds_")
        self.is_vmem = mn.startswith("buffer_") or mn.startswith("global_")
        self.is_dpp = "_dpp" in mn or any(m.startswith(("row_", "quad_perm")) for m in mods)
        self.is_trans = any(mn.startswith(x) for x in TRANS)
        self.is_perm = mn.startswith("v_permlane")
        self.is_lane = mn.startswith(("v_readlane", "v_readfirstlane", "v_writelane"))
        self.lds_dma = self.is_vmem and ("lds" in mods or "_lds_" in mn)
        W = set(); R = set()
        regs = [parse_reg(o) for o in ops]
        if self.label or not mn or mn.startswith("."):
            pass
        elif self.is_perm:
            W = regs[0] | regs[1]; R = regs[0] | regs[1]
        elif mn.startswith("v_cmp"):
            W = regs[0]
            for r in regs[1:]: R |= r
        elif self.is_mfma or self.is_valu:
            W = set(regs[0])
            for r in regs[1:]: R |= r
            if mn.startswith(("v_fmac", "v_mac", "v_writelane", "v_dot2c")) or self.is_dpp: R |= regs[0]
            if mn.startswith("v_cndmask") and len(ops) == 3: R.add("vcc")
            if mn.startswith(("v_add_co", "v_sub_co", "v_addc_co", "v_subb_co")): W |= regs[1]
        elif self.is_ds:
            if mn.startswith(("ds_read", "ds_bpermute", "ds_permute", "ds_swizzle")):
                W = regs[0]
                for r in regs[1:]: R |= r
            else:
                for r in regs: R |= r
        elif self.is_vmem:
            if mn.startswith("buffer_wbl2") or mn.startswith("buffer_inv"):
                pass
            elif "_load" in mn and not self.lds_dma:
                W = regs[0]
                for r in regs[1:]: R |= r
            elif "atomic" in mn and "sc0" in mods:
                W = regs[0]
                for r in regs: R |= r
            else:
                for r in regs: R |= r
            if self.lds_dma: R.add("m0")
        elif self.is_salu:
            if mn.startswith(("s_cmp", "s_waitcnt", "s_barrier", "s_nop", "s_branch", "s_cbranch", "s_endpgm", "s_sleep", "s_setprio", "s_bitcmp")):
                for r in regs: R |= r
            elif mn.startswith(("s_setpc",)):
                for r in regs: R |= r
            else:
                if regs: W = regs[0]
                for r in regs[1:]: R |= r
                if "saveexec" in mn: W = W | {"exec"}; R |= {"exec"}
        self.W = W; self.R = R
        self.srcC = regs[3] if self.is_mfma and len(regs) > 3 else set()
        self.states = 1
        if mn == "s_nop": self.states = int(ops[0], 0) + 1
        if self.label or not mn or mn.startswith("."): self.states = 0
        self.store_wide = self.is_vmem and "store" in mn and re.search(r"x[34]", mn) is not None

def isv(r): return r[0] in "va" and r not in ("vcc",)
def iss(r): return (r[0] == "s") or r == "vcc"

def mfma_passes(mn):
    if "32x32x16" in mn or "32x32x8" in mn: return 8
    if "16x16x32" in mn or "16x16x16" in mn: return 4
    if "16x16x4_f32" in mn: return 8
    if "32x32x2_f32" in mn: return 16
    raise ValueError(mn)

def need(p, c):
    n = 0
    if p.is_valu:
        wv = {r for r in p.W if isv(r)}
        ws = {r for r in p.W if iss(r)}
        if wv:
            cv = wv & c.R
            if cv:
                if c.is_lane: n = max(n, 1)
                if c.is_dpp: n = max(n, 2)
                if c.is_perm: n = max(n, 2)
                if c.is_mfma: n = max(n, 2)
                if p.is_trans and (c.is_valu or c.is_mfma): n = max(n, 1)
        if ws:
            cs = ws & c.R
            if cs:
                if c.is_valu: n = max(n, 4 if c.is_lane else 2)
                if c.is_vmem: n = max(n, 5)
                if c.is_salu: n = max(n, 1)
                if c.is_mfma: n = max(n, 2)
    if p.is_mfma:
        ps = mfma_passes(p.mn)
        xdl = "_f32_16x16x4_f32" not in p.mn and "32x32x2_f32" not in p.mn
        tab_valu = {2: 5, 4: 8, 8: 12, 16: 20}[ps] if xdl else {2: 4, 4: 6, 8: 10, 16: 18}[ps]
        tab_c = {2: 4, 4: 6, 8: 10, 16: 18}[ps]
        if c.is_mfma:
            ab = c.R - c.srcC
            ab = parse_reg(c.ops[1]) | parse_reg(c.ops[2])
            if p.W & ab: n = max(n, tab_valu)
            if p.W & c.srcC:
                if p.W == c.srcC and mfma_passes(c.mn) == ps: n = max(n, 2 if ps == 2 else 0)
                else: n = max(n, tab_c)
            elif p.W & c.W:
                n = max(n, tab_c)
        else:
            if (p.W & c.R) or (p.W & c.W): n = max(n, tab_valu)
        if c.is_valu and (p.srcC & c.W):
            n = max(n, {2: 1, 4: 3, 8: 7, 16: 15}[ps])
    if p.is_salu and "m0" in p.W and c.lds_dma: n = max(n, 1)
    if p.store_wide:
        data = parse_reg(p.ops[0]) if p.mn.startswith("buffer") else parse_reg(p.ops[1])
        if data & c.W: n = max(n, 2)
    if p.is_salu and "exec" in p.W and c.is_dpp: n = max(n, 1)
    return n

class Emit:
    def __init__(self):
        self.ins = []
        self.vm = 0
        self.plist = []
        self.check = True
    def raw(self, text):
        self.ins.append(Ins(text))
    def __call__(self, text):
        for l in text.split("\n"):
            l = l.strip()
            if not l or l.startswith(";"):
                if l: self.ins.append(Ins(l))
                continue
            i = Ins(l)
            reqd = 0; dist = 0
            for p in reversed(self.ins):
                if dist >= 20: break
                if p.states == 0: continue
                nd = need(p, i) - dist
                if nd > reqd: reqd = nd
                dist += p.states
            while reqd > 0:
                k = min(reqd, 16)
                self.ins.append(Ins(f"s_nop {k-1}"))
                reqd -= k
            self.ins.append(i)
            if i.is_vmem and not i.mn.startswith(("buffer_wbl2", "buffer_inv")):
                self.vm += 1
                self.plist.append(1 if ("nt" in i.mods) else 0)
    def label(self, name):
        self.ins.append(Ins(name + ":"))
    def mark(self):
        return self.vm
    def wait_vm(self, mark, extra=""):
        n = self.vm - mark
        assert n >= 0
        if n > 63: n = 63
        self(f"s_waitcnt vmcnt({n}){extra}")
    def pace(self, W):
        n = 0; heavy = 0
        for w in reversed(self.plist):
            if heavy + w > W: break
            heavy += w; n += 1
        self(f"s_waitcnt vmcnt({min(n, 63)})")
    def text(self):
        out = []
        for i in self.ins:
            if i.label or i.mn.startswith("."): out.append(i.text)
            else: out.append("    " + i.text)
        return "\n".join(out) + "\n"
```

```python
import sys, struct
sys.path.insert(0, "dev")
from emit import Emit

NAME = "recurrent_scan__gqa_block_cached__glu_gated_glu__decode"
KNAME = NAME + "_kernel"

WS_EPOCH = 0
WS_H   = 0x40000
WS_ML  = 0x50000
WS_O   = 0x60000
WS_Y   = 0x100000
WS_D   = 0x200000
WS_ST  = 0x300000
WS_Q   = 0x400000
WS_G   = 0x500000
WS_SIZE = 0x600000

XN_STRIDE = 1040
ACT_STRIDE = 272
L_XN  = 0
L_T1  = 8448
L_T2  = L_T1 + 16384
L_WD  = L_T2 + 16384
L_MAX = L_WD + 16384
L_LS  = L_MAX + 128
L_ACT = L_LS + 128
L_ACT2 = L_ACT + 2176
L_QS  = L_ACT2 + 2176
L_END = L_QS + 8192
L_WO  = L_T1
L_OC  = L_T2
assert L_WD + 3 * 4096 + 512 < 65536 and L_QS < 65536 and L_QS % 16 == 0 and L_ACT % 16 == 0

V_KOFF, V_VOFF, V_L16, V_T16, V_T8, V_NEGM, V_MP = 1, 2, 3, 4, 5, 6, 7
V_Q = 8
V_S = 16
V_ACC = 48
def SLOT(i): return 80 + 32 * i
V_Z = 240
NVGPR = 248

S_W, S_X8, S_JJ, S_CHUNK, S_TAG = 3, 44, 45, 46, 47
SRD_K, SRD_V, SRD_WS, SRD_X, SRD_WQ, SRD_WG, SRD_WD, SRD_WO, SRD_OUT = 4, 8, 12, 16, 20, 24, 32, 36, 40
S_IDX, S_MAT, S_CT2, S_KP = 28, 29, 30, 31
S_OFFA, S_RED, S_SELLO, S_SELHI, S_M8, S_M16, S_CNT = 48, 49, 50, 51, 52, 53, 54
S_T0, S_T1, S_T2, S_T3 = 55, 56, 57, 58
S_T3OFF, S_FR, S_HOFF = 59, 60, 61
S_EPOCH = 62
S_T4 = 63
KA = 64
def stamp_reg(i): return 88 + 2 * i if i < 6 else 64 + 2 * (i - 6)

def srd(i): return f"s[{i}:{i+3}]"
def vr(a, n=4): return f"v[{a}:{a+n-1}]"
LOG2E = 1.4426950408889634
SCALE = 128 ** -0.5
def f2u(x): return struct.unpack("<I", struct.pack("<f", x))[0]

class Cfg:
    mimic = True
    window = 5
    stamps = False
    spin = 200000
    pre_b = 1
    ln_k = (1, 1, 1)
    wd_at = 10
    g_at = 12
    gred_at = 19
    t3lo = 10
    abl = ''
    dbgspan = False
    rnd = True
    def __init__(self, **kw):
        for k, v in kw.items(): setattr(self, k, v)

def gen(cfg=None):
    cfg = cfg or Cfg()
    e = Emit()
    W = cfg.window
    names = []
    def stamp(name):
        if cfg.stamps:
            i = len(names); names.append(name)
            assert i < 15
            e(f"s_memrealtime s[{stamp_reg(i)}:{stamp_reg(i)+1}]")
    def exec_set(lo, hi):
        e(f"s_mov_b32 exec_lo, {lo:#x}")
        e(f"s_mov_b32 exec_hi, {hi:#x}")
    def exec_full(): e("s_mov_b64 exec, -1")
    class Optional:
        def __enter__(self): self.vm = e.vm
        def __exit__(self, *a): e.vm = self.vm

    def wave_sum_to_sgpr(v, s):
        for sh in (1, 2, 4, 8):
            e(f"v_add_f32_dpp v{v}, v{v}, v{v} row_shr:{sh} row_mask:0xf bank_mask:0xf bound_ctrl:0")
        e(f"v_add_f32_dpp v{v}, v{v}, v{v} row_bcast:15 row_mask:0xa bank_mask:0xf")
        e(f"v_add_f32_dpp v{v}, v{v}, v{v} row_bcast:31 row_mask:0xc bank_mask:0xf")
        e(f"v_readlane_b32 s{s}, v{v}, 63")
    def xrow_reduce(op, regs, tmps):
        for sw in ("v_permlane16_swap_b32", "v_permlane32_swap_b32"):
            for r, t in zip(regs, tmps): e(f"v_mov_b32 v{t}, v{r}")
            for r, t in zip(regs, tmps): e(f"{sw} v{r}, v{t}")
            for r, t in zip(regs, tmps): e(f"{op} v{r}, v{r}, v{t}")
    def rne_single(dst, src):
        e(f"v_cvt_pk_bf16_f32 v{dst}, v{src}, v{src}")
        e(f"v_lshlrev_b32 v{dst}, 16, v{dst}")
    def poll_tail(label_retry, label_ok):
        e(f"s_cbranch_vccz {label_ok}")
        e(f"s_sub_u32 s{S_CNT}, s{S_CNT}, 1")
        e(f"s_cmp_lg_u32 s{S_CNT}, 0")
        e(f"s_cbranch_scc1 {label_retry}")
    def chk(regs, tmp, tagv, mask):
        n = len(regs)
        for r in regs: e(f"v_xor_b32 v{r}, v{r}, v{tagv}")
        accs = [tmp, tmp + 1] if n >= 8 else [tmp]
        parts = [regs[i::len(accs)] for i in range(len(accs))]
        steps = []
        for a, pr in zip(accs, parts):
            st = []
            if len(pr) >= 3: st.append(f"v_or3_b32 v{a}, v{pr[0]}, v{pr[1]}, v{pr[2]}"); i = 3
            else: st.append(f"v_or_b32 v{a}, v{pr[0]}, v{pr[1]}"); i = 2
            while i < len(pr):
                if i + 1 < len(pr): st.append(f"v_or3_b32 v{a}, v{a}, v{pr[i]}, v{pr[i+1]}"); i += 2
                else: st.append(f"v_or_b32 v{a}, v{a}, v{pr[i]}"); i += 1
            steps.append(st)
        for i in range(max(len(x) for x in steps)):
            for st in steps:
                if i < len(st): e(st[i])
        if len(accs) == 2: e(f"v_or_b32 v{tmp}, v{tmp}, v{tmp+1}")
        e(f"v_and_b32 v{tmp}, {mask:#x}, v{tmp}")
        e(f"v_cmp_ne_u32 vcc, 0, v{tmp}")
    def gather_checked(name, loads, regs, tmp, tagv, mask, pre=None):
        if 'c' in cfg.abl: return
        chk(regs, tmp, tagv, mask)
        e(f"s_cbranch_vccz L_{name}_ok")
        npl = len(e.plist)
        with Optional():
            if pre: pre()
            e(f"s_mov_b32 s{S_CNT}, {cfg.spin}")
            e.label(f"L_{name}_retry")
            loads()
            e("s_waitcnt vmcnt(0)")
            chk(regs, tmp, tagv, mask)
            poll_tail(f"L_{name}_retry", f"L_{name}_ok")
        del e.plist[npl:]
        e.label(f"L_{name}_ok")

    offstate = [None]
    def kv_load(which, t, n, slot, pace):
        so = t * 65536 + (n >> 2) * 4096
        if offstate[0] != so:
            e(f"s_mov_b32 s{S_OFFA}, {so:#x}"); offstate[0] = so
        r = SLOT(slot) + 4 * n
        voff, s = (V_KOFF, SRD_K) if which == "k" else (V_VOFF, SRD_V)
        e(f"buffer_load_dwordx4 {vr(r)}, v{voff}, {srd(s)}, s{S_OFFA} offen offset:{(n & 3) * 1024} nt")
        if pace: e.pace(W)
    vslot = [4, 0, 1, 2]
    seq = [("k", t, n) for t in range(4) for n in range(8)] + [("v", t, n) for t in range(4) for n in range(8)]
    pos = [0]
    mK = [None] * 4; mV = [None] * 4
    hooks = {}
    def pump(cnt, pace=True, upto=64):
        for _ in range(cnt):
            if pos[0] >= upto: return
            which, t, n = seq[pos[0]]; pos[0] += 1
            kv_load(which, t, n, t if which == "k" else vslot[t], pace)
            if n == 7: (mK if which == "k" else mV)[t] = e.mark()
            for h in hooks.get(pos[0], []): h()

    def tile_dma(srdn, voff, soff, step, lbase):
        if 'k' in cfg.abl: return
        e(f"s_lshl_b32 s{S_T4}, s{S_W}, 11")
        e(f"s_add_u32 m0, s{S_T4}, {lbase}")
        e(f"buffer_load_dwordx4 v{voff}, {srd(srdn)}, s{soff} offen nt lds")
        e(f"s_add_u32 s{soff}, s{soff}, {step}")
        e(f"s_add_u32 m0, s{S_T4}, {lbase + 1024}")
        e(f"buffer_load_dwordx4 v{voff}, {srd(srdn)}, s{soff} offen nt lds")
    def tile_voff(dst, rowstride):
        e(f"v_lshrrev_b32 v{dst}, 3, v0")
        e(f"v_mul_u32_u24 v{dst}, {rowstride}, v{dst}")
        e(f"v_and_b32 v15, 7, v0")
        e(f"v_lshl_add_u32 v{dst}, v15, 4, v{dst}")
    def a_addr(dst):
        e(f"v_lshrrev_b32 v{dst}, 4, v0")
        e("v_bfe_u32 v15, v0, 2, 2")
        e(f"v_lshl_add_u32 v{dst}, v{dst}, 3, v15")
        e(f"v_lshlrev_b32 v{dst}, 7, v{dst}")
        e("v_and_b32 v15, 3, v0")
        e(f"v_lshl_add_u32 v{dst}, v15, 3, v{dst}")
        e(f"s_and_b32 s{S_T4}, s{S_W}, 3")
        e(f"s_lshl_b32 s{S_T4}, s{S_T4}, 5")
        e(f"v_add_u32 v{dst}, s{S_T4}, v{dst}")
    def a_frags(ta, va, lbase):
        for t in range(4):
            e(f"ds_read_b64_tr_b16 {vr(ta+4*t,2)}, v{va} offset:{lbase + 4096*t}")
            e(f"ds_read_b64_tr_b16 {vr(ta+4*t+2,2)}, v{va} offset:{lbase + 4096*t + 512}")
    def b_frags(tb, vb, lbase):
        for t in range(4): e(f"ds_read_b128 {vr(tb+4*t)}, v{vb} offset:{lbase + 64*t}")
    def mfma_tag_store(td, ta, tb, vs, sbase, store=True):
        e(f"v_mfma_f32_16x16x32_bf16 {vr(td)}, {vr(ta)}, {vr(tb)}, 0")
        for t in range(1, 4):
            e(f"v_mfma_f32_16x16x32_bf16 {vr(td)}, {vr(ta+4*t)}, {vr(tb+4*t)}, {vr(td)}")
        exec_set(0x00ff00ff, 0x00ff00ff)
        if cfg.rnd:
            for i in range(4): e(f"v_add_u32 v{td+i}, 0x80, v{td+i}")
        for i in range(4): e(f"v_and_or_b32 v{td+i}, v{td+i}, s{S_M8}, v{V_T8}")
        if store: e(f"buffer_store_dwordx4 {vr(td)}, v{vs}, {srd(SRD_WS)}, s{sbase} offen sc1")
        exec_full()

    e("s_cmp_ge_u32 s2, 256")
    e("s_cbranch_scc1 L_end")
    stamp("start")
    e(f"s_load_dwordx16 s[{KA}:{KA+15}], s[0:1], 0")
    e(f"s_load_dwordx8 s[{KA+16}:{KA+23}], s[0:1], 64")
    P_X, P_K, P_V, P_WQ, P_WO, P_WG, P_WU, P_WD, P_OUT, P_WS = KA, KA+2, KA+4, KA+6, KA+8, KA+12, KA+14, KA+16, KA+18, KA+22
    e("v_lshrrev_b32 v12, 6, v0")
    e("v_and_b32 v0, 63, v0")
    e(f"v_readfirstlane_b32 s{S_W}, v12")
    e(f"s_and_b32 s{S_X8}, s2, 7")
    e(f"s_lshr_b32 s{S_JJ}, s2, 3")
    e(f"s_lshl_b32 s{S_CHUNK}, s{S_X8}, 5")
    e(f"s_add_u32 s{S_CHUNK}, s{S_CHUNK}, s{S_JJ}")
    e(f"v_lshlrev_b32 v{V_L16}, 4, v0")
    e("v_bfe_u32 v12, v0, 2, 2")
    e(f"v_lshlrev_b32 v{V_KOFF}, 8, v12")
    e("v_lshrrev_b32 v12, 4, v0")
    e(f"v_lshl_add_u32 v{V_KOFF}, v12, 6, v{V_KOFF}")
    e("v_and_b32 v12, 3, v0")
    e(f"v_lshl_add_u32 v{V_KOFF}, v12, 4, v{V_KOFF}")
    e(f"s_lshl_b32 s{S_T0}, s{S_W}, 13")
    e(f"v_add_u32 v{V_KOFF}, s{S_T0}, v{V_KOFF}")
    e(f"v_add_u32 v{V_VOFF}, s{S_T0}, v{V_L16}")
    tile_voff(13, 8192)
    tile_voff(14, 3584)
    e(f"s_and_b32 s{S_KP}, s{S_JJ}, 3")
    e(f"s_lshr_b32 s{S_T0}, s{S_JJ}, 2")
    e(f"s_lshl_b32 s{S_IDX}, s{S_T0}, 3")
    e(f"s_add_u32 s{S_IDX}, s{S_IDX}, s{S_X8}")
    e(f"s_and_b32 s{S_MAT}, s{S_IDX}, 1")
    e(f"s_lshr_b32 s{S_CT2}, s{S_IDX}, 1")
    e(f"s_lshl_b32 s{S_T1}, s{S_X8}, 3")
    e(f"s_add_u32 s{S_T0}, s{S_T0}, s{S_T1}")
    e(f"s_lshl_b32 s{S_T0}, s{S_T0}, 7")
    e(f"s_lshl_b32 s{S_T1}, s{S_KP}, 3")
    e(f"s_add_u32 s{S_T1}, s{S_T1}, s{S_W}")
    e(f"s_lshl_b32 s{S_T2}, s{S_T1}, 17")
    e(f"s_add_u32 s{S_T0}, s{S_T0}, s{S_T2}")
    e(f"s_mul_i32 s{S_T1}, s{S_T1}, {16*3584}")
    e(f"s_lshl_b32 s{S_T2}, s{S_CT2}, 7")
    e(f"s_add_u32 s{S_T1}, s{S_T1}, s{S_T2}")
    e(f"s_lshl_b32 s{S_T2}, s{S_W}, 10")
    e(f"s_lshl_b32 s{S_T3}, s{S_CHUNK}, 18")
    e("s_waitcnt lgkmcnt(0)")
    def mk_srd(dst, src, size, add=None):
        if add is None:
            e(f"s_mov_b32 s{dst}, s{src}")
            e(f"s_mov_b32 s{dst+1}, s{src+1}")
        else:
            e(f"s_add_u32 s{dst}, s{src}, s{add}")
            e(f"s_addc_u32 s{dst+1}, s{src+1}, 0")
        e(f"s_mov_b32 s{dst+2}, {size:#x}")
        e(f"s_mov_b32 s{dst+3}, 0x00020000")
    XR = 48
    mk_srd(SRD_X, P_X, 8192)
    e(f"buffer_load_dwordx4 {vr(XR)}, v{V_L16}, {srd(SRD_X)}, s{S_T2} offen")
    m_x = e.mark()
    e("s_barrier")
    mk_srd(SRD_WQ, P_WQ, 512 * 4096 * 2)
    tile_dma(SRD_WQ, 13, S_T0, 8 * 8192, L_T1)
    e(f"s_cmp_eq_u32 s{S_MAT}, 0")
    e(f"s_cselect_b32 s{SRD_WG}, s{P_WG}, s{P_WU}")
    e(f"s_cselect_b32 s{SRD_WG+1}, s{P_WG+1}, s{P_WU+1}")
    e(f"s_mov_b32 s{SRD_WG+2}, {512*1792*2:#x}")
    e(f"s_mov_b32 s{SRD_WG+3}, 0x00020000")
    m_t1 = e.mark()
    with Optional():
        e(f"s_cmp_ge_u32 s{S_IDX}, 56")
        e("s_cbranch_scc1 L_no_gu_ld")
        tile_dma(SRD_WG, 14, S_T1, 8 * 3584, L_T2)
        e.label("L_no_gu_ld")
    m_t2 = e.mark()
    mk_srd(SRD_K, P_K, 0x40000, add=S_T3)
    pump(cfg.pre_b, pace=False)
    mk_srd(SRD_V, P_V, 0x40000, add=S_T3)
    e(f"s_load_dword s{S_EPOCH}, s[{P_WS}:{P_WS+1}], {WS_EPOCH}")
    mk_srd(SRD_WS, P_WS, WS_SIZE)
    mk_srd(SRD_WD, P_WD, 1792 * 512 * 2)
    mk_srd(SRD_WO, P_WO, 4096 * 512 * 2)
    mk_srd(SRD_OUT, P_OUT, 8192)
    e(f"s_mov_b32 s{S_SELLO}, 0x05040100")
    e(f"s_mov_b32 s{S_SELHI}, 0x07060302")
    e(f"s_mov_b32 s{S_M8}, 0xffffff00")
    e(f"s_mov_b32 s{S_M16}, 0xffff0000")
    e("s_waitcnt lgkmcnt(0)")
    e(f"s_add_u32 s{S_TAG}, s{S_EPOCH}, 0x0101")
    e(f"s_and_b32 s{S_T0}, s{S_TAG}, 0xffff")
    e(f"v_mov_b32 v{V_T16}, s{S_T0}")
    e(f"s_and_b32 s{S_T0}, s{S_TAG}, 0xff")
    e(f"v_mov_b32 v{V_T8}, s{S_T0}")

    e.wait_vm(m_x)
    stamp("x_got")
    F = 52
    for i in range(4):
        e(f"v_lshlrev_b32 v{F+2*i}, 16, v{XR+i}")
        e(f"v_and_b32 v{F+2*i+1}, s{S_M16}, v{XR+i}")
    e(f"v_add_f32 v60, v{F}, v{F+1}")
    e(f"v_add_f32 v61, v{F+2}, v{F+3}")
    e(f"v_add_f32 v62, v{F+4}, v{F+5}")
    e(f"v_add_f32 v63, v{F+6}, v{F+7}")
    e("v_add_f32 v60, v60, v61")
    e("v_add_f32 v62, v62, v63")
    e("v_add_f32 v60, v60, v62")
    pump(cfg.ln_k[0], pace=False)
    wave_sum_to_sgpr(60, S_T0)
    e(f"v_mov_b32 v61, s{S_T0}")
    e(f"v_mul_f32 v61, {f2u(1.0/512):#x}, v61")
    for i in range(8): e(f"v_sub_f32 v{64+i}, v{F+i}, v61")
    e("v_mul_f32 v60, v64, v64")
    for i in range(1, 8): e(f"v_fmac_f32 v60, v{64+i}, v{64+i}")
    pump(cfg.ln_k[1], pace=False)
    wave_sum_to_sgpr(60, S_T1)
    e(f"v_mov_b32 v62, s{S_T1}")
    e(f"v_mul_f32 v62, {f2u(1.0/512):#x}, v62")
    rne_single(62, 62)
    e(f"v_add_f32 v62, {f2u(1e-5):#x}, v62")
    rne_single(62, 62)
    e("v_sqrt_f32 v62, v62")
    rne_single(62, 62)
    rne_single(61, 61)
    e("v_rcp_f32 v63, v62")
    e("v_fma_f32 v60, -v62, v63, 1.0")
    e("v_fma_f32 v63, v60, v63, v63")
    for i in range(8): e(f"v_sub_f32 v{64+i}, v{F+i}, v61")
    for i in range(4): e(f"v_cvt_pk_bf16_f32 v{72+i}, v{64+2*i}, v{64+2*i+1}")
    for i in range(4):
        e(f"v_lshlrev_b32 v{64+2*i}, 16, v{72+i}")
        e(f"v_and_b32 v{64+2*i+1}, s{S_M16}, v{72+i}")
    for i in range(8): e(f"v_mul_f32 v{F+i}, v{64+i}, v63")
    for i in range(8): e(f"v_fma_f32 v{64+i}, -v{F+i}, v62, v{64+i}")
    for i in range(8): e(f"v_fma_f32 v{F+i}, v{64+i}, v63, v{F+i}")
    for i in range(4): e(f"v_cvt_pk_bf16_f32 v{72+i}, v{F+2*i}, v{F+2*i+1}")
    e(f"s_mul_i32 s{S_T0}, s{S_W}, {XN_STRIDE}")
    e(f"v_add_u32 v60, s{S_T0}, v{V_L16}")
    e(f"ds_write_b128 v60, v[72:75] offset:{L_XN}")
    pump(cfg.ln_k[2], pace=False)
    e("v_and_b32 v14, 7, v0")
    e(f"v_mul_u32_u24 v14, {XN_STRIDE}, v14")
    e("v_lshrrev_b32 v12, 4, v0")
    e("v_lshl_add_u32 v14, v12, 4, v14")
    e(f"s_lshl_b32 s{S_T0}, s{S_KP}, 8")
    e(f"v_add_u32 v14, s{S_T0}, v14")
    a_addr(13)
    e(f"s_lshl_b32 s{S_T0}, s{S_X8}, 2")
    e(f"s_add_u32 s{S_T0}, s{S_T0}, s{S_KP}")
    e(f"s_lshl_b32 s{S_T0}, s{S_T0}, 11")
    e(f"s_lshr_b32 s{S_T1}, s{S_JJ}, 2")
    e(f"s_lshl_b32 s{S_T1}, s{S_T1}, 8")
    e(f"s_add_u32 s{S_T0}, s{S_T0}, s{S_T1}")
    e(f"s_add_u32 s{S_T0}, s{S_T0}, {WS_Q:#x}")
    e(f"s_lshl_b32 s{S_T1}, s{S_MAT}, 2")
    e(f"s_add_u32 s{S_T1}, s{S_T1}, s{S_KP}")
    e(f"s_mul_i32 s{S_T1}, s{S_T1}, {8*7168}")
    e(f"s_lshl_b32 s{S_T2}, s{S_CT2}, 8")
    e(f"s_add_u32 s{S_T1}, s{S_T1}, s{S_T2}")
    e(f"s_add_u32 s{S_T1}, s{S_T1}, {WS_G:#x}")
    e(f"s_cmp_lt_u32 s{S_W}, 4")
    e(f"s_cselect_b32 s{S_T0}, s{S_T0}, s{S_T1}")
    e(f"s_movk_i32 s{S_T4}, 7168")
    e(f"s_cselect_b32 s{S_T2}, {8*4*2048}, s{S_T4}")
    e(f"s_cselect_b32 s{S_T3}, 0, 16384")
    e(f"s_and_b32 s{S_T1}, s{S_W}, 3")
    e(f"s_lshl_b32 s{S_T1}, s{S_T1}, 6")
    e(f"s_add_u32 s{S_T0}, s{S_T0}, s{S_T1}")
    e("v_and_b32 v20, 15, v0")
    e(f"v_mul_lo_u32 v20, v20, s{S_T2}")
    e("v_lshl_add_u32 v20, v12, 4, v20")
    e(f"v_add_u32 v13, s{S_T3}, v13")
    e.wait_vm(m_t2, " lgkmcnt(0)")
    e("s_barrier")
    stamp("B1")
    with Optional():
        e(f"s_cmp_ge_u32 s{S_IDX}, 56")
        e(f"s_cselect_b32 s{S_T1}, 4, 8")
        e(f"s_cmp_ge_u32 s{S_W}, s{S_T1}")
        e("s_cbranch_scc1 L_no_proj")
        b_frags(64, 14, L_XN)
        a_frags(48, 13, L_T1)
        e("s_waitcnt lgkmcnt(0)")
        mfma_tag_store(16, 48, 64, 20, S_T0, store='s' not in cfg.abl)
        e.label("L_no_proj")
    stamp("proj")

    def t3_skip(label):
        if 't' in cfg.abl:
            e(f"s_branch {label}")
        else:
            e(f"s_sub_u32 s{S_T4}, s{S_JJ}, {cfg.t3lo}")
            e(f"s_cmp_ge_u32 s{S_T4}, 14")
            e(f"s_cbranch_scc1 {label}")
    def wd_hook():
        with Optional():
            t3_skip("L_no_wd")
            e(f"s_sub_u32 s{S_FR}, s{S_JJ}, {cfg.t3lo}")
            e(f"s_lshl_b32 s{S_T1}, s{S_FR}, 17")
            e(f"s_lshl_b32 s{S_T2}, s{S_X8}, 7")
            e(f"s_add_u32 s{S_T1}, s{S_T1}, s{S_T2}")
            e(f"s_lshl_b32 s{S_T2}, s{S_W}, 14")
            e(f"s_add_u32 s{S_T1}, s{S_T1}, s{S_T2}")
            tile_voff(12, 1024)
            tile_dma(SRD_WD, 12, S_T1, 8192, L_WD)
            e(f"s_lshl_b32 s{S_T3OFF}, s{S_X8}, 2")
            e(f"s_and_b32 s{S_T0}, s{S_W}, 3")
            e(f"s_add_u32 s{S_T3OFF}, s{S_T3OFF}, s{S_T0}")
            e(f"s_lshl_b32 s{S_T3OFF}, s{S_T3OFF}, 10")
            e(f"s_lshl_b32 s{S_T0}, s{S_FR}, 6")
            e(f"s_add_u32 s{S_T3OFF}, s{S_T3OFF}, s{S_T0}")
            e(f"s_add_u32 s{S_T3OFF}, s{S_T3OFF}, {WS_D:#x}")
            e(f"s_mul_i32 s{S_T1}, s{S_W}, 7168")
            e(f"s_lshl_b32 s{S_T2}, s{S_FR}, 9")
            e(f"s_add_u32 s{S_T1}, s{S_T1}, s{S_T2}")
            e(f"s_add_u32 s{S_HOFF}, s{S_T1}, {WS_H:#x}")
            e.label("L_no_wd")
    GR = V_S
    e(f"s_sub_u32 s{S_RED}, s{S_JJ}, 28")
    e(f"s_lshl_b32 s{S_RED}, s{S_RED}, 3")
    e(f"s_add_u32 s{S_RED}, s{S_RED}, s{S_X8}")
    e(f"s_cmp_ge_u32 s{S_JJ}, 28")
    e(f"s_cselect_b32 s{S_RED}, s{S_RED}, 99")
    def g_addr():
        e("v_lshrrev_b32 v12, 4, v0")
        e(f"v_mul_u32_u24 v12, {8*7168}, v12")
        e("v_and_b32 v13, 15, v0")
        e("v_lshl_add_u32 v12, v13, 4, v12")
        e(f"s_mul_i32 s{S_T1}, s{S_W}, 7168")
        e(f"s_lshl_b32 s{S_T2}, s{S_RED}, 8")
        e(f"s_add_u32 s{S_T1}, s{S_T1}, s{S_T2}")
        e(f"s_add_u32 s{S_T1}, s{S_T1}, {WS_G:#x}")
    def g_loads():
        e(f"buffer_load_dwordx4 {vr(GR)}, v12, {srd(SRD_WS)}, s{S_T1} offen sc1")
        e(f"s_add_u32 s{S_T2}, s{S_T1}, {4 * 8 * 7168}")
        e(f"buffer_load_dwordx4 {vr(GR+4)}, v12, {srd(SRD_WS)}, s{S_T2} offen sc1")
    m_g = [None]
    def g_hook():
        with Optional():
            e(f"s_cmp_ge_u32 s{S_RED}, 28")
            e("s_cbranch_scc1 L_no_gred_ld")
            g_addr()
            g_loads()
            e.label("L_no_gred_ld")
        m_g[0] = e.mark()
    def gred_hook():
        with Optional():
            e(f"s_cmp_ge_u32 s{S_RED}, 28")
            e("s_cbranch_scc1 L_no_gred")
            e.wait_vm(m_g[0])
            gather_checked("g", g_loads, list(range(GR, GR + 8)), 48, V_T8, 0xff, pre=g_addr)
            G_, U_ = GR, GR + 4
            for i in range(4): e(f"v_permlane32_swap_b32 v{G_+i}, v{U_+i}")
            for i in range(4): e(f"v_add_f32 v{G_+i}, v{G_+i}, v{U_+i}")
            e(f"v_permlane16_swap_b32 v{G_}, v{G_+1}")
            e(f"v_permlane16_swap_b32 v{G_+2}, v{G_+3}")
            e(f"v_add_f32 v{G_}, v{G_}, v{G_+1}")
            e(f"v_add_f32 v{G_+2}, v{G_+2}, v{G_+3}")
            e(f"v_mov_b32 v{U_}, v{G_}")
            e(f"v_mov_b32 v{U_+1}, v{G_+2}")
            e(f"v_permlane32_swap_b32 v{G_}, v{U_}")
            e(f"v_permlane32_swap_b32 v{G_+2}, v{U_+1}")
            e(f"v_cvt_pk_bf16_f32 v48, v{G_}, v{G_+2}")
            e(f"v_cvt_pk_bf16_f32 v49, v{U_}, v{U_+1}")
            e("v_lshlrev_b32 v50, 16, v48")
            e(f"v_and_b32 v51, s{S_M16}, v48")
            e(f"v_mul_f32 v50, {f2u(-LOG2E):#x}, v50")
            e(f"v_mul_f32 v51, {f2u(-LOG2E):#x}, v51")
            e("v_exp_f32 v50, v50")
            e("v_exp_f32 v51, v51")
            e("v_add_f32 v50, 1.0, v50")
            e("v_add_f32 v51, 1.0, v51")
            e("v_rcp_f32 v50, v50")
            e("v_rcp_f32 v51, v51")
            e("v_cvt_pk_bf16_f32 v48, v50, v51")
            e("v_lshlrev_b32 v50, 16, v48")
            e(f"v_and_b32 v51, s{S_M16}, v48")
            e("v_lshlrev_b32 v52, 16, v49")
            e(f"v_and_b32 v53, s{S_M16}, v49")
            e("v_mul_f32 v50, v50, v52")
            e("v_mul_f32 v51, v51, v53")
            e("v_cvt_pk_bf16_f32 v48, v50, v51")
            e(f"v_lshl_or_b32 v52, v48, 16, v{V_T16}")
            e(f"v_and_or_b32 v54, v48, s{S_M16}, v{V_T16}")
            e("v_mov_b32 v53, v52")
            e("v_mov_b32 v55, v54")
            e("v_mov_b32 v56, v52")
            e("v_mov_b32 v57, v54")
            e("v_permlane16_swap_b32 v56, v53")
            e("v_permlane16_swap_b32 v57, v55")
            e(f"s_mul_i32 s{S_T1}, s{S_W}, 7168")
            e(f"s_lshl_b32 s{S_T2}, s{S_RED}, 8")
            e(f"s_add_u32 s{S_T1}, s{S_T1}, s{S_T2}")
            e(f"s_add_u32 s{S_T1}, s{S_T1}, {WS_H:#x}")
            exec_set(0xffff, 0)
            e(f"buffer_store_dwordx4 v[52:55], v{V_L16}, {srd(SRD_WS)}, s{S_T1} offen sc1")
            exec_full()
            e("s_nop 1")
            e.label("L_no_gred")
    hooks.setdefault(cfg.wd_at, []).append(wd_hook)
    hooks.setdefault(cfg.g_at, []).append(g_hook)
    hooks.setdefault(cfg.gred_at, []).append(gred_hook)
    assert pos[0] < min(cfg.wd_at, cfg.g_at)
    pump(64, upto=32)

    QL = V_ACC
    TG = V_S + 24
    def q_addr():
        e(f"s_lshl_b32 s{S_T0}, s{S_X8}, 3")
        e(f"s_lshr_b32 s{S_T1}, s{S_JJ}, 2")
        e(f"s_add_u32 s{S_T0}, s{S_T0}, s{S_T1}")
        e(f"s_lshl_b32 s{S_T0}, s{S_T0}, 3")
        e(f"s_add_u32 s{S_T0}, s{S_T0}, s{S_W}")
        e(f"s_lshl_b32 s{S_T0}, s{S_T0}, 10")
        e(f"s_add_u32 s{S_T0}, s{S_T0}, {WS_Q:#x}")
    def q_loads():
        e(f"buffer_load_dwordx4 {vr(QL)}, v{V_L16}, {srd(SRD_WS)}, s{S_T0} offen sc1")
    def h_loads():
        e(f"buffer_load_dwordx4 {vr(TG)}, v{V_L16}, {srd(SRD_WS)}, s{S_HOFF} offen sc1")
    q_addr()
    q_loads()
    m_q = e.mark()
    with Optional():
        t3_skip("L_no_h_ld")
        exec_set(0xffffffff, 0)
        h_loads()
        exec_full()
        e.label("L_no_h_ld")
    m_h = e.mark()
    pump(8)
    e.wait_vm(m_q)
    gather_checked("q", q_loads, list(range(QL, QL + 4)), 56, V_T8, 0xff, pre=q_addr)
    e(f"s_lshl_b32 s{S_T0}, s{S_W}, 10")
    e(f"s_add_u32 s{S_T0}, s{S_T0}, {L_QS}")
    e(f"v_add_u32 v12, s{S_T0}, v{V_L16}")
    e(f"ds_write_b128 v12, {vr(QL)}")
    with Optional():
        t3_skip("L_no_t3a")
        e.wait_vm(m_h)
        exec_set(0xffffffff, 0)
        gather_checked("h", h_loads, list(range(TG, TG + 4)), TG + 4, V_T16, 0xffff)
        e(f"v_perm_b32 v{TG+4}, v{TG+1}, v{TG}, s{S_SELHI}")
        e(f"v_perm_b32 v{TG+5}, v{TG+3}, v{TG+2}, s{S_SELHI}")
        e(f"s_mul_i32 s{S_T0}, s{S_W}, {ACT_STRIDE}")
        e("v_lshlrev_b32 v12, 3, v0")
        e(f"v_add_u32 v12, s{S_T0}, v12")
        e(f"ds_write_b64 v12, {vr(TG+4,2)} offset:{L_ACT2}")
        exec_full()
        e.label("L_no_t3a")
    e("v_and_b32 v13, 3, v0")
    e("v_lshlrev_b32 v13, 9, v13")
    e("v_lshrrev_b32 v15, 2, v0")
    e("v_lshl_add_u32 v13, v15, 5, v13")
    e(f"v_add_u32 v13, {L_QS}, v13")
    e("s_waitcnt lgkmcnt(0)")
    if "q" not in cfg.abl: e("s_barrier")
    for kp in range(4):
        e(f"ds_read_b128 {vr(48+8*kp)}, v13 offset:{2048*kp}")
        e(f"ds_read_b128 {vr(48+8*kp+4)}, v13 offset:{2048*kp + 16}")
    e("s_waitcnt lgkmcnt(0)")
    for i in range(8):
        e(f"v_add_f32 v{48+i}, v{48+i}, v{56+i}")
        e(f"v_add_f32 v{64+i}, v{64+i}, v{72+i}")
    for i in range(8): e(f"v_add_f32 v{48+i}, v{48+i}, v{64+i}")
    for i in range(4): e(f"v_cvt_pk_bf16_f32 v{V_Q+i}, v{48+2*i}, v{48+2*i+1}")
    stamp("q_ok")
    def tile_addr(vb, vs, pstride):
        e(f"v_and_b32 v{vb}, 7, v0")
        e(f"v_mul_u32_u24 v{vb}, {ACT_STRIDE}, v{vb}")
        e(f"v_lshrrev_b32 v{vs}, 4, v0")
        e(f"v_lshl_add_u32 v{vb}, v{vs}, 4, v{vb}")
        e(f"v_lshlrev_b32 v{vs}, 4, v{vs}")
        e(f"v_and_b32 v15, 15, v0")
        e(f"v_mul_u32_u24 v15, {32*pstride}, v15")
        e(f"v_add_u32 v{vs}, v{vs}, v15")
    with Optional():
        t3_skip("L_no_t3b")
        e(f"s_cmp_ge_u32 s{S_W}, 4")
        e("s_cbranch_scc1 L_no_t3b")
        a_addr(12)
        tile_addr(13, 14, 1024)
        a_frags(48, 12, L_WD)
        b_frags(64, 13, L_ACT2)
        e("s_waitcnt lgkmcnt(0)")
        mfma_tag_store(16, 48, 64, 14, S_T3OFF)
        e("s_nop 1")
        e.label("L_no_t3b")

    for t in range(4):
        for n in range(8):
            e(f"v_mfma_f32_16x16x32_bf16 {vr(V_ACC+4*n)}, {vr(SLOT(t)+4*n)}, {vr(V_Q)}, 0")
        pump(2, upto=48)
        for n in range(8):
            d = V_ACC + 4 * n
            e(f"v_add_f32_dpp v{V_S+8*t+n}, v{d+1}, v{d} row_shl:4 row_mask:0xf bank_mask:0xf bound_ctrl:0")
        for n in range(8):
            d = V_ACC + 4 * n
            e(f"v_add_f32_dpp v{V_S+8*t+n}, v{d+2}, v{V_S+8*t+n} row_shl:8 row_mask:0xf bank_mask:0xf bound_ctrl:0")
        for n in range(8):
            d = V_ACC + 4 * n
            e(f"v_add_f32_dpp v{V_S+8*t+n}, v{d+3}, v{V_S+8*t+n} row_shl:12 row_mask:0xf bank_mask:0xf bound_ctrl:0")
    stamp("S_done")
    pump(2, upto=56)
    if cfg.mimic:
        e(f"s_mov_b32 s{S_T0}, {f2u(SCALE):#x}")
        for rep in range(2):
            for m in range(16): e(f"v_cvt_pk_bf16_f32 v{V_ACC+m}, v{V_S+2*m}, v{V_S+2*m+1}")
            for m in range(16):
                e(f"v_lshlrev_b32 v{V_S+2*m}, 16, v{V_ACC+m}")
                e(f"v_and_b32 v{V_S+2*m+1}, s{S_M16}, v{V_ACC+m}")
            if rep == 0:
                for n in range(32): e(f"v_mul_f32 v{V_S+n}, s{S_T0}, v{V_S+n}")
            pump(1, upto=56)
        cexp = LOG2E
    else:
        cexp = LOG2E * SCALE
    e(f"v_max3_f32 v12, v{V_S}, v{V_S+1}, v{V_S+2}")
    for n in range(3, 31, 2): e(f"v_max3_f32 v12, v12, v{V_S+n}, v{V_S+n+1}")
    e(f"v_max_f32 v12, v12, v{V_S+31}")
    xrow_reduce("v_max_f32", [12], [13])
    e(f"s_lshl_b32 s{S_T0}, s{S_W}, 4")
    e("v_and_b32 v14, 3, v0")
    e("v_lshlrev_b32 v14, 2, v14")
    e(f"v_add_u32 v15, s{S_T0}, v14")
    exec_set(0xf, 0)
    e(f"ds_write_b32 v15, v12 offset:{L_MAX}")
    exec_full()
    e("s_waitcnt lgkmcnt(0)")
    if "4" not in cfg.abl: e("s_barrier")
    for w in range(8): e(f"ds_read_b32 v{V_ACC+w}, v14 offset:{L_MAX + 16*w}")
    pump(1, upto=56)
    e("s_waitcnt lgkmcnt(0)")
    e(f"v_max3_f32 v12, v{V_ACC}, v{V_ACC+1}, v{V_ACC+2}")
    e(f"v_max3_f32 v12, v12, v{V_ACC+3}, v{V_ACC+4}")
    e(f"v_max3_f32 v12, v12, v{V_ACC+5}, v{V_ACC+6}")
    e(f"v_max_f32 v12, v12, v{V_ACC+7}")
    e(f"s_mov_b32 s{S_T0}, {f2u(cexp):#x}")
    e(f"v_mul_f32 v12, s{S_T0}, v12")
    e(f"v_and_b32 v{V_MP}, s{S_M8}, v12")
    e(f"v_sub_f32 v{V_NEGM}, 0, v{V_MP}")
    for n in range(32): e(f"v_fma_f32 v{V_S+n}, v{V_S+n}, s{S_T0}, v{V_NEGM}")
    pump(1, upto=56)
    for n in range(32): e(f"v_exp_f32 v{V_S+n}, v{V_S+n}")
    pump(1, upto=56)
    e(f"v_add_f32 v12, v{V_S}, v{V_S+1}")
    e(f"v_add_f32 v13, v{V_S+2}, v{V_S+3}")
    for n in range(4, 32, 2):
        e(f"v_add_f32 v12, v12, v{V_S+n}")
        e(f"v_add_f32 v13, v13, v{V_S+n+1}")
    e("v_add_f32 v12, v12, v13")
    for m in range(16): e(f"v_cvt_pk_bf16_f32 v{V_S+m}, v{V_S+2*m}, v{V_S+2*m+1}")
    xrow_reduce("v_add_f32", [12], [13])
    exec_set(0xf, 0)
    e(f"ds_write_b32 v15, v12 offset:{L_LS}")
    exec_full()
    pump(8, upto=56)
    e("s_waitcnt lgkmcnt(0)")
    if "5" not in cfg.abl: e("s_barrier")
    stamp("softmax")
    with Optional():
        e(f"s_cmp_lg_u32 s{S_W}, 2")
        e("s_cbranch_scc1 L_no_ml")
        e("v_mov_b32 v12, 0")
        for w in range(8): e(f"ds_read_b128 {vr(V_ACC+4*w)}, v12 offset:{L_LS + 16*w}")
        e("s_waitcnt lgkmcnt(0)")
        for w in range(1, 8):
            for i in range(4): e(f"v_add_f32 v{V_ACC+i}, v{V_ACC+i}, v{V_ACC+4*w+i}")
        for h in range(4): e(f"v_readlane_b32 s{S_T0+h}, v{V_MP}, {h}")
        for h in range(4): e(f"v_or_b32 v{V_ACC+4+h}, s{S_T0+h}, v{V_T8}")
        for h in range(4): e(f"v_and_or_b32 v{V_ACC+h}, v{V_ACC+h}, s{S_M8}, v{V_T8}")
        e(f"s_lshl_b32 s{S_T0}, s{S_CHUNK}, 5")
        e(f"s_add_u32 s{S_T0}, s{S_T0}, {WS_ML:#x}")
        exec_set(1, 0)
        e(f"buffer_store_dwordx4 {vr(V_ACC+4)}, v12, {srd(SRD_WS)}, s{S_T0} offen sc1")
        e(f"buffer_store_dwordx4 {vr(V_ACC)}, v12, {srd(SRD_WS)}, s{S_T0} offen offset:16 sc1")
        exec_full()
        e("s_nop 1")
        e.label("L_no_ml")

    BT = V_S + 16
    def pv_tile(t, sprinkle=0):
        vs = SLOT(vslot[t])
        P = V_S + 4 * t
        def perms(ee):
            b = BT + 4 * (ee % 4)
            sel = S_SELLO if ee % 2 == 0 else S_SELHI
            for m in range(4):
                e(f"v_perm_b32 v{b+m}, v{vs+4*(2*m+1)+(ee>>1)}, v{vs+4*(2*m)+(ee>>1)}, s{sel}")
        perms(0); perms(1)
        for ee in range(8):
            b = BT + 4 * (ee % 4)
            c = "0" if t == 0 else vr(V_ACC + 4 * ee)
            e(f"v_mfma_f32_16x16x32_bf16 {vr(V_ACC+4*ee)}, {vr(P)}, {vr(b)}, {c}")
            if sprinkle: pump(1)
            if ee + 2 < 8: perms(ee + 2)
    e.wait_vm(mV[0]); pv_tile(0, sprinkle=1)
    assert pos[0] == 64
    e("v_bfe_u32 v12, v0, 3, 2")
    e("v_lshlrev_b32 v12, 17, v12")
    e("v_lshrrev_b32 v13, 5, v0")
    e("v_lshl_add_u32 v12, v13, 10, v12")
    e("v_and_b32 v13, 7, v0")
    e("v_lshl_add_u32 v12, v13, 4, v12")
    e(f"s_lshl_b32 s{S_T0}, s{S_X8}, 19")
    e(f"s_lshr_b32 s{S_T1}, s{S_JJ}, 3")
    e(f"s_lshl_b32 s{S_T1}, s{S_T1}, 15")
    e(f"s_add_u32 s{S_T0}, s{S_T0}, s{S_T1}")
    e(f"s_and_b32 s{S_T1}, s{S_JJ}, 7")
    e(f"s_lshl_b32 s{S_T1}, s{S_T1}, 7")
    e(f"s_add_u32 s{S_T0}, s{S_T0}, s{S_T1}")
    e(f"s_lshl_b32 s{S_T1}, s{S_W}, 12")
    e(f"s_add_u32 s{S_T0}, s{S_T0}, s{S_T1}")
    tile_dma(SRD_WO, 12, S_T0, 2048, L_WO)
    m_wo = e.mark()
    ML = V_Z
    def ml_addr():
        e("v_lshrrev_b32 v12, 4, v0")
        e(f"s_lshl_b32 s{S_T0}, s{S_W}, 5")
        e(f"s_lshl_b32 s{S_T1}, s{S_X8}, 2")
        e(f"s_add_u32 s{S_T0}, s{S_T0}, s{S_T1}")
        e(f"v_add_u32 v12, s{S_T0}, v12")
        e("v_lshlrev_b32 v13, 5, v12")
        e(f"s_mov_b32 s{S_T3}, {WS_ML:#x}")
    def ml_loads():
        e(f"buffer_load_dwordx4 {vr(ML)}, v13, {srd(SRD_WS)}, s{S_T3} offen sc1")
        e(f"buffer_load_dwordx4 {vr(ML+4)}, v13, {srd(SRD_WS)}, s{S_T3} offen offset:16 sc1")
    ml_addr()
    ml_loads()
    m_ml = e.mark()
    stamp("PV0")
    e.wait_vm(mV[1]); pv_tile(1)
    e.wait_vm(mV[2]); pv_tile(2)
    A_OC, A_OG, A_ACT, A_TB, A_TS, A_TA = 232, 233, 234, 235, 236, 237
    e(f"s_lshl_b32 s{S_T0}, s{S_W}, 11")
    e(f"v_add_u32 v{A_OC}, s{S_T0}, v{V_L16}")
    e("v_lshrrev_b32 v12, 4, v0")
    e(f"s_lshl_b32 s{S_T0}, s{S_W}, 5")
    e(f"s_lshl_b32 s{S_T1}, s{S_X8}, 2")
    e(f"s_add_u32 s{S_T0}, s{S_T0}, s{S_T1}")
    e(f"v_add_u32 v12, s{S_T0}, v12")
    e("v_lshlrev_b32 v12, 11, v12")
    e("v_and_b32 v13, 15, v0")
    e(f"v_lshl_add_u32 v{A_OG}, v13, 4, v12")
    S_OG, S_YOFF = 59, 60
    e(f"s_lshr_b32 s{S_OG}, s{S_JJ}, 3")
    e(f"s_lshl_b32 s{S_OG}, s{S_OG}, 9")
    e(f"s_add_u32 s{S_OG}, s{S_OG}, {WS_O:#x}")
    e(f"s_mul_i32 s{S_T0}, s{S_W}, {ACT_STRIDE}")
    e("v_lshlrev_b32 v13, 3, v13")
    e("v_lshrrev_b32 v12, 4, v0")
    e("v_lshl_add_u32 v13, v12, 1, v13")
    e(f"v_add_u32 v{A_ACT}, s{S_T0}, v13")
    tile_addr(A_TB, A_TS, 2048)
    a_addr(A_TA)
    e(f"s_and_b32 s{S_YOFF}, s{S_JJ}, 7")
    e(f"s_lshl_b32 s{S_YOFF}, s{S_YOFF}, 2")
    e(f"s_and_b32 s{S_T0}, s{S_W}, 3")
    e(f"s_add_u32 s{S_YOFF}, s{S_YOFF}, s{S_T0}")
    e(f"s_lshl_b32 s{S_YOFF}, s{S_YOFF}, 11")
    e(f"s_lshl_b32 s{S_T0}, s{S_X8}, 2")
    e(f"s_lshr_b32 s{S_T1}, s{S_JJ}, 3")
    e(f"s_add_u32 s{S_T0}, s{S_T0}, s{S_T1}")
    e(f"s_lshl_b32 s{S_T0}, s{S_T0}, 6")
    e(f"s_add_u32 s{S_YOFF}, s{S_YOFF}, s{S_T0}")
    e(f"s_add_u32 s{S_YOFF}, s{S_YOFF}, {WS_Y:#x}")
    e("v_lshrrev_b32 v13, 4, v0")
    e(f"s_lshl_b32 s{S_T0}, s{S_W}, 2")
    e(f"v_add_u32 v13, s{S_T0}, v13")
    e("v_and_b32 v14, 15, v0")
    e("v_lshlrev_b32 v238, 8, v13")
    e("v_lshl_add_u32 v238, v14, 4, v238")
    e("v_lshl_add_u32 v13, v14, 3, v13")
    e("v_lshlrev_b32 v239, 4, v13")
    e(f"s_lshl_b32 s{S_HOFF}, s{S_CHUNK}, 11")
    e(f"s_add_u32 s{S_HOFF}, s{S_HOFF}, {WS_O:#x}")
    e.wait_vm(mV[3]); pv_tile(3)
    stamp("PV3")

    exec_set(0xffff, 0)
    for ee in range(8): e(f"ds_write_b128 v{A_OC}, {vr(V_ACC+4*ee)} offset:{L_OC + 256*ee}")
    exec_full()
    e.wait_vm(m_ml, " lgkmcnt(0)")
    e("s_barrier")
    OG = V_S + 8
    TM = V_S + 16
    WT = V_S
    TA = SLOT(0)
    TB = SLOT(0) + 16
    TD = SLOT(1)
    with Optional():
        e(f"s_cmp_gt_u32 s{S_W}, 1")
        e("s_cbranch_scc1 L_no_opub")
        for w in range(8): e(f"ds_read_b128 {vr(V_ACC+4*w)}, v238 offset:{L_OC + 2048*w}")
        e("s_waitcnt lgkmcnt(0)")
        for i in range(4):
            e(f"v_add_f32 v{V_ACC+i}, v{V_ACC+i}, v{V_ACC+4+i}")
            e(f"v_add_f32 v{V_ACC+8+i}, v{V_ACC+8+i}, v{V_ACC+12+i}")
            e(f"v_add_f32 v{V_ACC+16+i}, v{V_ACC+16+i}, v{V_ACC+20+i}")
            e(f"v_add_f32 v{V_ACC+24+i}, v{V_ACC+24+i}, v{V_ACC+28+i}")
        for i in range(4):
            e(f"v_add_f32 v{V_ACC+i}, v{V_ACC+i}, v{V_ACC+8+i}")
            e(f"v_add_f32 v{V_ACC+16+i}, v{V_ACC+16+i}, v{V_ACC+24+i}")
        for i in range(4): e(f"v_add_f32 v{V_ACC+i}, v{V_ACC+i}, v{V_ACC+16+i}")
        if cfg.rnd:
            for i in range(4): e(f"v_add_u32 v{V_ACC+i}, 0x80, v{V_ACC+i}")
        for i in range(4): e(f"v_and_or_b32 v{V_ACC+i}, v{V_ACC+i}, s{S_M8}, v{V_T8}")
        e(f"buffer_store_dwordx4 {vr(V_ACC)}, v239, {srd(SRD_WS)}, s{S_HOFF} offen sc1")
        e.label("L_no_opub")
    stamp("O_pub")

    def o_loads():
        e(f"buffer_load_dwordx4 {vr(OG)}, v{A_OG}, {srd(SRD_WS)}, s{S_OG} offen sc1")
        e(f"buffer_load_dwordx4 {vr(OG+4)}, v{A_OG}, {srd(SRD_WS)}, s{S_OG} offen offset:256 sc1")
    o_loads()
    a_frags(TA, A_TA, L_WO)
    gather_checked("ml", ml_loads, list(range(ML, ML + 8)), TM, V_T8, 0xff, pre=ml_addr)
    for h in range(4): e(f"v_mov_b32 v{TM+h}, v{ML+h}")
    xrow_reduce("v_max_f32", [TM + h for h in range(4)], [TM + 4 + h for h in range(4)])
    for h in range(4): e(f"v_sub_f32 v{WT+h}, v{ML+h}, v{TM+h}")
    for h in range(4): e(f"v_exp_f32 v{WT+h}, v{WT+h}")
    for h in range(4): e(f"v_mul_f32 v{TM+h}, v{WT+h}, v{ML+4+h}")
    xrow_reduce("v_add_f32", [TM + h for h in range(4)], [TM + 4 + h for h in range(4)])
    for h in range(4): e(f"v_rcp_f32 v{TM+4+h}, v{TM+h}")
    for h in range(4): e(f"v_fma_f32 v{TM+8+h}, -v{TM+h}, v{TM+4+h}, 1.0")
    for h in range(4): e(f"v_fma_f32 v{TM+4+h}, v{TM+8+h}, v{TM+4+h}, v{TM+4+h}")
    for h in range(4): e(f"v_mul_f32 v{WT+h}, v{WT+h}, v{TM+4+h}")
    e("s_waitcnt vmcnt(0)")
    gather_checked("o", o_loads, list(range(OG, OG + 8)), TM, V_T8, 0xff)
    stamp("O_got")
    for u in range(2):
        for h in range(4): e(f"v_mul_f32 v{OG+4*u+h}, v{OG+4*u+h}, v{WT+h}")
    for u in range(2):
        o = OG + 4 * u
        e(f"v_permlane32_swap_b32 v{o}, v{o+2}")
        e(f"v_permlane32_swap_b32 v{o+1}, v{o+3}")
    for u in range(2):
        o = OG + 4 * u
        e(f"v_add_f32 v{o}, v{o}, v{o+2}")
        e(f"v_add_f32 v{o+1}, v{o+1}, v{o+3}")
    for u in range(2):
        o = OG + 4 * u
        e(f"v_permlane16_swap_b32 v{o}, v{o+1}")
    for u in range(2):
        o = OG + 4 * u
        e(f"v_add_f32 v{o}, v{o}, v{o+1}")
    e(f"v_cvt_pk_bf16_f32 v{OG}, v{OG}, v{OG+4}")
    e(f"ds_write_b16 v{A_ACT}, v{OG} offset:{L_ACT}")
    e(f"ds_write_b16_d16_hi v{A_ACT}, v{OG} offset:{L_ACT + 128}")
    e("s_waitcnt lgkmcnt(0)")
    e("s_barrier")
    with Optional():
        e(f"s_cmp_ge_u32 s{S_W}, 4")
        e("s_cbranch_scc1 L_no_y")
        b_frags(TB, A_TB, L_ACT)
        e("s_waitcnt lgkmcnt(0)")
        mfma_tag_store(TD, TA, TB, A_TS, S_YOFF)
        e.label("L_no_y")
    stamp("y_pub")

    FW = 7
    e(f"s_cmp_lg_u32 s{S_W}, {FW}")
    e("s_cbranch_scc1 L_end")
    Y = 16
    DD = 24
    e(f"s_lshl_b32 s{S_T0}, s{S_CHUNK}, 11")
    e(f"s_add_u32 s{S_T0}, s{S_T0}, {WS_Y:#x}")
    e(f"s_lshl_b32 s{S_T1}, s{S_CHUNK}, 10")
    e(f"s_add_u32 s{S_T1}, s{S_T1}, {WS_D:#x}")
    def fin_loads():
        for i in range(4): e(f"v_mov_b32 v{DD+i}, v{V_T8}")
        for i in range(2):
            e(f"buffer_load_dwordx4 {vr(Y+4*i)}, v{V_L16}, {srd(SRD_WS)}, s{S_T0} offen offset:{1024*i} sc1")
        exec_set(0xffffffff, 0xffffff)
        e(f"buffer_load_dwordx4 {vr(DD)}, v{V_L16}, {srd(SRD_WS)}, s{S_T1} offen sc1")
        exec_full()
    with Optional():
        fin_loads()
    e("v_and_b32 v13, 3, v0")
    e("v_bfe_u32 v14, v0, 4, 1")
    e("v_lshl_add_u32 v14, v13, 2, v14")
    e("v_lshlrev_b32 v14, 1, v14")
    e(f"s_lshl_b32 s{S_T2}, s{S_CHUNK}, 5")
    with Optional():
        e(f"buffer_load_ushort v40, v14, {srd(SRD_X)}, s{S_T2} offen")
        e(f"buffer_load_ushort v41, v14, {srd(SRD_X)}, s{S_T2} offen offset:4")
    e("s_waitcnt vmcnt(0)")
    gather_checked("fin", fin_loads, list(range(Y, Y + 12)), 44, V_T8, 0xff)
    stamp("fin_got")
    for i in range(4): e(f"v_add_f32 v{Y+i}, v{Y+i}, v{Y+4+i}")
    for i in range(4): e(f"v_permlane32_swap_b32 v{Y+i}, v{DD+i}")
    for i in range(4): e(f"v_add_f32 v{Y+i}, v{Y+i}, v{DD+i}")
    e(f"v_permlane16_swap_b32 v{Y}, v{Y+1}")
    e(f"v_permlane16_swap_b32 v{Y+2}, v{Y+3}")
    e(f"v_add_f32 v{Y}, v{Y}, v{Y+1}")
    e(f"v_add_f32 v{Y+2}, v{Y+2}, v{Y+3}")
    for ror in (4, 8):
        e(f"v_add_f32_dpp v{Y}, v{Y}, v{Y} row_ror:{ror} row_mask:0xf bank_mask:0xf")
        e(f"v_add_f32_dpp v{Y+2}, v{Y+2}, v{Y+2} row_ror:{ror} row_mask:0xf bank_mask:0xf")
    e(f"v_mov_b32 v{DD}, v{Y}")
    e(f"v_mov_b32 v{DD+1}, v{Y+2}")
    e(f"v_permlane32_swap_b32 v{Y}, v{DD}")
    e(f"v_permlane32_swap_b32 v{Y+2}, v{DD+1}")
    e(f"v_cvt_pk_bf16_f32 v44, v{Y}, v{Y+2}")
    e(f"v_cvt_pk_bf16_f32 v45, v{DD}, v{DD+1}")
    e(f"v_lshlrev_b32 v46, 16, v45")
    e(f"v_and_b32 v47, s{S_M16}, v45")
    e(f"v_mul_f32 v48, {f2u(-LOG2E):#x}, v46")
    e(f"v_mul_f32 v49, {f2u(-LOG2E):#x}, v47")
    e("v_exp_f32 v48, v48")
    e("v_exp_f32 v49, v49")
    e("v_add_f32 v48, 1.0, v48")
    e("v_add_f32 v49, 1.0, v49")
    e("v_rcp_f32 v48, v48")
    e("v_rcp_f32 v49, v49")
    e("v_lshlrev_b32 v50, 16, v44")
    e(f"v_and_b32 v51, s{S_M16}, v44")
    e("v_mul_f32 v48, v46, v48")
    e("v_mul_f32 v49, v47, v49")
    e("v_cvt_pk_bf16_f32 v48, v48, v49")
    e("v_lshlrev_b32 v46, 16, v48")
    e(f"v_and_b32 v47, s{S_M16}, v48")
    e("v_mul_f32 v46, v50, v46")
    e("v_mul_f32 v47, v51, v47")
    e("v_cvt_pk_bf16_f32 v48, v46, v47")
    e("v_lshlrev_b32 v46, 16, v48")
    e(f"v_and_b32 v47, s{S_M16}, v48")
    e("v_lshlrev_b32 v40, 16, v40")
    e("v_lshlrev_b32 v41, 16, v41")
    e("v_add_f32 v46, v46, v40")
    e("v_add_f32 v47, v47, v41")
    e("v_cvt_pk_bf16_f32 v48, v46, v47")
    exec_set(0x000f000f, 0)
    e(f"buffer_store_short v48, v14, {srd(SRD_OUT)}, s{S_T2} offen")
    e(f"buffer_store_short_d16_hi v48, v14, {srd(SRD_OUT)}, s{S_T2} offen offset:4")
    e("s_cmp_lg_u32 s2, 0")
    e("s_cbranch_scc1 L_no_epoch")
    exec_set(1, 0)
    e(f"v_mov_b32 v50, s{S_TAG}")
    e("v_mov_b32 v51, 0")
    e(f"buffer_store_dword v50, v51, {srd(SRD_WS)}, 0 offen offset:{WS_EPOCH}")
    e.label("L_no_epoch")
    exec_full()
    e.label("L_end")
    if cfg.stamps:
        e("s_cmp_ge_u32 s2, 256")
        e("s_cbranch_scc1 L_end2")
        e("s_memrealtime s[100:101]")
        e("s_waitcnt lgkmcnt(0)")
        e("s_lshl_b32 s55, s2, 3")
        e(f"s_add_u32 s55, s55, s{S_W}")
        e("s_lshl_b32 s55, s55, 7")
        e(f"s_add_u32 s55, s55, {WS_ST:#x}")
        exec_set(1, 0)
        e("v_mov_b32 v51, 0")
        for i in list(range(len(names))) + [15]:
            r = stamp_reg(i) if i < 15 else 100
            e(f"v_mov_b32 v48, s{r}")
            e(f"v_mov_b32 v49, s{r+1}")
            e(f"buffer_store_dwordx2 v[48:49], v51, {srd(SRD_WS)}, s55 offen offset:{8*i}")
            e("s_nop 1")
        e.label("L_end2")
    gen.names = names + ["end"]
    gen.final_wave = FW
    e("s_endpgm")

    hdr = open("cdna_kernels/" + NAME + ".s.ref").read().split("\n")
    head = [l for l in hdr if l.startswith(";") and "@launch" not in l and "Override" not in l and "grid=ceil" not in l]
    out = "\n".join(head) + "\n"
    out += f"; @launch grid=(256,1,1) block=(512,1,1) lds={L_END}\n"
    out += '.amdgcn_target "amdgcn-amd-amdhsa--gfx950"\n.text\n'
    out += f".globl {KNAME}\n.p2align 8\n.type {KNAME},@function\n{KNAME}:\n"
    out += e.text()
    out += f""".section .rodata,"a"
.p2align 6
.amdhsa_kernel {KNAME}
  .amdhsa_next_free_vgpr {NVGPR}
  .amdhsa_next_free_sgpr 102
  .amdhsa_accum_offset {NVGPR}
  .amdhsa_group_segment_fixed_size 0
  .amdhsa_kernarg_size 96
  .amdhsa_user_sgpr_count 2
  .amdhsa_user_sgpr_kernarg_segment_ptr 1
  .amdhsa_system_sgpr_workgroup_id_x 1
  .amdhsa_float_denorm_mode_32 3
.end_amdhsa_kernel
"""
    return out

if __name__ == "__main__":
    kw = eval("dict(%s)" % (sys.argv[2] if len(sys.argv) > 2 else ""))
    txt = gen(Cfg(**kw))
    path = sys.argv[1] if len(sys.argv) > 1 else "cdna_kernels/" + NAME + ".s"
    open(path, "w").write(txt)
    print("wrote", path, len(txt), "bytes; LDS", L_END)
```

```python
import sys, struct
sys.path.insert(0, "dev")
from emit import Emit

NAME = "recurrent_scan__gqa_block_cached__glu_gated_glu__decode"
KNAME = NAME + "_kernel"

WS_EPOCH = 0
WS_H   = 0x40000
WS_ML  = 0x50000
WS_O   = 0x60000
WS_Y   = 0x100000
WS_D   = 0x200000
WS_ST  = 0x300000
WS_Q   = 0x400000
WS_G   = 0x500000
WS_SIZE = 0x600000

XN_STRIDE = 1040
ACT_STRIDE = 272
L_XN  = 0
L_T1  = 8448
L_T2  = L_T1 + 16384
L_WD  = L_T2 + 16384
L_MAX = L_WD + 16384
L_LS  = L_MAX + 128
L_ACT = L_LS + 128
L_ACT2 = L_ACT + 2176
L_QS  = L_ACT2 + 2176
L_END = L_QS + 8192
L_WO  = L_T1
L_OC  = L_T2
assert L_WD + 3 * 4096 + 512 < 65536 and L_QS < 65536 and L_QS % 16 == 0 and L_ACT % 16 == 0

V_KOFF, V_VOFF, V_L16, V_T16, V_T8, V_NEGM, V_MP = 1, 2, 3, 4, 5, 6, 7
V_Q = 8
V_S = 16
V_ACC = 48
def SLOT(i): return 80 + 32 * i
V_Z = 240
NVGPR = 248

S_W, S_X8, S_JJ, S_CHUNK, S_TAG = 3, 44, 45, 46, 47
SRD_K, SRD_V, SRD_WS, SRD_X, SRD_WQ, SRD_WG, SRD_WD, SRD_WO, SRD_OUT = 4, 8, 12, 16, 20, 24, 32, 36, 40
S_IDX, S_MAT, S_CT2, S_KP = 28, 29, 30, 31
S_OFFA, S_RED, S_SELLO, S_SELHI, S_M8, S_M16, S_CNT = 48, 49, 50, 51, 52, 53, 54
S_T0, S_T1, S_T2, S_T3 = 55, 56, 57, 58
S_T3OFF, S_FR, S_HOFF = 59, 60, 61
S_EPOCH = 62
S_T4 = 63
S_T3IDX, S_CT3 = 80, 81
S_EXS, S_EXT = 82, 84
KA = 64
def stamp_reg(i): return 88 + 2 * i if i < 6 else 64 + 2 * (i - 6)

def srd(i): return f"s[{i}:{i+3}]"
def vr(a, n=4): return f"v[{a}:{a+n-1}]"
LOG2E = 1.4426950408889634
SCALE = 128 ** -0.5
def f2u(x): return struct.unpack("<I", struct.pack("<f", x))[0]

class Cfg:
    mimic = True
    window = 5
    stamps = False
    spin = 200000
    pre_b = 1
    ln_k = (1, 1, 1)
    wd_at = 10
    g_at = 12
    gred_at = 19
    t3lo = 10
    abl = ''
    dbgspan = False
    rnd = True
    finbar = True
    prio_at = None
    mlw = 3
    fw = 7
    touch = False
    prio = 0
    ml_late = False
    narrow = True
    ppoll = False
    t3x = True
    def __init__(self, **kw):
        for k, v in kw.items(): setattr(self, k, v)

def gen(cfg=None):
    cfg = cfg or Cfg()
    e = Emit()
    W = cfg.window
    names = []
    def stamp(name):
        if cfg.stamps:
            i = len(names); names.append(name)
            assert i < 15
            e(f"s_memrealtime s[{stamp_reg(i)}:{stamp_reg(i)+1}]")
    def exec_set(lo, hi):
        e(f"s_mov_b32 exec_lo, {lo:#x}")
        e(f"s_mov_b32 exec_hi, {hi:#x}")
    def exec_full(): e("s_mov_b64 exec, -1")
    class Optional:
        def __enter__(self): self.vm = e.vm
        def __exit__(self, *a): e.vm = self.vm

    def wave_sum_to_sgpr(v, s):
        for sh in (1, 2, 4, 8):
            e(f"v_add_f32_dpp v{v}, v{v}, v{v} row_shr:{sh} row_mask:0xf bank_mask:0xf bound_ctrl:0")
        e(f"v_add_f32_dpp v{v}, v{v}, v{v} row_bcast:15 row_mask:0xa bank_mask:0xf")
        e(f"v_add_f32_dpp v{v}, v{v}, v{v} row_bcast:31 row_mask:0xc bank_mask:0xf")
        e(f"v_readlane_b32 s{s}, v{v}, 63")
    def xrow_reduce(op, regs, tmps):
        for sw in ("v_permlane16_swap_b32", "v_permlane32_swap_b32"):
            for r, t in zip(regs, tmps): e(f"v_mov_b32 v{t}, v{r}")
            for r, t in zip(regs, tmps): e(f"{sw} v{r}, v{t}")
            for r, t in zip(regs, tmps): e(f"{op} v{r}, v{r}, v{t}")
    def prio_point(name):
        if cfg.prio_at == name:
            e(f"s_cmp_lt_u32 s{S_W}, 4")
            e(f"s_cbranch_scc1 L_noprio_{name}")
            e("s_setprio 1")
            e.label(f"L_noprio_{name}")
    def rne_single(dst, src):
        e(f"v_cvt_pk_bf16_f32 v{dst}, v{src}, v{src}")
        e(f"v_lshlrev_b32 v{dst}, 16, v{dst}")
    def poll_tail(label_retry, label_ok):
        e(f"s_cbranch_vccz {label_ok}")
        e(f"s_sub_u32 s{S_CNT}, s{S_CNT}, 1")
        e(f"s_cmp_lg_u32 s{S_CNT}, 0")
        e(f"s_cbranch_scc1 {label_retry}")
    def chk(regs, tmp, tagv, mask):
        n = len(regs)
        for r in regs: e(f"v_xor_b32 v{r}, v{r}, v{tagv}")
        accs = [tmp, tmp + 1] if n >= 8 else [tmp]
        parts = [regs[i::len(accs)] for i in range(len(accs))]
        steps = []
        for a, pr in zip(accs, parts):
            st = []
            if len(pr) >= 3: st.append(f"v_or3_b32 v{a}, v{pr[0]}, v{pr[1]}, v{pr[2]}"); i = 3
            else: st.append(f"v_or_b32 v{a}, v{pr[0]}, v{pr[1]}"); i = 2
            while i < len(pr):
                if i + 1 < len(pr): st.append(f"v_or3_b32 v{a}, v{a}, v{pr[i]}, v{pr[i+1]}"); i += 2
                else: st.append(f"v_or_b32 v{a}, v{a}, v{pr[i]}"); i += 1
            steps.append(st)
        for i in range(max(len(x) for x in steps)):
            for st in steps:
                if i < len(st): e(st[i])
        if len(accs) == 2: e(f"v_or_b32 v{tmp}, v{tmp}, v{tmp+1}")
        e(f"v_and_b32 v{tmp}, {mask:#x}, v{tmp}")
        e(f"v_cmp_ne_u32 vcc, 0, v{tmp}")
    def gather_checked(name, loads, regs, tmp, tagv, mask, pre=None):
        if 'c' in cfg.abl: return
        chk(regs, tmp, tagv, mask)
        e(f"s_cbranch_vccz L_{name}_ok")
        npl = len(e.plist)
        with Optional():
            if pre: pre()
            e(f"s_mov_b32 s{S_CNT}, {cfg.spin}")
            if cfg.narrow: e(f"s_mov_b64 s[{S_EXS}:{S_EXS+1}], exec")
            e.label(f"L_{name}_retry")
            if cfg.narrow: e("s_mov_b64 exec, vcc")
            loads()
            e("s_waitcnt vmcnt(0)")
            chk(regs, tmp, tagv, mask)
            if cfg.narrow:
                e(f"s_cbranch_vccz L_{name}_rest")
                e(f"s_sub_u32 s{S_CNT}, s{S_CNT}, 1")
                e(f"s_cmp_lg_u32 s{S_CNT}, 0")
                e(f"s_cbranch_scc1 L_{name}_retry")
                e.label(f"L_{name}_rest")
                e(f"s_mov_b64 exec, s[{S_EXS}:{S_EXS+1}]")
            else:
                poll_tail(f"L_{name}_retry", f"L_{name}_ok")
        del e.plist[npl:]
        e.label(f"L_{name}_ok")

    def poll_pipelined(name, loadsA, loadsB, regsA, regsB, regsC, nld, tmp, tagv, mask):
        if 'c' in cfg.abl:
            e("s_waitcnt vmcnt(0)")
            for c, a in zip(regsC, regsA): e(f"v_mov_b32 v{c}, v{a}")
            return
        npl = len(e.plist)
        with Optional():
            e(f"s_mov_b32 s{S_CNT}, {cfg.spin}")
            e.label(f"L_{name}_loop")
            loadsB()
            e(f"s_waitcnt vmcnt({nld})")
            chk(regsA, tmp, tagv, mask)
            e(f"s_cbranch_vccz L_{name}_okA")
            loadsA()
            e(f"s_waitcnt vmcnt({nld})")
            chk(regsB, tmp, tagv, mask)
            e(f"s_cbranch_vccz L_{name}_okB")
            e(f"s_sub_u32 s{S_CNT}, s{S_CNT}, 1")
            e(f"s_cmp_lg_u32 s{S_CNT}, 0")
            e(f"s_cbranch_scc1 L_{name}_loop")
            e.label(f"L_{name}_okB")
            for c, b in zip(regsC, regsB): e(f"v_mov_b32 v{c}, v{b}")
            e(f"s_branch L_{name}_done")
            e.label(f"L_{name}_okA")
            for c, a in zip(regsC, regsA): e(f"v_mov_b32 v{c}, v{a}")
            e.label(f"L_{name}_done")
        del e.plist[npl:]

    offstate = [None]
    def kv_load(which, t, n, slot, pace):
        so = t * 65536 + (n >> 2) * 4096
        if offstate[0] != so:
            e(f"s_mov_b32 s{S_OFFA}, {so:#x}"); offstate[0] = so
        r = SLOT(slot) + 4 * n
        voff, s = (V_KOFF, SRD_K) if which == "k" else (V_VOFF, SRD_V)
        e(f"buffer_load_dwordx4 {vr(r)}, v{voff}, {srd(s)}, s{S_OFFA} offen offset:{(n & 3) * 1024} nt")
        if pace: e.pace(W)
    vslot = [4, 0, 1, 2]
    seq = [("k", t, n) for t in range(4) for n in range(8)] + [("v", t, n) for t in range(4) for n in range(8)]
    pos = [0]
    mK = [None] * 4; mV = [None] * 4
    hooks = {}
    def pump(cnt, pace=True, upto=64):
        for _ in range(cnt):
            if pos[0] >= upto: return
            which, t, n = seq[pos[0]]; pos[0] += 1
            kv_load(which, t, n, t if which == "k" else vslot[t], pace)
            if n == 7: (mK if which == "k" else mV)[t] = e.mark()
            for h in hooks.get(pos[0], []): h()

    def tile_dma(srdn, voff, soff, step, lbase):
        if 'k' in cfg.abl: return
        e(f"s_lshl_b32 s{S_T4}, s{S_W}, 11")
        e(f"s_add_u32 m0, s{S_T4}, {lbase}")
        e(f"buffer_load_dwordx4 v{voff}, {srd(srdn)}, s{soff} offen nt lds")
        e(f"s_add_u32 s{soff}, s{soff}, {step}")
        e(f"s_add_u32 m0, s{S_T4}, {lbase + 1024}")
        e(f"buffer_load_dwordx4 v{voff}, {srd(srdn)}, s{soff} offen nt lds")
    def tile_voff(dst, rowstride):
        e(f"v_lshrrev_b32 v{dst}, 3, v0")
        e(f"v_mul_u32_u24 v{dst}, {rowstride}, v{dst}")
        e(f"v_and_b32 v15, 7, v0")
        e(f"v_lshl_add_u32 v{dst}, v15, 4, v{dst}")
    def a_addr(dst):
        e(f"v_lshrrev_b32 v{dst}, 4, v0")
        e("v_bfe_u32 v15, v0, 2, 2")
        e(f"v_lshl_add_u32 v{dst}, v{dst}, 3, v15")
        e(f"v_lshlrev_b32 v{dst}, 7, v{dst}")
        e("v_and_b32 v15, 3, v0")
        e(f"v_lshl_add_u32 v{dst}, v15, 3, v{dst}")
        e(f"s_and_b32 s{S_T4}, s{S_W}, 3")
        e(f"s_lshl_b32 s{S_T4}, s{S_T4}, 5")
        e(f"v_add_u32 v{dst}, s{S_T4}, v{dst}")
    def a_frags(ta, va, lbase):
        for t in range(4):
            e(f"ds_read_b64_tr_b16 {vr(ta+4*t,2)}, v{va} offset:{lbase + 4096*t}")
            e(f"ds_read_b64_tr_b16 {vr(ta+4*t+2,2)}, v{va} offset:{lbase + 4096*t + 512}")
    def b_frags(tb, vb, lbase):
        for t in range(4): e(f"ds_read_b128 {vr(tb+4*t)}, v{vb} offset:{lbase + 64*t}")
    def mfma_tag_store(td, ta, tb, vs, sbase, store=True):
        e(f"v_mfma_f32_16x16x32_bf16 {vr(td)}, {vr(ta)}, {vr(tb)}, 0")
        for t in range(1, 4):
            e(f"v_mfma_f32_16x16x32_bf16 {vr(td)}, {vr(ta+4*t)}, {vr(tb+4*t)}, {vr(td)}")
        exec_set(0x00ff00ff, 0x00ff00ff)
        if cfg.rnd:
            for i in range(4): e(f"v_add_u32 v{td+i}, 0x80, v{td+i}")
        for i in range(4): e(f"v_and_or_b32 v{td+i}, v{td+i}, s{S_M8}, v{V_T8}")
        if store: e(f"buffer_store_dwordx4 {vr(td)}, v{vs}, {srd(SRD_WS)}, s{sbase} offen sc1")
        exec_full()

    e("s_cmp_ge_u32 s2, 256")
    e("s_cbranch_scc1 L_end")
    stamp("start")
    e(f"s_load_dwordx16 s[{KA}:{KA+15}], s[0:1], 0")
    e(f"s_load_dwordx8 s[{KA+16}:{KA+23}], s[0:1], 64")
    P_X, P_K, P_V, P_WQ, P_WO, P_WG, P_WU, P_WD, P_OUT, P_WS = KA, KA+2, KA+4, KA+6, KA+8, KA+12, KA+14, KA+16, KA+18, KA+22
    e("v_lshrrev_b32 v12, 6, v0")
    e("v_and_b32 v0, 63, v0")
    e(f"v_readfirstlane_b32 s{S_W}, v12")
    if cfg.prio:
        e(f"s_cmp_lt_u32 s{S_W}, 4")
        e("s_cbranch_scc1 L_noprio")
        e(f"s_setprio {cfg.prio}")
        e.label("L_noprio")
    e(f"s_and_b32 s{S_X8}, s2, 7")
    e(f"s_lshr_b32 s{S_JJ}, s2, 3")
    e(f"s_lshl_b32 s{S_CHUNK}, s{S_X8}, 5")
    e(f"s_add_u32 s{S_CHUNK}, s{S_CHUNK}, s{S_JJ}")
    e(f"v_lshlrev_b32 v{V_L16}, 4, v0")
    e("v_bfe_u32 v12, v0, 2, 2")
    e(f"v_lshlrev_b32 v{V_KOFF}, 8, v12")
    e("v_lshrrev_b32 v12, 4, v0")
    e(f"v_lshl_add_u32 v{V_KOFF}, v12, 6, v{V_KOFF}")
    e("v_and_b32 v12, 3, v0")
    e(f"v_lshl_add_u32 v{V_KOFF}, v12, 4, v{V_KOFF}")
    e(f"s_lshl_b32 s{S_T0}, s{S_W}, 13")
    e(f"v_add_u32 v{V_KOFF}, s{S_T0}, v{V_KOFF}")
    e(f"v_add_u32 v{V_VOFF}, s{S_T0}, v{V_L16}")
    tile_voff(13, 8192)
    tile_voff(14, 3584)
    e(f"s_and_b32 s{S_KP}, s{S_JJ}, 3")
    e(f"s_lshr_b32 s{S_T0}, s{S_JJ}, 2")
    e(f"s_lshl_b32 s{S_IDX}, s{S_T0}, 3")
    e(f"s_add_u32 s{S_IDX}, s{S_IDX}, s{S_X8}")
    e(f"s_and_b32 s{S_MAT}, s{S_IDX}, 1")
    e(f"s_lshr_b32 s{S_CT2}, s{S_IDX}, 1")
    e(f"s_lshl_b32 s{S_T1}, s{S_X8}, 3")
    e(f"s_add_u32 s{S_T0}, s{S_T0}, s{S_T1}")
    e(f"s_lshl_b32 s{S_T0}, s{S_T0}, 7")
    e(f"s_lshl_b32 s{S_T1}, s{S_KP}, 3")
    e(f"s_add_u32 s{S_T1}, s{S_T1}, s{S_W}")
    e(f"s_lshl_b32 s{S_T2}, s{S_T1}, 17")
    e(f"s_add_u32 s{S_T0}, s{S_T0}, s{S_T2}")
    e(f"s_mul_i32 s{S_T1}, s{S_T1}, {16*3584}")
    e(f"s_lshl_b32 s{S_T2}, s{S_CT2}, 7")
    e(f"s_add_u32 s{S_T1}, s{S_T1}, s{S_T2}")
    e(f"s_lshl_b32 s{S_T2}, s{S_W}, 10")
    e(f"s_lshl_b32 s{S_T3}, s{S_CHUNK}, 18")
    e("s_waitcnt lgkmcnt(0)")
    def mk_srd(dst, src, size, add=None):
        if add is None:
            e(f"s_mov_b32 s{dst}, s{src}")
            e(f"s_mov_b32 s{dst+1}, s{src+1}")
        else:
            e(f"s_add_u32 s{dst}, s{src}, s{add}")
            e(f"s_addc_u32 s{dst+1}, s{src+1}, 0")
        e(f"s_mov_b32 s{dst+2}, {size:#x}")
        e(f"s_mov_b32 s{dst+3}, 0x00020000")
    XR = 48
    mk_srd(SRD_X, P_X, 8192)
    e(f"buffer_load_dwordx4 {vr(XR)}, v{V_L16}, {srd(SRD_X)}, s{S_T2} offen")
    m_x = e.mark()
    e("s_barrier")
    mk_srd(SRD_WQ, P_WQ, 512 * 4096 * 2)
    tile_dma(SRD_WQ, 13, S_T0, 8 * 8192, L_T1)
    e(f"s_cmp_eq_u32 s{S_MAT}, 0")
    e(f"s_cselect_b32 s{SRD_WG}, s{P_WG}, s{P_WU}")
    e(f"s_cselect_b32 s{SRD_WG+1}, s{P_WG+1}, s{P_WU+1}")
    e(f"s_mov_b32 s{SRD_WG+2}, {512*1792*2:#x}")
    e(f"s_mov_b32 s{SRD_WG+3}, 0x00020000")
    m_t1 = e.mark()
    with Optional():
        e(f"s_cmp_ge_u32 s{S_IDX}, 56")
        e("s_cbranch_scc1 L_no_gu_ld")
        if 'E' in cfg.abl:
            e(f"s_bitcmp1_b32 s{S_X8}, 0")
            e("s_cbranch_scc1 L_no_gu_ld")
            e(f"s_xor_b32 s{S_T2}, s{S_T1}, 128")
            tile_dma(SRD_WG, 14, S_T2, 8 * 3584, L_WD)
        tile_dma(SRD_WG, 14, S_T1, 8 * 3584, L_T2)
        e.label("L_no_gu_ld")
    m_t2 = e.mark()
    mk_srd(SRD_K, P_K, 0x40000, add=S_T3)
    pump(cfg.pre_b, pace=False)
    mk_srd(SRD_V, P_V, 0x40000, add=S_T3)
    e(f"s_load_dword s{S_EPOCH}, s[{P_WS}:{P_WS+1}], {WS_EPOCH}")
    mk_srd(SRD_WS, P_WS, WS_SIZE)
    mk_srd(SRD_WD, P_WD, 1792 * 512 * 2)
    mk_srd(SRD_WO, P_WO, 4096 * 512 * 2)
    mk_srd(SRD_OUT, P_OUT, 8192)
    e(f"s_mov_b32 s{S_SELLO}, 0x05040100")
    e(f"s_mov_b32 s{S_SELHI}, 0x07060302")
    e(f"s_mov_b32 s{S_M8}, 0xffffff00")
    e(f"s_mov_b32 s{S_M16}, 0xffff0000")
    if cfg.touch:
        e("v_mov_b32 v12, 0")
        with Optional():
            for w, (sr, so) in enumerate([(SRD_V, "0"), (SRD_WO, None), (SRD_WD, "0"), (SRD_WS, WS_O), (SRD_WS, WS_Y), (SRD_WS, WS_D), (SRD_OUT, "0"), (SRD_V, "0")]):
                lab = f"L_touch{w}"
                e(f"s_cmp_lg_u32 s{S_W}, {w}")
                e(f"s_cbranch_scc1 {lab}")
                if so is None:
                    e(f"s_lshl_b32 s{S_T0}, s{S_X8}, 19")
                    e(f"buffer_load_dword v247, v12, {srd(sr)}, s{S_T0} offen")
                elif isinstance(so, int):
                    e(f"s_mov_b32 s{S_T0}, {so:#x}")
                    e(f"buffer_load_dword v247, v12, {srd(sr)}, s{S_T0} offen sc1")
                else:
                    e(f"buffer_load_dword v247, v12, {srd(sr)}, 0 offen nt")
                e.label(lab)
    e("s_waitcnt lgkmcnt(0)")
    e(f"s_add_u32 s{S_TAG}, s{S_EPOCH}, 0x0101")
    e(f"s_and_b32 s{S_T0}, s{S_TAG}, 0xffff")
    e(f"v_mov_b32 v{V_T16}, s{S_T0}")
    e(f"s_and_b32 s{S_T0}, s{S_TAG}, 0xff")
    e(f"v_mov_b32 v{V_T8}, s{S_T0}")

    e.wait_vm(m_x)
    stamp("x_got")
    F = 52
    for i in range(4):
        e(f"v_lshlrev_b32 v{F+2*i}, 16, v{XR+i}")
        e(f"v_and_b32 v{F+2*i+1}, s{S_M16}, v{XR+i}")
    e(f"v_add_f32 v60, v{F}, v{F+1}")
    e(f"v_add_f32 v61, v{F+2}, v{F+3}")
    e(f"v_add_f32 v62, v{F+4}, v{F+5}")
    e(f"v_add_f32 v63, v{F+6}, v{F+7}")
    e("v_add_f32 v60, v60, v61")
    e("v_add_f32 v62, v62, v63")
    e("v_add_f32 v60, v60, v62")
    pump(cfg.ln_k[0], pace=False)
    wave_sum_to_sgpr(60, S_T0)
    e(f"v_mov_b32 v61, s{S_T0}")
    e(f"v_mul_f32 v61, {f2u(1.0/512):#x}, v61")
    for i in range(8): e(f"v_sub_f32 v{64+i}, v{F+i}, v61")
    e("v_mul_f32 v60, v64, v64")
    for i in range(1, 8): e(f"v_fmac_f32 v60, v{64+i}, v{64+i}")
    pump(cfg.ln_k[1], pace=False)
    wave_sum_to_sgpr(60, S_T1)
    e(f"v_mov_b32 v62, s{S_T1}")
    e(f"v_mul_f32 v62, {f2u(1.0/512):#x}, v62")
    rne_single(62, 62)
    e(f"v_add_f32 v62, {f2u(1e-5):#x}, v62")
    rne_single(62, 62)
    e("v_sqrt_f32 v62, v62")
    rne_single(62, 62)
    rne_single(61, 61)
    e("v_rcp_f32 v63, v62")
    e("v_fma_f32 v60, -v62, v63, 1.0")
    e("v_fma_f32 v63, v60, v63, v63")
    for i in range(8): e(f"v_sub_f32 v{64+i}, v{F+i}, v61")
    for i in range(4): e(f"v_cvt_pk_bf16_f32 v{72+i}, v{64+2*i}, v{64+2*i+1}")
    for i in range(4):
        e(f"v_lshlrev_b32 v{64+2*i}, 16, v{72+i}")
        e(f"v_and_b32 v{64+2*i+1}, s{S_M16}, v{72+i}")
    for i in range(8): e(f"v_mul_f32 v{F+i}, v{64+i}, v63")
    for i in range(8): e(f"v_fma_f32 v{64+i}, -v{F+i}, v62, v{64+i}")
    for i in range(8): e(f"v_fma_f32 v{F+i}, v{64+i}, v63, v{F+i}")
    for i in range(4): e(f"v_cvt_pk_bf16_f32 v{72+i}, v{F+2*i}, v{F+2*i+1}")
    e(f"s_mul_i32 s{S_T0}, s{S_W}, {XN_STRIDE}")
    e(f"v_add_u32 v60, s{S_T0}, v{V_L16}")
    e(f"ds_write_b128 v60, v[72:75] offset:{L_XN}")
    pump(cfg.ln_k[2], pace=False)
    e("v_and_b32 v14, 7, v0")
    e(f"v_mul_u32_u24 v14, {XN_STRIDE}, v14")
    e("v_lshrrev_b32 v12, 4, v0")
    e("v_lshl_add_u32 v14, v12, 4, v14")
    e(f"s_lshl_b32 s{S_T0}, s{S_KP}, 8")
    e(f"v_add_u32 v14, s{S_T0}, v14")
    a_addr(13)
    e(f"s_lshl_b32 s{S_T0}, s{S_X8}, 2")
    e(f"s_add_u32 s{S_T0}, s{S_T0}, s{S_KP}")
    e(f"s_lshl_b32 s{S_T0}, s{S_T0}, 11")
    e(f"s_lshr_b32 s{S_T1}, s{S_JJ}, 2")
    e(f"s_lshl_b32 s{S_T1}, s{S_T1}, 8")
    e(f"s_add_u32 s{S_T0}, s{S_T0}, s{S_T1}")
    e(f"s_add_u32 s{S_T0}, s{S_T0}, {WS_Q:#x}")
    e(f"s_lshl_b32 s{S_T1}, s{S_MAT}, 2")
    e(f"s_add_u32 s{S_T1}, s{S_T1}, s{S_KP}")
    e(f"s_mul_i32 s{S_T1}, s{S_T1}, {8*7168}")
    e(f"s_lshl_b32 s{S_T2}, s{S_CT2}, 8")
    e(f"s_add_u32 s{S_T1}, s{S_T1}, s{S_T2}")
    e(f"s_add_u32 s{S_T1}, s{S_T1}, {WS_G:#x}")
    e(f"s_cmp_lt_u32 s{S_W}, 4")
    e(f"s_cselect_b32 s{S_T0}, s{S_T0}, s{S_T1}")
    e(f"s_movk_i32 s{S_T4}, 7168")
    e(f"s_cselect_b32 s{S_T2}, {8*4*2048}, s{S_T4}")
    e(f"s_cselect_b32 s{S_T3}, 0, 16384")
    e(f"s_and_b32 s{S_T1}, s{S_W}, 3")
    e(f"s_lshl_b32 s{S_T1}, s{S_T1}, 6")
    e(f"s_add_u32 s{S_T0}, s{S_T0}, s{S_T1}")
    e("v_and_b32 v20, 15, v0")
    e(f"v_mul_lo_u32 v20, v20, s{S_T2}")
    e("v_lshl_add_u32 v20, v12, 4, v20")
    e(f"v_add_u32 v13, s{S_T3}, v13")
    e.wait_vm(m_t2, " lgkmcnt(0)")
    e("s_barrier")
    stamp("B1")
    with Optional():
        e(f"s_cmp_ge_u32 s{S_IDX}, 56")
        e(f"s_cselect_b32 s{S_T1}, 4, 8")
        e(f"s_cmp_ge_u32 s{S_W}, s{S_T1}")
        e("s_cbranch_scc1 L_no_proj")
        b_frags(64, 14, L_XN)
        a_frags(48, 13, L_T1)
        e("s_waitcnt lgkmcnt(0)")
        mfma_tag_store(16, 48, 64, 20, S_T0, store='s' not in cfg.abl)
        e.label("L_no_proj")
    stamp("proj")

    if cfg.t3x:
        e(f"s_cmp_gt_u32 s{S_X8}, 3")
        e(f"s_subb_u32 s{S_T0}, s{S_X8}, 0")
        e(f"s_cmp_gt_u32 s{S_X8}, 5")
        e(f"s_subb_u32 s{S_T0}, s{S_T0}, 0")
        e(f"s_mul_i32 s{S_T0}, s{S_T0}, 19")
        e(f"s_sub_u32 s{S_T1}, s{S_JJ}, 9")
        e(f"s_add_u32 s{S_T3IDX}, s{S_T0}, s{S_T1}")
        e(f"s_cmp_ge_u32 s{S_T1}, 19")
        e(f"s_cselect_b32 s{S_T3IDX}, 999, s{S_T3IDX}")
        e(f"s_cmp_eq_u32 s{S_X8}, 3")
        e(f"s_cselect_b32 s{S_T3IDX}, 999, s{S_T3IDX}")
        e(f"s_cmp_eq_u32 s{S_X8}, 5")
        e(f"s_cselect_b32 s{S_T3IDX}, 999, s{S_T3IDX}")
    else:
        e(f"s_sub_u32 s{S_T1}, s{S_JJ}, {cfg.t3lo}")
        e(f"s_lshl_b32 s{S_T3IDX}, s{S_T1}, 3")
        e(f"s_add_u32 s{S_T3IDX}, s{S_T3IDX}, s{S_X8}")
        e(f"s_cmp_ge_u32 s{S_T1}, 14")
        e(f"s_cselect_b32 s{S_T3IDX}, 999, s{S_T3IDX}")
    def t3_skip(label):
        if 't' in cfg.abl:
            e(f"s_branch {label}")
        else:
            e(f"s_cmp_ge_u32 s{S_T3IDX}, 112")
            e(f"s_cbranch_scc1 {label}")
    def wd_hook():
        with Optional():
            t3_skip("L_no_wd")
            e(f"s_lshr_b32 s{S_FR}, s{S_T3IDX}, 3")
            e(f"s_and_b32 s{S_CT3}, s{S_T3IDX}, 7")
            e(f"s_lshl_b32 s{S_T1}, s{S_FR}, 17")
            e(f"s_lshl_b32 s{S_T2}, s{S_CT3}, 7")
            e(f"s_add_u32 s{S_T1}, s{S_T1}, s{S_T2}")
            e(f"s_lshl_b32 s{S_T2}, s{S_W}, 14")
            e(f"s_add_u32 s{S_T1}, s{S_T1}, s{S_T2}")
            tile_voff(12, 1024)
            if 'E' in cfg.abl:
                e(f"s_bitcmp1_b32 s{S_X8}, 0")
                e("s_cbranch_scc1 L_no_wd2")
                e(f"s_xor_b32 s{S_T2}, s{S_T1}, 128")
                tile_dma(SRD_WD, 12, S_T2, 8192, L_WD)
                tile_dma(SRD_WD, 12, S_T1, 8192, L_WD)
                e.label("L_no_wd2")
            else:
                tile_dma(SRD_WD, 12, S_T1, 8192, L_WD)
            e(f"s_lshl_b32 s{S_T3OFF}, s{S_CT3}, 2")
            e(f"s_and_b32 s{S_T0}, s{S_W}, 3")
            e(f"s_add_u32 s{S_T3OFF}, s{S_T3OFF}, s{S_T0}")
            e(f"s_lshl_b32 s{S_T3OFF}, s{S_T3OFF}, 10")
            e(f"s_lshl_b32 s{S_T0}, s{S_FR}, 6")
            e(f"s_add_u32 s{S_T3OFF}, s{S_T3OFF}, s{S_T0}")
            e(f"s_add_u32 s{S_T3OFF}, s{S_T3OFF}, {WS_D:#x}")
            e(f"s_mul_i32 s{S_T1}, s{S_W}, 7168")
            e(f"s_lshl_b32 s{S_T2}, s{S_FR}, 9")
            e(f"s_add_u32 s{S_T1}, s{S_T1}, s{S_T2}")
            e(f"s_add_u32 s{S_HOFF}, s{S_T1}, {WS_H:#x}")
            e.label("L_no_wd")
    GR = V_S
    e(f"s_sub_u32 s{S_RED}, s{S_JJ}, 28")
    e(f"s_lshl_b32 s{S_RED}, s{S_RED}, 3")
    e(f"s_add_u32 s{S_RED}, s{S_RED}, s{S_X8}")
    e(f"s_cmp_ge_u32 s{S_JJ}, 28")
    e(f"s_cselect_b32 s{S_RED}, s{S_RED}, 99")
    def g_addr():
        e("v_lshrrev_b32 v12, 4, v0")
        e(f"v_mul_u32_u24 v12, {8*7168}, v12")
        e("v_and_b32 v13, 15, v0")
        e("v_lshl_add_u32 v12, v13, 4, v12")
        e(f"s_mul_i32 s{S_T1}, s{S_W}, 7168")
        e(f"s_lshl_b32 s{S_T2}, s{S_RED}, 8")
        e(f"s_add_u32 s{S_T1}, s{S_T1}, s{S_T2}")
        e(f"s_add_u32 s{S_T1}, s{S_T1}, {WS_G:#x}")
    def g_loads():
        e(f"buffer_load_dwordx4 {vr(GR)}, v12, {srd(SRD_WS)}, s{S_T1} offen sc1")
        e(f"s_add_u32 s{S_T2}, s{S_T1}, {4 * 8 * 7168}")
        e(f"buffer_load_dwordx4 {vr(GR+4)}, v12, {srd(SRD_WS)}, s{S_T2} offen sc1")
    m_g = [None]
    def g_hook():
        with Optional():
            e(f"s_cmp_ge_u32 s{S_RED}, 28")
            e("s_cbranch_scc1 L_no_gred_ld")
            g_addr()
            g_loads()
            e.label("L_no_gred_ld")
        m_g[0] = e.mark()
    def gred_hook():
        with Optional():
            e(f"s_cmp_ge_u32 s{S_RED}, 28")
            e("s_cbranch_scc1 L_no_gred")
            e.wait_vm(m_g[0])
            gather_checked("g", g_loads, list(range(GR, GR + 8)), 48, V_T8, 0xff, pre=g_addr)
            G_, U_ = GR, GR + 4
            for i in range(4): e(f"v_permlane32_swap_b32 v{G_+i}, v{U_+i}")
            for i in range(4): e(f"v_add_f32 v{G_+i}, v{G_+i}, v{U_+i}")
            e(f"v_permlane16_swap_b32 v{G_}, v{G_+1}")
            e(f"v_permlane16_swap_b32 v{G_+2}, v{G_+3}")
            e(f"v_add_f32 v{G_}, v{G_}, v{G_+1}")
            e(f"v_add_f32 v{G_+2}, v{G_+2}, v{G_+3}")
            e(f"v_mov_b32 v{U_}, v{G_}")
            e(f"v_mov_b32 v{U_+1}, v{G_+2}")
            e(f"v_permlane32_swap_b32 v{G_}, v{U_}")
            e(f"v_permlane32_swap_b32 v{G_+2}, v{U_+1}")
            e(f"v_cvt_pk_bf16_f32 v48, v{G_}, v{G_+2}")
            e(f"v_cvt_pk_bf16_f32 v49, v{U_}, v{U_+1}")
            e("v_lshlrev_b32 v50, 16, v48")
            e(f"v_and_b32 v51, s{S_M16}, v48")
            e(f"v_mul_f32 v50, {f2u(-LOG2E):#x}, v50")
            e(f"v_mul_f32 v51, {f2u(-LOG2E):#x}, v51")
            e("v_exp_f32 v50, v50")
            e("v_exp_f32 v51, v51")
            e("v_add_f32 v50, 1.0, v50")
            e("v_add_f32 v51, 1.0, v51")
            e("v_rcp_f32 v50, v50")
            e("v_rcp_f32 v51, v51")
            e("v_cvt_pk_bf16_f32 v48, v50, v51")
            e("v_lshlrev_b32 v50, 16, v48")
            e(f"v_and_b32 v51, s{S_M16}, v48")
            e("v_lshlrev_b32 v52, 16, v49")
            e(f"v_and_b32 v53, s{S_M16}, v49")
            e("v_mul_f32 v50, v50, v52")
            e("v_mul_f32 v51, v51, v53")
            e("v_cvt_pk_bf16_f32 v48, v50, v51")
            e(f"v_lshl_or_b32 v52, v48, 16, v{V_T16}")
            e(f"v_and_or_b32 v54, v48, s{S_M16}, v{V_T16}")
            e("v_mov_b32 v53, v52")
            e("v_mov_b32 v55, v54")
            e("v_mov_b32 v56, v52")
            e("v_mov_b32 v57, v54")
            e("v_permlane16_swap_b32 v56, v53")
            e("v_permlane16_swap_b32 v57, v55")
            e(f"s_mul_i32 s{S_T1}, s{S_W}, 7168")
            e(f"s_lshl_b32 s{S_T2}, s{S_RED}, 8")
            e(f"s_add_u32 s{S_T1}, s{S_T1}, s{S_T2}")
            e(f"s_add_u32 s{S_T1}, s{S_T1}, {WS_H:#x}")
            exec_set(0xffff, 0)
            e(f"buffer_store_dwordx4 v[52:55], v{V_L16}, {srd(SRD_WS)}, s{S_T1} offen sc1")
            exec_full()
            e("s_nop 1")
            e.label("L_no_gred")
    hooks.setdefault(cfg.wd_at, []).append(wd_hook)
    hooks.setdefault(cfg.g_at, []).append(g_hook)
    hooks.setdefault(cfg.gred_at, []).append(gred_hook)
    assert pos[0] < min(cfg.wd_at, cfg.g_at)
    pump(64, upto=32)

    QL = V_ACC
    TG = V_S + 24
    def q_addr():
        e(f"s_lshl_b32 s{S_T0}, s{S_X8}, 3")
        e(f"s_lshr_b32 s{S_T1}, s{S_JJ}, 2")
        e(f"s_add_u32 s{S_T0}, s{S_T0}, s{S_T1}")
        e(f"s_lshl_b32 s{S_T0}, s{S_T0}, 3")
        e(f"s_add_u32 s{S_T0}, s{S_T0}, s{S_W}")
        e(f"s_lshl_b32 s{S_T0}, s{S_T0}, 10")
        e(f"s_add_u32 s{S_T0}, s{S_T0}, {WS_Q:#x}")
    def q_loads():
        e(f"buffer_load_dwordx4 {vr(QL)}, v{V_L16}, {srd(SRD_WS)}, s{S_T0} offen sc1")
    def h_loads():
        e(f"buffer_load_dwordx4 {vr(TG)}, v{V_L16}, {srd(SRD_WS)}, s{S_HOFF} offen sc1")
    q_addr()
    q_loads()
    m_q = e.mark()
    with Optional():
        t3_skip("L_no_h_ld")
        exec_set(0xffffffff, 0)
        h_loads()
        exec_full()
        e.label("L_no_h_ld")
    m_h = e.mark()
    pump(8)
    e.wait_vm(m_q)
    gather_checked("q", q_loads, list(range(QL, QL + 4)), 56, V_T8, 0xff, pre=q_addr)
    e(f"s_lshl_b32 s{S_T0}, s{S_W}, 10")
    e(f"s_add_u32 s{S_T0}, s{S_T0}, {L_QS}")
    e(f"v_add_u32 v12, s{S_T0}, v{V_L16}")
    e(f"ds_write_b128 v12, {vr(QL)}")
    with Optional():
        t3_skip("L_no_t3a")
        e.wait_vm(m_h)
        exec_set(0xffffffff, 0)
        gather_checked("h", h_loads, list(range(TG, TG + 4)), TG + 4, V_T16, 0xffff)
        e(f"v_perm_b32 v{TG+4}, v{TG+1}, v{TG}, s{S_SELHI}")
        e(f"v_perm_b32 v{TG+5}, v{TG+3}, v{TG+2}, s{S_SELHI}")
        e(f"s_mul_i32 s{S_T0}, s{S_W}, {ACT_STRIDE}")
        e("v_lshlrev_b32 v12, 3, v0")
        e(f"v_add_u32 v12, s{S_T0}, v12")
        e(f"ds_write_b64 v12, {vr(TG+4,2)} offset:{L_ACT2}")
        exec_full()
        e.label("L_no_t3a")
    e("v_and_b32 v13, 3, v0")
    e("v_lshlrev_b32 v13, 9, v13")
    e("v_lshrrev_b32 v15, 2, v0")
    e("v_lshl_add_u32 v13, v15, 5, v13")
    e(f"v_add_u32 v13, {L_QS}, v13")
    e("s_waitcnt lgkmcnt(0)")
    if "q" not in cfg.abl: e("s_barrier")
    for kp in range(4):
        e(f"ds_read_b128 {vr(48+8*kp)}, v13 offset:{2048*kp}")
        e(f"ds_read_b128 {vr(48+8*kp+4)}, v13 offset:{2048*kp + 16}")
    e("s_waitcnt lgkmcnt(0)")
    for i in range(8):
        e(f"v_add_f32 v{48+i}, v{48+i}, v{56+i}")
        e(f"v_add_f32 v{64+i}, v{64+i}, v{72+i}")
    for i in range(8): e(f"v_add_f32 v{48+i}, v{48+i}, v{64+i}")
    for i in range(4): e(f"v_cvt_pk_bf16_f32 v{V_Q+i}, v{48+2*i}, v{48+2*i+1}")
    stamp("q_ok")
    prio_point("BQ")
    def tile_addr(vb, vs, pstride):
        e(f"v_and_b32 v{vb}, 7, v0")
        e(f"v_mul_u32_u24 v{vb}, {ACT_STRIDE}, v{vb}")
        e(f"v_lshrrev_b32 v{vs}, 4, v0")
        e(f"v_lshl_add_u32 v{vb}, v{vs}, 4, v{vb}")
        e(f"v_lshlrev_b32 v{vs}, 4, v{vs}")
        e(f"v_and_b32 v15, 15, v0")
        e(f"v_mul_u32_u24 v15, {32*pstride}, v15")
        e(f"v_add_u32 v{vs}, v{vs}, v15")
    with Optional():
        t3_skip("L_no_t3b")
        e(f"s_cmp_ge_u32 s{S_W}, 4")
        e("s_cbranch_scc1 L_no_t3b")
        a_addr(12)
        tile_addr(13, 14, 1024)
        a_frags(48, 12, L_WD)
        b_frags(64, 13, L_ACT2)
        e("s_waitcnt lgkmcnt(0)")
        mfma_tag_store(16, 48, 64, 14, S_T3OFF)
        e("s_nop 1")
        e.label("L_no_t3b")

    for t in range(4):
        for n in range(8):
            e(f"v_mfma_f32_16x16x32_bf16 {vr(V_ACC+4*n)}, {vr(SLOT(t)+4*n)}, {vr(V_Q)}, 0")
        pump(2, upto=48)
        for n in range(8):
            d = V_ACC + 4 * n
            e(f"v_add_f32_dpp v{V_S+8*t+n}, v{d+1}, v{d} row_shl:4 row_mask:0xf bank_mask:0xf bound_ctrl:0")
        for n in range(8):
            d = V_ACC + 4 * n
            e(f"v_add_f32_dpp v{V_S+8*t+n}, v{d+2}, v{V_S+8*t+n} row_shl:8 row_mask:0xf bank_mask:0xf bound_ctrl:0")
        for n in range(8):
            d = V_ACC + 4 * n
            e(f"v_add_f32_dpp v{V_S+8*t+n}, v{d+3}, v{V_S+8*t+n} row_shl:12 row_mask:0xf bank_mask:0xf bound_ctrl:0")
    stamp("S_done")
    pump(2, upto=56)
    if cfg.mimic:
        e(f"s_mov_b32 s{S_T0}, {f2u(SCALE):#x}")
        for rep in range(2):
            for m in range(16): e(f"v_cvt_pk_bf16_f32 v{V_ACC+m}, v{V_S+2*m}, v{V_S+2*m+1}")
            for m in range(16):
                e(f"v_lshlrev_b32 v{V_S+2*m}, 16, v{V_ACC+m}")
                e(f"v_and_b32 v{V_S+2*m+1}, s{S_M16}, v{V_ACC+m}")
            if rep == 0:
                for n in range(32): e(f"v_mul_f32 v{V_S+n}, s{S_T0}, v{V_S+n}")
            pump(1, upto=56)
        cexp = LOG2E
    else:
        cexp = LOG2E * SCALE
    e(f"v_max3_f32 v12, v{V_S}, v{V_S+1}, v{V_S+2}")
    for n in range(3, 31, 2): e(f"v_max3_f32 v12, v12, v{V_S+n}, v{V_S+n+1}")
    e(f"v_max_f32 v12, v12, v{V_S+31}")
    xrow_reduce("v_max_f32", [12], [13])
    e(f"s_lshl_b32 s{S_T0}, s{S_W}, 4")
    e("v_and_b32 v14, 3, v0")
    e("v_lshlrev_b32 v14, 2, v14")
    e(f"v_add_u32 v15, s{S_T0}, v14")
    exec_set(0xf, 0)
    e(f"ds_write_b32 v15, v12 offset:{L_MAX}")
    exec_full()
    e("s_waitcnt lgkmcnt(0)")
    if "4" not in cfg.abl: e("s_barrier")
    prio_point("B4")
    for w in range(8): e(f"ds_read_b32 v{V_ACC+w}, v14 offset:{L_MAX + 16*w}")
    pump(1, upto=56)
    e("s_waitcnt lgkmcnt(0)")
    e(f"v_max3_f32 v12, v{V_ACC}, v{V_ACC+1}, v{V_ACC+2}")
    e(f"v_max3_f32 v12, v12, v{V_ACC+3}, v{V_ACC+4}")
    e(f"v_max3_f32 v12, v12, v{V_ACC+5}, v{V_ACC+6}")
    e(f"v_max_f32 v12, v12, v{V_ACC+7}")
    e(f"s_mov_b32 s{S_T0}, {f2u(cexp):#x}")
    e(f"v_mul_f32 v12, s{S_T0}, v12")
    e(f"v_and_b32 v{V_MP}, s{S_M8}, v12")
    e(f"v_sub_f32 v{V_NEGM}, 0, v{V_MP}")
    for n in range(32): e(f"v_fma_f32 v{V_S+n}, v{V_S+n}, s{S_T0}, v{V_NEGM}")
    pump(1, upto=56)
    for n in range(32): e(f"v_exp_f32 v{V_S+n}, v{V_S+n}")
    pump(1, upto=56)
    e(f"v_add_f32 v12, v{V_S}, v{V_S+1}")
    e(f"v_add_f32 v13, v{V_S+2}, v{V_S+3}")
    for n in range(4, 32, 2):
        e(f"v_add_f32 v12, v12, v{V_S+n}")
        e(f"v_add_f32 v13, v13, v{V_S+n+1}")
    e("v_add_f32 v12, v12, v13")
    for m in range(16): e(f"v_cvt_pk_bf16_f32 v{V_S+m}, v{V_S+2*m}, v{V_S+2*m+1}")
    xrow_reduce("v_add_f32", [12], [13])
    exec_set(0xf, 0)
    e(f"ds_write_b32 v15, v12 offset:{L_LS}")
    exec_full()
    pump(8, upto=56)
    e("s_waitcnt lgkmcnt(0)")
    if "5" not in cfg.abl: e("s_barrier")
    stamp("softmax")
    prio_point("B5")
    def ml_publish(R):
        with Optional():
            e(f"s_cmp_lg_u32 s{S_W}, {cfg.mlw}")
            e("s_cbranch_scc1 L_no_ml")
            e("v_mov_b32 v12, 0")
            for w in range(8): e(f"ds_read_b128 {vr(R+4*w)}, v12 offset:{L_LS + 16*w}")
            e("s_waitcnt lgkmcnt(0)")
            for w in range(1, 8):
                for i in range(4): e(f"v_add_f32 v{R+i}, v{R+i}, v{R+4*w+i}")
            for h in range(4): e(f"v_readlane_b32 s{S_T0+h}, v{V_MP}, {h}")
            for h in range(4): e(f"v_or_b32 v{R+4+h}, s{S_T0+h}, v{V_T8}")
            for h in range(4): e(f"v_and_or_b32 v{R+h}, v{R+h}, s{S_M8}, v{V_T8}")
            e(f"s_lshl_b32 s{S_T0}, s{S_CHUNK}, 5")
            e(f"s_add_u32 s{S_T0}, s{S_T0}, {WS_ML:#x}")
            exec_set(1, 0)
            e(f"buffer_store_dwordx4 {vr(R+4)}, v12, {srd(SRD_WS)}, s{S_T0} offen sc1")
            e(f"buffer_store_dwordx4 {vr(R)}, v12, {srd(SRD_WS)}, s{S_T0} offen offset:16 sc1")
            exec_full()
            e("s_nop 1")
            e.label("L_no_ml")


    if not cfg.ml_late: ml_publish(V_ACC)
    BT = V_S + 16
    def pv_tile(t, sprinkle=0):
        vs = SLOT(vslot[t])
        P = V_S + 4 * t
        def perms(ee):
            b = BT + 4 * (ee % 4)
            sel = S_SELLO if ee % 2 == 0 else S_SELHI
            for m in range(4):
                e(f"v_perm_b32 v{b+m}, v{vs+4*(2*m+1)+(ee>>1)}, v{vs+4*(2*m)+(ee>>1)}, s{sel}")
        perms(0); perms(1)
        for ee in range(8):
            b = BT + 4 * (ee % 4)
            c = "0" if t == 0 else vr(V_ACC + 4 * ee)
            e(f"v_mfma_f32_16x16x32_bf16 {vr(V_ACC+4*ee)}, {vr(P)}, {vr(b)}, {c}")
            if sprinkle: pump(1)
            if ee + 2 < 8: perms(ee + 2)
    e.wait_vm(mV[0]); pv_tile(0, sprinkle=1)
    assert pos[0] == 64
    e("v_bfe_u32 v12, v0, 3, 2")
    e("v_lshlrev_b32 v12, 17, v12")
    e("v_lshrrev_b32 v13, 5, v0")
    e("v_lshl_add_u32 v12, v13, 10, v12")
    e("v_and_b32 v13, 7, v0")
    e("v_lshrrev_b32 v14, 4, v0")
    e("v_lshlrev_b32 v14, 1, v14")
    e("v_xor_b32 v13, v13, v14")
    e("v_lshl_add_u32 v12, v13, 4, v12")
    e(f"s_lshl_b32 s{S_T0}, s{S_X8}, 19")
    e(f"s_lshr_b32 s{S_T1}, s{S_JJ}, 3")
    e(f"s_lshl_b32 s{S_T1}, s{S_T1}, 15")
    e(f"s_add_u32 s{S_T0}, s{S_T0}, s{S_T1}")
    e(f"s_and_b32 s{S_T1}, s{S_JJ}, 7")
    e(f"s_lshl_b32 s{S_T1}, s{S_T1}, 7")
    e(f"s_add_u32 s{S_T0}, s{S_T0}, s{S_T1}")
    e(f"s_lshl_b32 s{S_T1}, s{S_W}, 12")
    e(f"s_add_u32 s{S_T0}, s{S_T0}, s{S_T1}")
    tile_dma(SRD_WO, 12, S_T0, 2048, L_WO)
    m_wo = e.mark()
    ML = V_Z
    def ml_addr():
        e("v_lshrrev_b32 v12, 4, v0")
        e(f"s_lshl_b32 s{S_T0}, s{S_W}, 5")
        e(f"s_lshl_b32 s{S_T1}, s{S_X8}, 2")
        e(f"s_add_u32 s{S_T0}, s{S_T0}, s{S_T1}")
        e(f"v_add_u32 v12, s{S_T0}, v12")
        e("v_lshlrev_b32 v13, 5, v12")
        e(f"s_mov_b32 s{S_T3}, {WS_ML:#x}")
    def ml_loads():
        e(f"buffer_load_dwordx4 {vr(ML)}, v13, {srd(SRD_WS)}, s{S_T3} offen sc1")
        e(f"buffer_load_dwordx4 {vr(ML+4)}, v13, {srd(SRD_WS)}, s{S_T3} offen offset:16 sc1")
    ml_addr()
    ml_loads()
    m_ml = e.mark()
    if cfg.ml_late: ml_publish(SLOT(3))
    def wait_w2(mark, extra=""):
        if not cfg.ml_late:
            e.wait_vm(mark, extra); return
        n = e.vm - mark
        lab = f"L_w2_{len(e.ins)}"
        e(f"s_cmp_eq_u32 s{S_W}, 2")
        e(f"s_cbranch_scc1 {lab}a")
        e(f"s_waitcnt vmcnt({n}){extra}")
        e(f"s_branch {lab}b")
        e.label(f"{lab}a")
        e(f"s_waitcnt vmcnt({n+2}){extra}")
        e.label(f"{lab}b")
    stamp("PV0")
    wait_w2(mV[1]); pv_tile(1)
    wait_w2(mV[2]); pv_tile(2)
    A_OC, A_OG, A_ACT, A_TB, A_TS, A_TA = 232, 233, 234, 235, 236, 237
    e(f"s_lshl_b32 s{S_T0}, s{S_W}, 11")
    e(f"v_add_u32 v{A_OC}, s{S_T0}, v{V_L16}")
    e("v_lshrrev_b32 v12, 4, v0")
    e(f"s_lshl_b32 s{S_T0}, s{S_W}, 5")
    e(f"s_lshl_b32 s{S_T1}, s{S_X8}, 2")
    e(f"s_add_u32 s{S_T0}, s{S_T0}, s{S_T1}")
    e(f"v_add_u32 v12, s{S_T0}, v12")
    e("v_lshlrev_b32 v12, 11, v12")
    e("v_and_b32 v13, 15, v0")
    e(f"v_lshl_add_u32 v{A_OG}, v13, 4, v12")
    S_OG, S_YOFF = 59, 60
    e(f"s_lshr_b32 s{S_OG}, s{S_JJ}, 3")
    e(f"s_lshl_b32 s{S_OG}, s{S_OG}, 9")
    e(f"s_add_u32 s{S_OG}, s{S_OG}, {WS_O:#x}")
    e(f"s_mul_i32 s{S_T0}, s{S_W}, {ACT_STRIDE}")
    e("v_lshlrev_b32 v13, 3, v13")
    e("v_lshrrev_b32 v12, 4, v0")
    e("v_lshl_add_u32 v13, v12, 1, v13")
    e(f"v_add_u32 v{A_ACT}, s{S_T0}, v13")
    e("v_lshrrev_b32 v12, 4, v0")
    e(f"s_mul_i32 s{S_T0}, s{S_W}, {ACT_STRIDE}")
    e(f"v_lshlrev_b32 v{A_TB}, 4, v12")
    e(f"v_add_u32 v{A_TB}, s{S_T0}, v{A_TB}")
    e("v_and_b32 v13, 15, v0")
    e(f"v_lshlrev_b32 v{A_TS}, 11, v13")
    e(f"v_lshl_add_u32 v{A_TS}, v12, 4, v{A_TS}")
    e(f"s_and_b32 s{S_YOFF}, s{S_JJ}, 7")
    e(f"s_lshl_b32 s{S_YOFF}, s{S_YOFF}, 2")
    e(f"s_lshl_b32 s{S_T0}, s{S_W}, 5")
    e(f"s_add_u32 s{S_YOFF}, s{S_YOFF}, s{S_T0}")
    e(f"s_lshl_b32 s{S_YOFF}, s{S_YOFF}, 11")
    e(f"s_lshl_b32 s{S_T0}, s{S_X8}, 2")
    e(f"s_lshr_b32 s{S_T1}, s{S_JJ}, 3")
    e(f"s_add_u32 s{S_T0}, s{S_T0}, s{S_T1}")
    e(f"s_lshl_b32 s{S_T0}, s{S_T0}, 6")
    e(f"s_add_u32 s{S_YOFF}, s{S_YOFF}, s{S_T0}")
    e(f"s_add_u32 s{S_YOFF}, s{S_YOFF}, {WS_Y:#x}")
    A_TR = 224
    e("v_bfe_u32 v13, v0, 2, 2")
    e("v_lshl_add_u32 v14, v12, 3, v13")
    e("v_lshlrev_b32 v14, 7, v14")
    e("v_and_b32 v15, 3, v0")
    e("v_lshl_add_u32 v14, v15, 3, v14")
    e("v_lshrrev_b32 v13, 1, v13")
    e(f"v_lshl_add_u32 v{A_TR}, v13, 5, v14")
    e("v_add_u32 v13, 2, v13")
    e("v_and_b32 v13, 3, v13")
    e(f"v_lshl_add_u32 v{A_TR+4}, v13, 5, v14")
    e(f"v_add_u32 v{A_TR+4}, 512, v{A_TR+4}")
    for cg in range(1, 4):
        e(f"v_xor_b32 v{A_TR+cg}, {cg << 5}, v{A_TR}")
        e(f"v_xor_b32 v{A_TR+4+cg}, {cg << 5}, v{A_TR+4}")
    e("v_lshrrev_b32 v13, 4, v0")
    e(f"s_lshl_b32 s{S_T0}, s{S_W}, 2")
    e(f"v_add_u32 v13, s{S_T0}, v13")
    e("v_and_b32 v14, 15, v0")
    e("v_lshlrev_b32 v238, 8, v13")
    e("v_lshl_add_u32 v238, v14, 4, v238")
    e("v_lshl_add_u32 v13, v14, 3, v13")
    e("v_lshlrev_b32 v239, 4, v13")
    e(f"s_lshl_b32 s{S_HOFF}, s{S_CHUNK}, 11")
    e(f"s_add_u32 s{S_HOFF}, s{S_HOFF}, {WS_O:#x}")
    wait_w2(mV[3]); pv_tile(3)
    stamp("PV3")

    exec_set(0xffff, 0)
    for ee in range(8): e(f"ds_write_b128 v{A_OC}, {vr(V_ACC+4*ee)} offset:{L_OC + 256*ee}")
    exec_full()
    wait_w2(m_ml, " lgkmcnt(0)")
    e("s_barrier")
    OG = V_S + 8
    TM = V_S + 16
    WT = V_S
    TA = SLOT(0)
    TB = SLOT(0) + 16
    TD = SLOT(1)
    with Optional():
        e(f"s_cmp_gt_u32 s{S_W}, 1")
        e("s_cbranch_scc1 L_no_opub")
        for w in range(8): e(f"ds_read_b128 {vr(V_ACC+4*w)}, v238 offset:{L_OC + 2048*w}")
        e("s_waitcnt lgkmcnt(0)")
        for i in range(4):
            e(f"v_add_f32 v{V_ACC+i}, v{V_ACC+i}, v{V_ACC+4+i}")
            e(f"v_add_f32 v{V_ACC+8+i}, v{V_ACC+8+i}, v{V_ACC+12+i}")
            e(f"v_add_f32 v{V_ACC+16+i}, v{V_ACC+16+i}, v{V_ACC+20+i}")
            e(f"v_add_f32 v{V_ACC+24+i}, v{V_ACC+24+i}, v{V_ACC+28+i}")
        for i in range(4):
            e(f"v_add_f32 v{V_ACC+i}, v{V_ACC+i}, v{V_ACC+8+i}")
            e(f"v_add_f32 v{V_ACC+16+i}, v{V_ACC+16+i}, v{V_ACC+24+i}")
        for i in range(4): e(f"v_add_f32 v{V_ACC+i}, v{V_ACC+i}, v{V_ACC+16+i}")
        if cfg.rnd:
            for i in range(4): e(f"v_add_u32 v{V_ACC+i}, 0x80, v{V_ACC+i}")
        for i in range(4): e(f"v_and_or_b32 v{V_ACC+i}, v{V_ACC+i}, s{S_M8}, v{V_T8}")
        e(f"buffer_store_dwordx4 {vr(V_ACC)}, v239, {srd(SRD_WS)}, s{S_HOFF} offen sc1")
        e.label("L_no_opub")
    stamp("O_pub")

    OA, OB = 208, 216
    def o_loads(r=OG):
        e(f"buffer_load_dwordx4 {vr(r)}, v{A_OG}, {srd(SRD_WS)}, s{S_OG} offen sc1")
        e(f"buffer_load_dwordx4 {vr(r+4)}, v{A_OG}, {srd(SRD_WS)}, s{S_OG} offen offset:256 sc1")
    o_loads(OA if cfg.ppoll else OG)
    TA = SLOT(0)
    for cg in range(4):
        for t in range(4):
            e(f"ds_read_b64_tr_b16 {vr(TA+16*cg+4*t,2)}, v{A_TR+cg} offset:{L_WO + 4096*t}")
            e(f"ds_read_b64_tr_b16 {vr(TA+16*cg+4*t+2,2)}, v{A_TR+4+cg} offset:{L_WO + 4096*t}")
    gather_checked("ml", ml_loads, list(range(ML, ML + 8)), TM, V_T8, 0xff, pre=ml_addr)
    for h in range(4): e(f"v_mov_b32 v{TM+h}, v{ML+h}")
    xrow_reduce("v_max_f32", [TM + h for h in range(4)], [TM + 4 + h for h in range(4)])
    for h in range(4): e(f"v_sub_f32 v{WT+h}, v{ML+h}, v{TM+h}")
    for h in range(4): e(f"v_exp_f32 v{WT+h}, v{WT+h}")
    for h in range(4): e(f"v_mul_f32 v{TM+h}, v{WT+h}, v{ML+4+h}")
    xrow_reduce("v_add_f32", [TM + h for h in range(4)], [TM + 4 + h for h in range(4)])
    for h in range(4): e(f"v_rcp_f32 v{TM+4+h}, v{TM+h}")
    for h in range(4): e(f"v_fma_f32 v{TM+8+h}, -v{TM+h}, v{TM+4+h}, 1.0")
    for h in range(4): e(f"v_fma_f32 v{TM+4+h}, v{TM+8+h}, v{TM+4+h}, v{TM+4+h}")
    for h in range(4): e(f"v_mul_f32 v{WT+h}, v{WT+h}, v{TM+4+h}")
    if cfg.ppoll:
        poll_pipelined("o", lambda: o_loads(OA), lambda: o_loads(OB), list(range(OA, OA + 8)), list(range(OB, OB + 8)), list(range(OG, OG + 8)), 2, TM, V_T8, 0xff)
    else:
        e("s_waitcnt vmcnt(0)")
        gather_checked("o", o_loads, list(range(OG, OG + 8)), TM, V_T8, 0xff)
    stamp("O_got")
    for u in range(2):
        for h in range(4): e(f"v_mul_f32 v{OG+4*u+h}, v{OG+4*u+h}, v{WT+h}")
    for u in range(2):
        o = OG + 4 * u
        e(f"v_permlane32_swap_b32 v{o}, v{o+2}")
        e(f"v_permlane32_swap_b32 v{o+1}, v{o+3}")
    for u in range(2):
        o = OG + 4 * u
        e(f"v_add_f32 v{o}, v{o}, v{o+2}")
        e(f"v_add_f32 v{o+1}, v{o+1}, v{o+3}")
    for u in range(2):
        o = OG + 4 * u
        e(f"v_permlane16_swap_b32 v{o}, v{o+1}")
    for u in range(2):
        o = OG + 4 * u
        e(f"v_add_f32 v{o}, v{o}, v{o+1}")
    e(f"v_cvt_pk_bf16_f32 v{OG}, v{OG}, v{OG+4}")
    e(f"ds_write_b16 v{A_ACT}, v{OG} offset:{L_ACT}")
    e(f"ds_write_b16_d16_hi v{A_ACT}, v{OG} offset:{L_ACT + 128}")
    e("s_waitcnt lgkmcnt(0)")
    TB = 144
    TD = 160
    b_frags(TB, A_TB, L_ACT)
    e("s_waitcnt lgkmcnt(0)")
    for t in range(4):
        for cg in range(4):
            c = "0" if t == 0 else vr(TD + 4 * cg)
            e(f"v_mfma_f32_16x16x32_bf16 {vr(TD+4*cg)}, {vr(TA+16*cg+4*t)}, {vr(TB+4*t)}, {c}")
    e("v_and_b32 v13, 15, v0")
    for cg in range(1, 4):
        e(f"v_cmp_eq_u32 vcc, {cg}, v13")
        for i in range(4): e(f"v_cndmask_b32 v{TD+i}, v{TD+i}, v{TD+4*cg+i}, vcc")
    exec_set(0x000f000f, 0x000f000f)
    if cfg.rnd:
        for i in range(4): e(f"v_add_u32 v{TD+i}, 0x80, v{TD+i}")
    for i in range(4): e(f"v_and_or_b32 v{TD+i}, v{TD+i}, s{S_M8}, v{V_T8}")
    with Optional():
        e(f"buffer_store_dwordx4 {vr(TD)}, v{A_TS}, {srd(SRD_WS)}, s{S_YOFF} offen sc1")
    exec_full()
    stamp("y_pub")

    if cfg.finbar: e("s_barrier")
    FW = cfg.fw
    e(f"s_cmp_lg_u32 s{S_W}, s{S_X8}" if FW < 0 else f"s_cmp_lg_u32 s{S_W}, {FW}")
    e("s_cbranch_scc1 L_end")
    Y = 16
    DD = 24
    e(f"s_lshl_b32 s{S_T0}, s{S_CHUNK}, 11")
    e(f"s_add_u32 s{S_T0}, s{S_T0}, {WS_Y:#x}")
    e(f"s_lshl_b32 s{S_T1}, s{S_CHUNK}, 10")
    e(f"s_add_u32 s{S_T1}, s{S_T1}, {WS_D:#x}")
    FA, FB = 176, 192
    nfin = [0]
    def fin_loads(r=Y):
        for i in range(4): e(f"v_mov_b32 v{r+8+i}, v{V_T8}")
        for i in range(2):
            e(f"buffer_load_dwordx4 {vr(r+4*i)}, v{V_L16}, {srd(SRD_WS)}, s{S_T0} offen offset:{1024*i} sc1")
        e(f"s_mov_b64 s[{S_EXT}:{S_EXT+1}], exec")
        e("s_and_b32 exec_hi, exec_hi, 0xffffff")
        e(f"s_cbranch_execz L_fin_nod{nfin[0]}")
        e(f"buffer_load_dwordx4 {vr(r+8)}, v{V_L16}, {srd(SRD_WS)}, s{S_T1} offen sc1")
        e.label(f"L_fin_nod{nfin[0]}"); nfin[0] += 1
        e(f"s_mov_b64 exec, s[{S_EXT}:{S_EXT+1}]")
    e("v_and_b32 v13, 3, v0")
    e("v_bfe_u32 v14, v0, 4, 1")
    e("v_lshl_add_u32 v14, v13, 2, v14")
    e("v_lshlrev_b32 v14, 1, v14")
    e(f"s_lshl_b32 s{S_T2}, s{S_CHUNK}, 5")
    with Optional():
        e(f"buffer_load_ushort v40, v14, {srd(SRD_X)}, s{S_T2} offen")
        e(f"buffer_load_ushort v41, v14, {srd(SRD_X)}, s{S_T2} offen offset:4")
        fin_loads(FA if cfg.ppoll else Y)
    if cfg.ppoll:
        poll_pipelined("fin", lambda: fin_loads(FA), lambda: fin_loads(FB), list(range(FA, FA + 12)), list(range(FB, FB + 12)), list(range(Y, Y + 12)), 3, 44, V_T8, 0xff)
    else:
        e("s_waitcnt vmcnt(0)")
        gather_checked("fin", fin_loads, list(range(Y, Y + 12)), 44, V_T8, 0xff)
    stamp("fin_got")
    for i in range(4): e(f"v_add_f32 v{Y+i}, v{Y+i}, v{Y+4+i}")
    for i in range(4): e(f"v_permlane32_swap_b32 v{Y+i}, v{DD+i}")
    for i in range(4): e(f"v_add_f32 v{Y+i}, v{Y+i}, v{DD+i}")
    e(f"v_permlane16_swap_b32 v{Y}, v{Y+1}")
    e(f"v_permlane16_swap_b32 v{Y+2}, v{Y+3}")
    e(f"v_add_f32 v{Y}, v{Y}, v{Y+1}")
    e(f"v_add_f32 v{Y+2}, v{Y+2}, v{Y+3}")
    for ror in (4, 8):
        e(f"v_add_f32_dpp v{Y}, v{Y}, v{Y} row_ror:{ror} row_mask:0xf bank_mask:0xf")
        e(f"v_add_f32_dpp v{Y+2}, v{Y+2}, v{Y+2} row_ror:{ror} row_mask:0xf bank_mask:0xf")
    e(f"v_mov_b32 v{DD}, v{Y}")
    e(f"v_mov_b32 v{DD+1}, v{Y+2}")
    e(f"v_permlane32_swap_b32 v{Y}, v{DD}")
    e(f"v_permlane32_swap_b32 v{Y+2}, v{DD+1}")
    e(f"v_cvt_pk_bf16_f32 v44, v{Y}, v{Y+2}")
    e(f"v_cvt_pk_bf16_f32 v45, v{DD}, v{DD+1}")
    e(f"v_lshlrev_b32 v46, 16, v45")
    e(f"v_and_b32 v47, s{S_M16}, v45")
    e(f"v_mul_f32 v48, {f2u(-LOG2E):#x}, v46")
    e(f"v_mul_f32 v49, {f2u(-LOG2E):#x}, v47")
    e("v_exp_f32 v48, v48")
    e("v_exp_f32 v49, v49")
    e("v_add_f32 v48, 1.0, v48")
    e("v_add_f32 v49, 1.0, v49")
    e("v_rcp_f32 v48, v48")
    e("v_rcp_f32 v49, v49")
    e("v_lshlrev_b32 v50, 16, v44")
    e(f"v_and_b32 v51, s{S_M16}, v44")
    e("v_mul_f32 v48, v46, v48")
    e("v_mul_f32 v49, v47, v49")
    e("v_cvt_pk_bf16_f32 v48, v48, v49")
    e("v_lshlrev_b32 v46, 16, v48")
    e(f"v_and_b32 v47, s{S_M16}, v48")
    e("v_mul_f32 v46, v50, v46")
    e("v_mul_f32 v47, v51, v47")
    e("v_cvt_pk_bf16_f32 v48, v46, v47")
    e("v_lshlrev_b32 v46, 16, v48")
    e(f"v_and_b32 v47, s{S_M16}, v48")
    e("v_lshlrev_b32 v40, 16, v40")
    e("v_lshlrev_b32 v41, 16, v41")
    e("v_add_f32 v46, v46, v40")
    e("v_add_f32 v47, v47, v41")
    e("v_cvt_pk_bf16_f32 v48, v46, v47")
    exec_set(0x000f000f, 0)
    e(f"buffer_store_short v48, v14, {srd(SRD_OUT)}, s{S_T2} offen")
    e(f"buffer_store_short_d16_hi v48, v14, {srd(SRD_OUT)}, s{S_T2} offen offset:4")
    e("s_cmp_lg_u32 s2, 0")
    e("s_cbranch_scc1 L_no_epoch")
    exec_set(1, 0)
    e(f"v_mov_b32 v50, s{S_TAG}")
    e("v_mov_b32 v51, 0")
    e(f"buffer_store_dword v50, v51, {srd(SRD_WS)}, 0 offen offset:{WS_EPOCH}")
    e.label("L_no_epoch")
    exec_full()
    e.label("L_end")
    if cfg.stamps:
        e("s_cmp_ge_u32 s2, 256")
        e("s_cbranch_scc1 L_end2")
        e("s_memrealtime s[100:101]")
        e("s_waitcnt lgkmcnt(0)")
        e("s_lshl_b32 s55, s2, 3")
        e(f"s_add_u32 s55, s55, s{S_W}")
        e("s_lshl_b32 s55, s55, 7")
        e(f"s_add_u32 s55, s55, {WS_ST:#x}")
        exec_set(1, 0)
        e("v_mov_b32 v51, 0")
        for i in list(range(len(names))) + [15]:
            r = stamp_reg(i) if i < 15 else 100
            e(f"v_mov_b32 v48, s{r}")
            e(f"v_mov_b32 v49, s{r+1}")
            e(f"buffer_store_dwordx2 v[48:49], v51, {srd(SRD_WS)}, s55 offen offset:{8*i}")
            e("s_nop 1")
        e.label("L_end2")
    gen.names = names + ["end"]
    gen.final_wave = FW
    e("s_endpgm")

    hdr = open("cdna_kernels/" + NAME + ".s.ref").read().split("\n")
    head = [l for l in hdr if l.startswith(";") and "@launch" not in l and "Override" not in l and "grid=ceil" not in l]
    out = "\n".join(head) + "\n"
    out += f"; @launch grid=(256,1,1) block=(512,1,1) lds={L_END}\n"
    out += '.amdgcn_target "amdgcn-amd-amdhsa--gfx950"\n.text\n'
    out += f".globl {KNAME}\n.p2align 8\n.type {KNAME},@function\n{KNAME}:\n"
    out += e.text()
    out += f""".section .rodata,"a"
.p2align 6
.amdhsa_kernel {KNAME}
  .amdhsa_next_free_vgpr {NVGPR}
  .amdhsa_next_free_sgpr 102
  .amdhsa_accum_offset {NVGPR}
  .amdhsa_group_segment_fixed_size 0
  .amdhsa_kernarg_size 96
  .amdhsa_user_sgpr_count 2
  .amdhsa_user_sgpr_kernarg_segment_ptr 1
  .amdhsa_system_sgpr_workgroup_id_x 1
  .amdhsa_float_denorm_mode_32 3
.end_amdhsa_kernel
"""
    return out

if __name__ == "__main__":
    kw = eval("dict(%s)" % (sys.argv[2] if len(sys.argv) > 2 else ""))
    txt = gen(Cfg(**kw))
    path = sys.argv[1] if len(sys.argv) > 1 else "cdna_kernels/" + NAME + ".s"
    open(path, "w").write(txt)
    print("wrote", path, len(txt), "bytes; LDS", L_END)
```

```python
import sys, struct
sys.path.insert(0, "dev")
from emit import Emit

NAME = "recurrent_scan__gqa_block_cached__glu_gated_glu__decode"
KNAME = NAME + "_kernel"

WS_EPOCH = 0
WS_H   = 0x40000
WS_ML  = 0x50000
WS_O   = 0x60000
WS_Y   = 0x100000
WS_D   = 0x200000
WS_ST  = 0x300000
WS_Q   = 0x400000
WS_G   = 0x500000
WS_SIZE = 0x600000

XN_STRIDE = 1040
ACT_STRIDE = 272
L_XN  = 0
L_T1  = 8448
L_T2  = L_T1 + 16384
L_WD  = L_T2 + 16384
L_MAX = L_WD + 16384
L_LS  = L_MAX + 128
L_ACT = L_LS + 128
L_ACT2 = L_ACT + 2176
L_QS  = L_ACT2 + 2176
L_END = L_QS + 8192
L_WO  = L_T1
L_OC  = L_T2
assert L_WD + 3 * 4096 + 512 < 65536 and L_QS < 65536 and L_QS % 16 == 0 and L_ACT % 16 == 0

V_KOFF, V_VOFF, V_L16, V_T16, V_T8, V_NEGM, V_MP = 1, 2, 3, 4, 5, 6, 7
V_Q = 8
V_S = 16
V_ACC = 48
def SLOT(i): return 80 + 32 * i
V_Z = 240
NVGPR = 248

S_W, S_X8, S_JJ, S_CHUNK, S_TAG = 3, 44, 45, 46, 47
SRD_K, SRD_V, SRD_WS, SRD_X, SRD_WQ, SRD_WG, SRD_WD, SRD_WO, SRD_OUT = 4, 8, 12, 16, 20, 24, 32, 36, 40
S_IDX, S_MAT, S_CT2, S_KP = 28, 29, 30, 31
S_OFFA, S_RED, S_SELLO, S_SELHI, S_M8, S_M16, S_CNT = 48, 49, 50, 51, 52, 53, 54
S_T0, S_T1, S_T2, S_T3 = 55, 56, 57, 58
S_T3OFF, S_FR, S_HOFF = 59, 60, 61
S_EPOCH = 62
S_T4 = 63
S_T3IDX, S_CT3 = 80, 81
S_EXS, S_EXT = 82, 84
KA = 64
def stamp_reg(i): return 88 + 2 * i if i < 6 else 64 + 2 * (i - 6)

def srd(i): return f"s[{i}:{i+3}]"
def vr(a, n=4): return f"v[{a}:{a+n-1}]"
LOG2E = 1.4426950408889634
SCALE = 128 ** -0.5
def f2u(x): return struct.unpack("<I", struct.pack("<f", x))[0]

class Cfg:
    mimic = True
    window = 5
    stamps = False
    spin = 200000
    pre_b = 1
    qp_k = 1
    ln_k = (2, 2, 1)
    wd_at = 10
    g_at = 12
    gred_at = 19
    t3lo = 10
    abl = ''
    dbgspan = False
    rnd = True
    finbar = True
    prio_off = None
    ofull = True
    prio_at = None
    mlw = 3
    bw = False
    fw = 7
    touch = False
    prio = 0
    ml_late = False
    narrow = True
    ppoll = False
    t3x = True
    def __init__(self, **kw):
        for k, v in kw.items(): setattr(self, k, v)

def gen(cfg=None):
    cfg = cfg or Cfg()
    e = Emit()
    W = cfg.window
    names = []
    def stamp(name):
        if cfg.stamps:
            i = len(names); names.append(name)
            assert i < 15
            e(f"s_memrealtime s[{stamp_reg(i)}:{stamp_reg(i)+1}]")
    def exec_set(lo, hi):
        e(f"s_mov_b32 exec_lo, {lo:#x}")
        e(f"s_mov_b32 exec_hi, {hi:#x}")
    def exec_full(): e("s_mov_b64 exec, -1")
    class Optional:
        def __enter__(self): self.vm = e.vm
        def __exit__(self, *a): e.vm = self.vm

    def wave_sum_to_sgpr(v, s):
        for sh in (1, 2, 4, 8):
            e(f"v_add_f32_dpp v{v}, v{v}, v{v} row_shr:{sh} row_mask:0xf bank_mask:0xf bound_ctrl:0")
        e(f"v_add_f32_dpp v{v}, v{v}, v{v} row_bcast:15 row_mask:0xa bank_mask:0xf")
        e(f"v_add_f32_dpp v{v}, v{v}, v{v} row_bcast:31 row_mask:0xc bank_mask:0xf")
        e(f"v_readlane_b32 s{s}, v{v}, 63")
    def xrow_reduce(op, regs, tmps):
        for sw in ("v_permlane16_swap_b32", "v_permlane32_swap_b32"):
            for r, t in zip(regs, tmps): e(f"v_mov_b32 v{t}, v{r}")
            for r, t in zip(regs, tmps): e(f"{sw} v{r}, v{t}")
            for r, t in zip(regs, tmps): e(f"{op} v{r}, v{r}, v{t}")
    def prio_point(name):
        if cfg.prio_at == name:
            e(f"s_cmp_lt_u32 s{S_W}, 4")
            e(f"s_cbranch_scc1 L_noprio_{name}")
            e("s_setprio 1")
            e.label(f"L_noprio_{name}")
    def rne_single(dst, src):
        e(f"v_cvt_pk_bf16_f32 v{dst}, v{src}, v{src}")
        e(f"v_lshlrev_b32 v{dst}, 16, v{dst}")
    def poll_tail(label_retry, label_ok):
        e(f"s_cbranch_vccz {label_ok}")
        e(f"s_sub_u32 s{S_CNT}, s{S_CNT}, 1")
        e(f"s_cmp_lg_u32 s{S_CNT}, 0")
        e(f"s_cbranch_scc1 {label_retry}")
    def chk(regs, tmp, tagv, mask):
        n = len(regs)
        for r in regs: e(f"v_xor_b32 v{r}, v{r}, v{tagv}")
        accs = [tmp, tmp + 1] if n >= 8 else [tmp]
        parts = [regs[i::len(accs)] for i in range(len(accs))]
        steps = []
        for a, pr in zip(accs, parts):
            st = []
            if len(pr) >= 3: st.append(f"v_or3_b32 v{a}, v{pr[0]}, v{pr[1]}, v{pr[2]}"); i = 3
            else: st.append(f"v_or_b32 v{a}, v{pr[0]}, v{pr[1]}"); i = 2
            while i < len(pr):
                if i + 1 < len(pr): st.append(f"v_or3_b32 v{a}, v{a}, v{pr[i]}, v{pr[i+1]}"); i += 2
                else: st.append(f"v_or_b32 v{a}, v{a}, v{pr[i]}"); i += 1
            steps.append(st)
        for i in range(max(len(x) for x in steps)):
            for st in steps:
                if i < len(st): e(st[i])
        if len(accs) == 2: e(f"v_or_b32 v{tmp}, v{tmp}, v{tmp+1}")
        e(f"v_and_b32 v{tmp}, {mask:#x}, v{tmp}")
        e(f"v_cmp_ne_u32 vcc, 0, v{tmp}")
    def gather_checked(name, loads, regs, tmp, tagv, mask, pre=None):
        if 'c' in cfg.abl: return
        chk(regs, tmp, tagv, mask)
        e(f"s_cbranch_vccz L_{name}_ok")
        npl = len(e.plist)
        with Optional():
            if pre: pre()
            e(f"s_mov_b32 s{S_CNT}, {cfg.spin}")
            if cfg.narrow: e(f"s_mov_b64 s[{S_EXS}:{S_EXS+1}], exec")
            e.label(f"L_{name}_retry")
            if cfg.narrow: e("s_mov_b64 exec, vcc")
            loads()
            e("s_waitcnt vmcnt(0)")
            chk(regs, tmp, tagv, mask)
            if cfg.narrow:
                e(f"s_cbranch_vccz L_{name}_rest")
                e(f"s_sub_u32 s{S_CNT}, s{S_CNT}, 1")
                e(f"s_cmp_lg_u32 s{S_CNT}, 0")
                e(f"s_cbranch_scc1 L_{name}_retry")
                e.label(f"L_{name}_rest")
                e(f"s_mov_b64 exec, s[{S_EXS}:{S_EXS+1}]")
            else:
                poll_tail(f"L_{name}_retry", f"L_{name}_ok")
        del e.plist[npl:]
        e.label(f"L_{name}_ok")

    def poll_pipelined(name, loadsA, loadsB, regsA, regsB, regsC, nld, tmp, tagv, mask):
        if 'c' in cfg.abl:
            e("s_waitcnt vmcnt(0)")
            for c, a in zip(regsC, regsA): e(f"v_mov_b32 v{c}, v{a}")
            return
        npl = len(e.plist)
        with Optional():
            e(f"s_mov_b32 s{S_CNT}, {cfg.spin}")
            e.label(f"L_{name}_loop")
            loadsB()
            e(f"s_waitcnt vmcnt({nld})")
            chk(regsA, tmp, tagv, mask)
            e(f"s_cbranch_vccz L_{name}_okA")
            loadsA()
            e(f"s_waitcnt vmcnt({nld})")
            chk(regsB, tmp, tagv, mask)
            e(f"s_cbranch_vccz L_{name}_okB")
            e(f"s_sub_u32 s{S_CNT}, s{S_CNT}, 1")
            e(f"s_cmp_lg_u32 s{S_CNT}, 0")
            e(f"s_cbranch_scc1 L_{name}_loop")
            e.label(f"L_{name}_okB")
            for c, b in zip(regsC, regsB): e(f"v_mov_b32 v{c}, v{b}")
            e(f"s_branch L_{name}_done")
            e.label(f"L_{name}_okA")
            for c, a in zip(regsC, regsA): e(f"v_mov_b32 v{c}, v{a}")
            e.label(f"L_{name}_done")
        del e.plist[npl:]

    offstate = [None]
    def kv_load(which, t, n, slot, pace):
        so = t * 65536 + (n >> 2) * 4096
        if offstate[0] != so:
            e(f"s_mov_b32 s{S_OFFA}, {so:#x}"); offstate[0] = so
        r = SLOT(slot) + 4 * n
        voff, s = (V_KOFF, SRD_K) if which == "k" else (V_VOFF, SRD_V)
        e(f"buffer_load_dwordx4 {vr(r)}, v{voff}, {srd(s)}, s{S_OFFA} offen offset:{(n & 3) * 1024} nt")
        if pace: e.pace(W)
    vslot = [4, 0, 1, 2]
    seq = [("k", t, n) for t in range(4) for n in range(8)] + [("v", t, n) for t in range(4) for n in range(8)]
    pos = [0]
    mK = [None] * 4; mV = [None] * 4
    hooks = {}
    def pump(cnt, pace=True, upto=64):
        for _ in range(cnt):
            if pos[0] >= upto: return
            which, t, n = seq[pos[0]]; pos[0] += 1
            kv_load(which, t, n, t if which == "k" else vslot[t], pace)
            if n == 7: (mK if which == "k" else mV)[t] = e.mark()
            for h in hooks.get(pos[0], []): h()

    def tile_dma(srdn, voff, soff, step, lbase):
        if 'k' in cfg.abl: return
        e(f"s_lshl_b32 s{S_T4}, s{S_W}, 11")
        e(f"s_add_u32 m0, s{S_T4}, {lbase}")
        e(f"buffer_load_dwordx4 v{voff}, {srd(srdn)}, s{soff} offen nt lds")
        e(f"s_add_u32 s{soff}, s{soff}, {step}")
        e(f"s_add_u32 m0, s{S_T4}, {lbase + 1024}")
        e(f"buffer_load_dwordx4 v{voff}, {srd(srdn)}, s{soff} offen nt lds")
    def tile_voff(dst, rowstride):
        e(f"v_lshrrev_b32 v{dst}, 3, v0")
        e(f"v_mul_u32_u24 v{dst}, {rowstride}, v{dst}")
        e(f"v_and_b32 v15, 7, v0")
        e(f"v_lshl_add_u32 v{dst}, v15, 4, v{dst}")
    def a_addr(dst):
        e(f"v_lshrrev_b32 v{dst}, 4, v0")
        e("v_bfe_u32 v15, v0, 2, 2")
        e(f"v_lshl_add_u32 v{dst}, v{dst}, 3, v15")
        e(f"v_lshlrev_b32 v{dst}, 7, v{dst}")
        e("v_and_b32 v15, 3, v0")
        e(f"v_lshl_add_u32 v{dst}, v15, 3, v{dst}")
        e(f"s_and_b32 s{S_T4}, s{S_W}, 3")
        e(f"s_lshl_b32 s{S_T4}, s{S_T4}, 5")
        e(f"v_add_u32 v{dst}, s{S_T4}, v{dst}")
    def a_frags(ta, va, lbase):
        for t in range(4):
            e(f"ds_read_b64_tr_b16 {vr(ta+4*t,2)}, v{va} offset:{lbase + 4096*t}")
            e(f"ds_read_b64_tr_b16 {vr(ta+4*t+2,2)}, v{va} offset:{lbase + 4096*t + 512}")
    def b_frags(tb, vb, lbase):
        for t in range(4): e(f"ds_read_b128 {vr(tb+4*t)}, v{vb} offset:{lbase + 64*t}")
    def mfma_tag_store(td, ta, tb, vs, sbase, store=True):
        e(f"v_mfma_f32_16x16x32_bf16 {vr(td)}, {vr(ta)}, {vr(tb)}, 0")
        for t in range(1, 4):
            e(f"v_mfma_f32_16x16x32_bf16 {vr(td)}, {vr(ta+4*t)}, {vr(tb+4*t)}, {vr(td)}")
        exec_set(0x00ff00ff, 0x00ff00ff)
        if cfg.rnd:
            for i in range(4): e(f"v_add_u32 v{td+i}, 0x80, v{td+i}")
        for i in range(4): e(f"v_and_or_b32 v{td+i}, v{td+i}, s{S_M8}, v{V_T8}")
        if store: e(f"buffer_store_dwordx4 {vr(td)}, v{vs}, {srd(SRD_WS)}, s{sbase} offen sc1")
        exec_full()

    e("s_cmp_ge_u32 s2, 256")
    e("s_cbranch_scc1 L_end")
    stamp("start")
    e(f"s_load_dwordx16 s[{KA}:{KA+15}], s[0:1], 0")
    e(f"s_load_dwordx8 s[{KA+16}:{KA+23}], s[0:1], 64")
    P_X, P_K, P_V, P_WQ, P_WO, P_WG, P_WU, P_WD, P_OUT, P_WS = KA, KA+2, KA+4, KA+6, KA+8, KA+12, KA+14, KA+16, KA+18, KA+22
    e("v_lshrrev_b32 v12, 6, v0")
    e("v_and_b32 v0, 63, v0")
    e(f"v_readfirstlane_b32 s{S_W}, v12")
    if cfg.prio:
        e(f"s_cmp_lt_u32 s{S_W}, 4")
        e("s_cbranch_scc1 L_noprio")
        e(f"s_setprio {cfg.prio}")
        e.label("L_noprio")
    e(f"s_and_b32 s{S_X8}, s2, 7")
    e(f"s_lshr_b32 s{S_JJ}, s2, 3")
    e(f"s_lshl_b32 s{S_CHUNK}, s{S_X8}, 5")
    e(f"s_add_u32 s{S_CHUNK}, s{S_CHUNK}, s{S_JJ}")
    e(f"v_lshlrev_b32 v{V_L16}, 4, v0")
    e("v_bfe_u32 v12, v0, 2, 2")
    e(f"v_lshlrev_b32 v{V_KOFF}, 8, v12")
    e("v_lshrrev_b32 v12, 4, v0")
    e(f"v_lshl_add_u32 v{V_KOFF}, v12, 6, v{V_KOFF}")
    e("v_and_b32 v12, 3, v0")
    e(f"v_lshl_add_u32 v{V_KOFF}, v12, 4, v{V_KOFF}")
    e(f"s_lshl_b32 s{S_T0}, s{S_W}, 13")
    e(f"v_add_u32 v{V_KOFF}, s{S_T0}, v{V_KOFF}")
    e(f"v_add_u32 v{V_VOFF}, s{S_T0}, v{V_L16}")
    tile_voff(13, 8192)
    tile_voff(14, 3584)
    e(f"s_and_b32 s{S_KP}, s{S_JJ}, 3")
    e(f"s_lshr_b32 s{S_T0}, s{S_JJ}, 2")
    e(f"s_lshl_b32 s{S_IDX}, s{S_T0}, 3")
    e(f"s_add_u32 s{S_IDX}, s{S_IDX}, s{S_X8}")
    e(f"s_and_b32 s{S_MAT}, s{S_IDX}, 1")
    e(f"s_lshr_b32 s{S_CT2}, s{S_IDX}, 1")
    e(f"s_lshl_b32 s{S_T1}, s{S_X8}, 3")
    e(f"s_add_u32 s{S_T0}, s{S_T0}, s{S_T1}")
    e(f"s_lshl_b32 s{S_T0}, s{S_T0}, 7")
    e(f"s_lshl_b32 s{S_T1}, s{S_KP}, 3")
    e(f"s_add_u32 s{S_T1}, s{S_T1}, s{S_W}")
    e(f"s_lshl_b32 s{S_T2}, s{S_T1}, 17")
    e(f"s_add_u32 s{S_T0}, s{S_T0}, s{S_T2}")
    e(f"s_mul_i32 s{S_T1}, s{S_T1}, {16*3584}")
    e(f"s_lshl_b32 s{S_T2}, s{S_CT2}, 7")
    e(f"s_add_u32 s{S_T1}, s{S_T1}, s{S_T2}")
    e(f"s_lshl_b32 s{S_T2}, s{S_W}, 10")
    e(f"s_lshl_b32 s{S_T3}, s{S_CHUNK}, 18")
    e("s_waitcnt lgkmcnt(0)")
    def mk_srd(dst, src, size, add=None):
        if add is None:
            e(f"s_mov_b32 s{dst}, s{src}")
            e(f"s_mov_b32 s{dst+1}, s{src+1}")
        else:
            e(f"s_add_u32 s{dst}, s{src}, s{add}")
            e(f"s_addc_u32 s{dst+1}, s{src+1}, 0")
        e(f"s_mov_b32 s{dst+2}, {size:#x}")
        e(f"s_mov_b32 s{dst+3}, 0x00020000")
    XR = 48
    mk_srd(SRD_X, P_X, 8192)
    e(f"buffer_load_dwordx4 {vr(XR)}, v{V_L16}, {srd(SRD_X)}, s{S_T2} offen")
    m_x = e.mark()
    e("s_barrier")
    mk_srd(SRD_WQ, P_WQ, 512 * 4096 * 2)
    tile_dma(SRD_WQ, 13, S_T0, 8 * 8192, L_T1)
    e(f"s_cmp_eq_u32 s{S_MAT}, 0")
    e(f"s_cselect_b32 s{SRD_WG}, s{P_WG}, s{P_WU}")
    e(f"s_cselect_b32 s{SRD_WG+1}, s{P_WG+1}, s{P_WU+1}")
    e(f"s_mov_b32 s{SRD_WG+2}, {512*1792*2:#x}")
    e(f"s_mov_b32 s{SRD_WG+3}, 0x00020000")
    m_t1 = e.mark()
    with Optional():
        e(f"s_cmp_ge_u32 s{S_IDX}, 56")
        e("s_cbranch_scc1 L_no_gu_ld")
        if 'E' in cfg.abl:
            e(f"s_bitcmp1_b32 s{S_X8}, 0")
            e("s_cbranch_scc1 L_no_gu_ld")
            e(f"s_xor_b32 s{S_T2}, s{S_T1}, 128")
            tile_dma(SRD_WG, 14, S_T2, 8 * 3584, L_WD)
        tile_dma(SRD_WG, 14, S_T1, 8 * 3584, L_T2)
        e.label("L_no_gu_ld")
    m_t2 = e.mark()
    mk_srd(SRD_K, P_K, 0x40000, add=S_T3)
    pump(cfg.pre_b, pace=False)
    mk_srd(SRD_V, P_V, 0x40000, add=S_T3)
    e(f"s_load_dword s{S_EPOCH}, s[{P_WS}:{P_WS+1}], {WS_EPOCH}")
    mk_srd(SRD_WS, P_WS, WS_SIZE)
    mk_srd(SRD_WD, P_WD, 1792 * 512 * 2)
    mk_srd(SRD_WO, P_WO, 4096 * 512 * 2)
    mk_srd(SRD_OUT, P_OUT, 8192)
    e(f"s_mov_b32 s{S_SELLO}, 0x05040100")
    e(f"s_mov_b32 s{S_SELHI}, 0x07060302")
    e(f"s_mov_b32 s{S_M8}, 0xffffff00")
    e(f"s_mov_b32 s{S_M16}, 0xffff0000")
    if cfg.touch:
        e("v_mov_b32 v12, 0")
        with Optional():
            for w, (sr, so) in enumerate([(SRD_V, "0"), (SRD_WO, None), (SRD_WD, "0"), (SRD_WS, WS_O), (SRD_WS, WS_Y), (SRD_WS, WS_D), (SRD_OUT, "0"), (SRD_V, "0")]):
                lab = f"L_touch{w}"
                e(f"s_cmp_lg_u32 s{S_W}, {w}")
                e(f"s_cbranch_scc1 {lab}")
                if so is None:
                    e(f"s_lshl_b32 s{S_T0}, s{S_X8}, 19")
                    e(f"buffer_load_dword v247, v12, {srd(sr)}, s{S_T0} offen")
                elif isinstance(so, int):
                    e(f"s_mov_b32 s{S_T0}, {so:#x}")
                    e(f"buffer_load_dword v247, v12, {srd(sr)}, s{S_T0} offen sc1")
                else:
                    e(f"buffer_load_dword v247, v12, {srd(sr)}, 0 offen nt")
                e.label(lab)
    e("s_waitcnt lgkmcnt(0)")
    e(f"s_add_u32 s{S_TAG}, s{S_EPOCH}, 0x0101")
    e(f"s_and_b32 s{S_T0}, s{S_TAG}, 0xffff")
    e(f"v_mov_b32 v{V_T16}, s{S_T0}")
    e(f"s_and_b32 s{S_T0}, s{S_TAG}, 0xff")
    e(f"v_mov_b32 v{V_T8}, s{S_T0}")

    e.wait_vm(m_x)
    stamp("x_got")
    F = 52
    for i in range(4):
        e(f"v_lshlrev_b32 v{F+2*i}, 16, v{XR+i}")
        e(f"v_and_b32 v{F+2*i+1}, s{S_M16}, v{XR+i}")
    e(f"v_add_f32 v60, v{F}, v{F+1}")
    e(f"v_add_f32 v61, v{F+2}, v{F+3}")
    e(f"v_add_f32 v62, v{F+4}, v{F+5}")
    e(f"v_add_f32 v63, v{F+6}, v{F+7}")
    e("v_add_f32 v60, v60, v61")
    e("v_add_f32 v62, v62, v63")
    e("v_add_f32 v60, v60, v62")
    pump(cfg.ln_k[0], pace=False)
    wave_sum_to_sgpr(60, S_T0)
    e(f"v_mov_b32 v61, s{S_T0}")
    e(f"v_mul_f32 v61, {f2u(1.0/512):#x}, v61")
    for i in range(8): e(f"v_sub_f32 v{64+i}, v{F+i}, v61")
    e("v_mul_f32 v60, v64, v64")
    for i in range(1, 8): e(f"v_fmac_f32 v60, v{64+i}, v{64+i}")
    pump(cfg.ln_k[1], pace=False)
    wave_sum_to_sgpr(60, S_T1)
    e(f"v_mov_b32 v62, s{S_T1}")
    e(f"v_mul_f32 v62, {f2u(1.0/512):#x}, v62")
    rne_single(62, 62)
    e(f"v_add_f32 v62, {f2u(1e-5):#x}, v62")
    rne_single(62, 62)
    e("v_sqrt_f32 v62, v62")
    rne_single(62, 62)
    rne_single(61, 61)
    e("v_rcp_f32 v63, v62")
    e("v_fma_f32 v60, -v62, v63, 1.0")
    e("v_fma_f32 v63, v60, v63, v63")
    for i in range(8): e(f"v_sub_f32 v{64+i}, v{F+i}, v61")
    for i in range(4): e(f"v_cvt_pk_bf16_f32 v{72+i}, v{64+2*i}, v{64+2*i+1}")
    for i in range(4):
        e(f"v_lshlrev_b32 v{64+2*i}, 16, v{72+i}")
        e(f"v_and_b32 v{64+2*i+1}, s{S_M16}, v{72+i}")
    for i in range(8): e(f"v_mul_f32 v{F+i}, v{64+i}, v63")
    for i in range(8): e(f"v_fma_f32 v{64+i}, -v{F+i}, v62, v{64+i}")
    for i in range(8): e(f"v_fma_f32 v{F+i}, v{64+i}, v63, v{F+i}")
    for i in range(4): e(f"v_cvt_pk_bf16_f32 v{72+i}, v{F+2*i}, v{F+2*i+1}")
    e(f"s_mul_i32 s{S_T0}, s{S_W}, {XN_STRIDE}")
    e(f"v_add_u32 v60, s{S_T0}, v{V_L16}")
    e(f"ds_write_b128 v60, v[72:75] offset:{L_XN}")
    pump(cfg.ln_k[2], pace=False)
    e("v_and_b32 v14, 7, v0")
    e(f"v_mul_u32_u24 v14, {XN_STRIDE}, v14")
    e("v_lshrrev_b32 v12, 4, v0")
    e("v_lshl_add_u32 v14, v12, 4, v14")
    e(f"s_lshl_b32 s{S_T0}, s{S_KP}, 8")
    e(f"v_add_u32 v14, s{S_T0}, v14")
    a_addr(13)
    e(f"s_lshl_b32 s{S_T0}, s{S_X8}, 2")
    e(f"s_add_u32 s{S_T0}, s{S_T0}, s{S_KP}")
    e(f"s_lshl_b32 s{S_T0}, s{S_T0}, 11")
    e(f"s_lshr_b32 s{S_T1}, s{S_JJ}, 2")
    e(f"s_lshl_b32 s{S_T1}, s{S_T1}, 8")
    e(f"s_add_u32 s{S_T0}, s{S_T0}, s{S_T1}")
    e(f"s_add_u32 s{S_T0}, s{S_T0}, {WS_Q:#x}")
    e(f"s_lshl_b32 s{S_T1}, s{S_MAT}, 2")
    e(f"s_add_u32 s{S_T1}, s{S_T1}, s{S_KP}")
    e(f"s_mul_i32 s{S_T1}, s{S_T1}, {8*7168}")
    e(f"s_lshl_b32 s{S_T2}, s{S_CT2}, 8")
    e(f"s_add_u32 s{S_T1}, s{S_T1}, s{S_T2}")
    e(f"s_add_u32 s{S_T1}, s{S_T1}, {WS_G:#x}")
    e(f"s_cmp_lt_u32 s{S_W}, 4")
    e(f"s_cselect_b32 s{S_T0}, s{S_T0}, s{S_T1}")
    e(f"s_movk_i32 s{S_T4}, 7168")
    e(f"s_cselect_b32 s{S_T2}, {8*4*2048}, s{S_T4}")
    e(f"s_cselect_b32 s{S_T3}, 0, 16384")
    e(f"s_and_b32 s{S_T1}, s{S_W}, 3")
    e(f"s_lshl_b32 s{S_T1}, s{S_T1}, 6")
    e(f"s_add_u32 s{S_T0}, s{S_T0}, s{S_T1}")
    e("v_and_b32 v20, 15, v0")
    e(f"v_mul_lo_u32 v20, v20, s{S_T2}")
    e("v_lshl_add_u32 v20, v12, 4, v20")
    e(f"v_add_u32 v13, s{S_T3}, v13")
    e.wait_vm(m_t2, " lgkmcnt(0)")
    e("s_barrier")
    stamp("B1")
    pump(cfg.qp_k, pace=False)
    with Optional():
        e(f"s_cmp_ge_u32 s{S_IDX}, 56")
        e(f"s_cselect_b32 s{S_T1}, 4, 8")
        e(f"s_cmp_ge_u32 s{S_W}, s{S_T1}")
        e("s_cbranch_scc1 L_no_proj")
        b_frags(64, 14, L_XN)
        a_frags(48, 13, L_T1)
        e("s_waitcnt lgkmcnt(0)")
        mfma_tag_store(16, 48, 64, 20, S_T0, store='s' not in cfg.abl)
        e.label("L_no_proj")
    stamp("proj")

    if cfg.t3x:
        e(f"s_cmp_gt_u32 s{S_X8}, 3")
        e(f"s_subb_u32 s{S_T0}, s{S_X8}, 0")
        e(f"s_cmp_gt_u32 s{S_X8}, 5")
        e(f"s_subb_u32 s{S_T0}, s{S_T0}, 0")
        e(f"s_mul_i32 s{S_T0}, s{S_T0}, 19")
        e(f"s_sub_u32 s{S_T1}, s{S_JJ}, 9")
        e(f"s_add_u32 s{S_T3IDX}, s{S_T0}, s{S_T1}")
        e(f"s_cmp_ge_u32 s{S_T1}, 19")
        e(f"s_cselect_b32 s{S_T3IDX}, 999, s{S_T3IDX}")
        e(f"s_cmp_eq_u32 s{S_X8}, 3")
        e(f"s_cselect_b32 s{S_T3IDX}, 999, s{S_T3IDX}")
        e(f"s_cmp_eq_u32 s{S_X8}, 5")
        e(f"s_cselect_b32 s{S_T3IDX}, 999, s{S_T3IDX}")
    else:
        e(f"s_sub_u32 s{S_T1}, s{S_JJ}, {cfg.t3lo}")
        e(f"s_lshl_b32 s{S_T3IDX}, s{S_T1}, 3")
        e(f"s_add_u32 s{S_T3IDX}, s{S_T3IDX}, s{S_X8}")
        e(f"s_cmp_ge_u32 s{S_T1}, 14")
        e(f"s_cselect_b32 s{S_T3IDX}, 999, s{S_T3IDX}")
    def t3_skip(label):
        if 't' in cfg.abl:
            e(f"s_branch {label}")
        else:
            e(f"s_cmp_ge_u32 s{S_T3IDX}, 112")
            e(f"s_cbranch_scc1 {label}")
    def wd_hook():
        with Optional():
            t3_skip("L_no_wd")
            e(f"s_lshr_b32 s{S_FR}, s{S_T3IDX}, 3")
            e(f"s_and_b32 s{S_CT3}, s{S_T3IDX}, 7")
            e(f"s_lshl_b32 s{S_T1}, s{S_FR}, 17")
            e(f"s_lshl_b32 s{S_T2}, s{S_CT3}, 7")
            e(f"s_add_u32 s{S_T1}, s{S_T1}, s{S_T2}")
            e(f"s_lshl_b32 s{S_T2}, s{S_W}, 14")
            e(f"s_add_u32 s{S_T1}, s{S_T1}, s{S_T2}")
            tile_voff(12, 1024)
            if 'E' in cfg.abl:
                e(f"s_bitcmp1_b32 s{S_X8}, 0")
                e("s_cbranch_scc1 L_no_wd2")
                e(f"s_xor_b32 s{S_T2}, s{S_T1}, 128")
                tile_dma(SRD_WD, 12, S_T2, 8192, L_WD)
                tile_dma(SRD_WD, 12, S_T1, 8192, L_WD)
                e.label("L_no_wd2")
            else:
                tile_dma(SRD_WD, 12, S_T1, 8192, L_WD)
            e(f"s_lshl_b32 s{S_T3OFF}, s{S_CT3}, 2")
            e(f"s_and_b32 s{S_T0}, s{S_W}, 3")
            e(f"s_add_u32 s{S_T3OFF}, s{S_T3OFF}, s{S_T0}")
            e(f"s_lshl_b32 s{S_T3OFF}, s{S_T3OFF}, 10")
            e(f"s_lshl_b32 s{S_T0}, s{S_FR}, 6")
            e(f"s_add_u32 s{S_T3OFF}, s{S_T3OFF}, s{S_T0}")
            e(f"s_add_u32 s{S_T3OFF}, s{S_T3OFF}, {WS_D:#x}")
            e(f"s_mul_i32 s{S_T1}, s{S_W}, 7168")
            e(f"s_lshl_b32 s{S_T2}, s{S_FR}, 9")
            e(f"s_add_u32 s{S_T1}, s{S_T1}, s{S_T2}")
            e(f"s_add_u32 s{S_HOFF}, s{S_T1}, {WS_H:#x}")
            e.label("L_no_wd")
    GR = V_S
    e(f"s_sub_u32 s{S_RED}, s{S_JJ}, 28")
    e(f"s_lshl_b32 s{S_RED}, s{S_RED}, 3")
    e(f"s_add_u32 s{S_RED}, s{S_RED}, s{S_X8}")
    e(f"s_cmp_ge_u32 s{S_JJ}, 28")
    e(f"s_cselect_b32 s{S_RED}, s{S_RED}, 99")
    def g_addr():
        e("v_lshrrev_b32 v12, 4, v0")
        e(f"v_mul_u32_u24 v12, {8*7168}, v12")
        e("v_and_b32 v13, 15, v0")
        e("v_lshl_add_u32 v12, v13, 4, v12")
        e(f"s_mul_i32 s{S_T1}, s{S_W}, 7168")
        e(f"s_lshl_b32 s{S_T2}, s{S_RED}, 8")
        e(f"s_add_u32 s{S_T1}, s{S_T1}, s{S_T2}")
        e(f"s_add_u32 s{S_T1}, s{S_T1}, {WS_G:#x}")
    def g_loads():
        e(f"buffer_load_dwordx4 {vr(GR)}, v12, {srd(SRD_WS)}, s{S_T1} offen sc1")
        e(f"s_add_u32 s{S_T2}, s{S_T1}, {4 * 8 * 7168}")
        e(f"buffer_load_dwordx4 {vr(GR+4)}, v12, {srd(SRD_WS)}, s{S_T2} offen sc1")
    m_g = [None]
    def g_hook():
        with Optional():
            e(f"s_cmp_ge_u32 s{S_RED}, 28")
            e("s_cbranch_scc1 L_no_gred_ld")
            g_addr()
            g_loads()
            e.label("L_no_gred_ld")
        m_g[0] = e.mark()
    def gred_hook():
        with Optional():
            e(f"s_cmp_ge_u32 s{S_RED}, 28")
            e("s_cbranch_scc1 L_no_gred")
            e.wait_vm(m_g[0])
            gather_checked("g", g_loads, list(range(GR, GR + 8)), 48, V_T8, 0xff, pre=g_addr)
            G_, U_ = GR, GR + 4
            for i in range(4): e(f"v_permlane32_swap_b32 v{G_+i}, v{U_+i}")
            for i in range(4): e(f"v_add_f32 v{G_+i}, v{G_+i}, v{U_+i}")
            e(f"v_permlane16_swap_b32 v{G_}, v{G_+1}")
            e(f"v_permlane16_swap_b32 v{G_+2}, v{G_+3}")
            e(f"v_add_f32 v{G_}, v{G_}, v{G_+1}")
            e(f"v_add_f32 v{G_+2}, v{G_+2}, v{G_+3}")
            e(f"v_mov_b32 v{U_}, v{G_}")
            e(f"v_mov_b32 v{U_+1}, v{G_+2}")
            e(f"v_permlane32_swap_b32 v{G_}, v{U_}")
            e(f"v_permlane32_swap_b32 v{G_+2}, v{U_+1}")
            e(f"v_cvt_pk_bf16_f32 v48, v{G_}, v{G_+2}")
            e(f"v_cvt_pk_bf16_f32 v49, v{U_}, v{U_+1}")
            e("v_lshlrev_b32 v50, 16, v48")
            e(f"v_and_b32 v51, s{S_M16}, v48")
            e(f"v_mul_f32 v50, {f2u(-LOG2E):#x}, v50")
            e(f"v_mul_f32 v51, {f2u(-LOG2E):#x}, v51")
            e("v_exp_f32 v50, v50")
            e("v_exp_f32 v51, v51")
            e("v_add_f32 v50, 1.0, v50")
            e("v_add_f32 v51, 1.0, v51")
            e("v_rcp_f32 v50, v50")
            e("v_rcp_f32 v51, v51")
            e("v_cvt_pk_bf16_f32 v48, v50, v51")
            e("v_lshlrev_b32 v50, 16, v48")
            e(f"v_and_b32 v51, s{S_M16}, v48")
            e("v_lshlrev_b32 v52, 16, v49")
            e(f"v_and_b32 v53, s{S_M16}, v49")
            e("v_mul_f32 v50, v50, v52")
            e("v_mul_f32 v51, v51, v53")
            e("v_cvt_pk_bf16_f32 v48, v50, v51")
            e(f"v_lshl_or_b32 v52, v48, 16, v{V_T16}")
            e(f"v_and_or_b32 v54, v48, s{S_M16}, v{V_T16}")
            e("v_mov_b32 v53, v52")
            e("v_mov_b32 v55, v54")
            e("v_mov_b32 v56, v52")
            e("v_mov_b32 v57, v54")
            e("v_permlane16_swap_b32 v56, v53")
            e("v_permlane16_swap_b32 v57, v55")
            e(f"s_mul_i32 s{S_T1}, s{S_W}, 7168")
            e(f"s_lshl_b32 s{S_T2}, s{S_RED}, 8")
            e(f"s_add_u32 s{S_T1}, s{S_T1}, s{S_T2}")
            e(f"s_add_u32 s{S_T1}, s{S_T1}, {WS_H:#x}")
            exec_set(0xffff, 0)
            e(f"buffer_store_dwordx4 v[52:55], v{V_L16}, {srd(SRD_WS)}, s{S_T1} offen sc1")
            exec_full()
            e("s_nop 1")
            e.label("L_no_gred")
    hooks.setdefault(cfg.wd_at, []).append(wd_hook)
    hooks.setdefault(cfg.g_at, []).append(g_hook)
    hooks.setdefault(cfg.gred_at, []).append(gred_hook)
    assert pos[0] < min(cfg.wd_at, cfg.g_at)
    pump(64, upto=32)

    QL = V_ACC
    TG = V_S + 24
    def q_addr():
        e(f"s_lshl_b32 s{S_T0}, s{S_X8}, 3")
        e(f"s_lshr_b32 s{S_T1}, s{S_JJ}, 2")
        e(f"s_add_u32 s{S_T0}, s{S_T0}, s{S_T1}")
        e(f"s_lshl_b32 s{S_T0}, s{S_T0}, 3")
        e(f"s_add_u32 s{S_T0}, s{S_T0}, s{S_W}")
        e(f"s_lshl_b32 s{S_T0}, s{S_T0}, 10")
        e(f"s_add_u32 s{S_T0}, s{S_T0}, {WS_Q:#x}")
    def q_loads():
        e(f"buffer_load_dwordx4 {vr(QL)}, v{V_L16}, {srd(SRD_WS)}, s{S_T0} offen sc1")
    def h_loads():
        e(f"buffer_load_dwordx4 {vr(TG)}, v{V_L16}, {srd(SRD_WS)}, s{S_HOFF} offen sc1")
    q_addr()
    q_loads()
    m_q = e.mark()
    with Optional():
        t3_skip("L_no_h_ld")
        exec_set(0xffffffff, 0)
        h_loads()
        exec_full()
        e.label("L_no_h_ld")
    m_h = e.mark()
    pump(8)
    e.wait_vm(m_q)
    gather_checked("q", q_loads, list(range(QL, QL + 4)), 56, V_T8, 0xff, pre=q_addr)
    e(f"s_lshl_b32 s{S_T0}, s{S_W}, 10")
    e(f"s_add_u32 s{S_T0}, s{S_T0}, {L_QS}")
    e(f"v_add_u32 v12, s{S_T0}, v{V_L16}")
    e(f"ds_write_b128 v12, {vr(QL)}")
    with Optional():
        t3_skip("L_no_t3a")
        e.wait_vm(m_h)
        exec_set(0xffffffff, 0)
        gather_checked("h", h_loads, list(range(TG, TG + 4)), TG + 4, V_T16, 0xffff)
        e(f"v_perm_b32 v{TG+4}, v{TG+1}, v{TG}, s{S_SELHI}")
        e(f"v_perm_b32 v{TG+5}, v{TG+3}, v{TG+2}, s{S_SELHI}")
        e(f"s_mul_i32 s{S_T0}, s{S_W}, {ACT_STRIDE}")
        e("v_lshlrev_b32 v12, 3, v0")
        e(f"v_add_u32 v12, s{S_T0}, v12")
        e(f"ds_write_b64 v12, {vr(TG+4,2)} offset:{L_ACT2}")
        exec_full()
        e.label("L_no_t3a")
    e("v_and_b32 v13, 3, v0")
    e("v_lshlrev_b32 v13, 9, v13")
    e("v_lshrrev_b32 v15, 2, v0")
    e("v_lshl_add_u32 v13, v15, 5, v13")
    e(f"v_add_u32 v13, {L_QS}, v13")
    e("s_waitcnt lgkmcnt(0)")
    if "q" not in cfg.abl: e("s_barrier")
    for kp in range(4):
        e(f"ds_read_b128 {vr(48+8*kp)}, v13 offset:{2048*kp}")
        e(f"ds_read_b128 {vr(48+8*kp+4)}, v13 offset:{2048*kp + 16}")
    e("s_waitcnt lgkmcnt(0)")
    for i in range(8):
        e(f"v_add_f32 v{48+i}, v{48+i}, v{56+i}")
        e(f"v_add_f32 v{64+i}, v{64+i}, v{72+i}")
    for i in range(8): e(f"v_add_f32 v{48+i}, v{48+i}, v{64+i}")
    for i in range(4): e(f"v_cvt_pk_bf16_f32 v{V_Q+i}, v{48+2*i}, v{48+2*i+1}")
    stamp("q_ok")
    prio_point("BQ")
    def tile_addr(vb, vs, pstride):
        e(f"v_and_b32 v{vb}, 7, v0")
        e(f"v_mul_u32_u24 v{vb}, {ACT_STRIDE}, v{vb}")
        e(f"v_lshrrev_b32 v{vs}, 4, v0")
        e(f"v_lshl_add_u32 v{vb}, v{vs}, 4, v{vb}")
        e(f"v_lshlrev_b32 v{vs}, 4, v{vs}")
        e(f"v_and_b32 v15, 15, v0")
        e(f"v_mul_u32_u24 v15, {32*pstride}, v15")
        e(f"v_add_u32 v{vs}, v{vs}, v15")
    with Optional():
        t3_skip("L_no_t3b")
        e(f"s_cmp_ge_u32 s{S_W}, 4")
        e("s_cbranch_scc1 L_no_t3b")
        a_addr(12)
        tile_addr(13, 14, 1024)
        a_frags(48, 12, L_WD)
        b_frags(64, 13, L_ACT2)
        e("s_waitcnt lgkmcnt(0)")
        mfma_tag_store(16, 48, 64, 14, S_T3OFF)
        e("s_nop 1")
        e.label("L_no_t3b")

    for t in range(4):
        for n in range(8):
            e(f"v_mfma_f32_16x16x32_bf16 {vr(V_ACC+4*n)}, {vr(SLOT(t)+4*n)}, {vr(V_Q)}, 0")
        pump(2, upto=48)
        for n in range(8):
            d = V_ACC + 4 * n
            e(f"v_add_f32_dpp v{V_S+8*t+n}, v{d+1}, v{d} row_shl:4 row_mask:0xf bank_mask:0xf bound_ctrl:0")
        for n in range(8):
            d = V_ACC + 4 * n
            e(f"v_add_f32_dpp v{V_S+8*t+n}, v{d+2}, v{V_S+8*t+n} row_shl:8 row_mask:0xf bank_mask:0xf bound_ctrl:0")
        for n in range(8):
            d = V_ACC + 4 * n
            e(f"v_add_f32_dpp v{V_S+8*t+n}, v{d+3}, v{V_S+8*t+n} row_shl:12 row_mask:0xf bank_mask:0xf bound_ctrl:0")
    stamp("S_done")
    pump(2, upto=56)
    if cfg.mimic:
        e(f"s_mov_b32 s{S_T0}, {f2u(SCALE):#x}")
        for rep in range(2):
            for m in range(16): e(f"v_cvt_pk_bf16_f32 v{V_ACC+m}, v{V_S+2*m}, v{V_S+2*m+1}")
            for m in range(16):
                e(f"v_lshlrev_b32 v{V_S+2*m}, 16, v{V_ACC+m}")
                e(f"v_and_b32 v{V_S+2*m+1}, s{S_M16}, v{V_ACC+m}")
            if rep == 0:
                for n in range(32): e(f"v_mul_f32 v{V_S+n}, s{S_T0}, v{V_S+n}")
            pump(1, upto=56)
        cexp = LOG2E
    else:
        cexp = LOG2E * SCALE
    e(f"v_max3_f32 v12, v{V_S}, v{V_S+1}, v{V_S+2}")
    for n in range(3, 31, 2): e(f"v_max3_f32 v12, v12, v{V_S+n}, v{V_S+n+1}")
    e(f"v_max_f32 v12, v12, v{V_S+31}")
    xrow_reduce("v_max_f32", [12], [13])
    e(f"s_lshl_b32 s{S_T0}, s{S_W}, 4")
    e("v_and_b32 v14, 3, v0")
    e("v_lshlrev_b32 v14, 2, v14")
    e(f"v_add_u32 v15, s{S_T0}, v14")
    exec_set(0xf, 0)
    e(f"ds_write_b32 v15, v12 offset:{L_MAX}")
    exec_full()
    e("s_waitcnt lgkmcnt(0)")
    if "4" not in cfg.abl: e("s_barrier")
    prio_point("B4")
    for w in range(8): e(f"ds_read_b32 v{V_ACC+w}, v14 offset:{L_MAX + 16*w}")
    pump(1, upto=56)
    e("s_waitcnt lgkmcnt(0)")
    e(f"v_max3_f32 v12, v{V_ACC}, v{V_ACC+1}, v{V_ACC+2}")
    e(f"v_max3_f32 v12, v12, v{V_ACC+3}, v{V_ACC+4}")
    e(f"v_max3_f32 v12, v12, v{V_ACC+5}, v{V_ACC+6}")
    e(f"v_max_f32 v12, v12, v{V_ACC+7}")
    e(f"s_mov_b32 s{S_T0}, {f2u(cexp):#x}")
    e(f"v_mul_f32 v12, s{S_T0}, v12")
    e(f"v_and_b32 v{V_MP}, s{S_M8}, v12")
    e(f"v_sub_f32 v{V_NEGM}, 0, v{V_MP}")
    for n in range(32): e(f"v_fma_f32 v{V_S+n}, v{V_S+n}, s{S_T0}, v{V_NEGM}")
    pump(1, upto=56)
    for n in range(32): e(f"v_exp_f32 v{V_S+n}, v{V_S+n}")
    pump(1, upto=56)
    e(f"v_add_f32 v12, v{V_S}, v{V_S+1}")
    e(f"v_add_f32 v13, v{V_S+2}, v{V_S+3}")
    for n in range(4, 32, 2):
        e(f"v_add_f32 v12, v12, v{V_S+n}")
        e(f"v_add_f32 v13, v13, v{V_S+n+1}")
    e("v_add_f32 v12, v12, v13")
    for m in range(16): e(f"v_cvt_pk_bf16_f32 v{V_S+m}, v{V_S+2*m}, v{V_S+2*m+1}")
    xrow_reduce("v_add_f32", [12], [13])
    exec_set(0xf, 0)
    e(f"ds_write_b32 v15, v12 offset:{L_LS}")
    exec_full()
    pump(8, upto=56)
    e("s_waitcnt lgkmcnt(0)")
    if "5" not in cfg.abl: e("s_barrier")
    stamp("softmax")
    prio_point("B5")
    def ml_publish(R):
        with Optional():
            e(f"s_cmp_lg_u32 s{S_W}, {cfg.mlw}")
            e("s_cbranch_scc1 L_no_ml")
            e("v_mov_b32 v12, 0")
            for w in range(8): e(f"ds_read_b128 {vr(R+4*w)}, v12 offset:{L_LS + 16*w}")
            e("s_waitcnt lgkmcnt(0)")
            for w in range(1, 8):
                for i in range(4): e(f"v_add_f32 v{R+i}, v{R+i}, v{R+4*w+i}")
            for h in range(4): e(f"v_readlane_b32 s{S_T0+h}, v{V_MP}, {h}")
            for h in range(4): e(f"v_or_b32 v{R+4+h}, s{S_T0+h}, v{V_T8}")
            for h in range(4): e(f"v_and_or_b32 v{R+h}, v{R+h}, s{S_M8}, v{V_T8}")
            e(f"s_lshl_b32 s{S_T0}, s{S_CHUNK}, 5")
            e(f"s_add_u32 s{S_T0}, s{S_T0}, {WS_ML:#x}")
            exec_set(1, 0)
            e(f"buffer_store_dwordx4 {vr(R+4)}, v12, {srd(SRD_WS)}, s{S_T0} offen sc1")
            e(f"buffer_store_dwordx4 {vr(R)}, v12, {srd(SRD_WS)}, s{S_T0} offen offset:16 sc1")
            exec_full()
            e("s_nop 1")
            e.label("L_no_ml")


    if not cfg.ml_late: ml_publish(V_ACC)
    BT = V_S + 16
    def pv_tile(t, sprinkle=0):
        vs = SLOT(vslot[t])
        P = V_S + 4 * t
        def perms(ee):
            b = BT + 4 * (ee % 4)
            sel = S_SELLO if ee % 2 == 0 else S_SELHI
            for m in range(4):
                e(f"v_perm_b32 v{b+m}, v{vs+4*(2*m+1)+(ee>>1)}, v{vs+4*(2*m)+(ee>>1)}, s{sel}")
        perms(0); perms(1)
        for ee in range(8):
            b = BT + 4 * (ee % 4)
            c = "0" if t == 0 else vr(V_ACC + 4 * ee)
            e(f"v_mfma_f32_16x16x32_bf16 {vr(V_ACC+4*ee)}, {vr(P)}, {vr(b)}, {c}")
            if sprinkle: pump(1)
            if ee + 2 < 8: perms(ee + 2)
    e.wait_vm(mV[0]); pv_tile(0, sprinkle=1)
    assert pos[0] == 64
    e("v_bfe_u32 v12, v0, 3, 2")
    e("v_lshlrev_b32 v12, 17, v12")
    e("v_lshrrev_b32 v13, 5, v0")
    e("v_lshl_add_u32 v12, v13, 10, v12")
    e("v_and_b32 v13, 7, v0")
    e("v_lshrrev_b32 v14, 4, v0")
    e("v_lshlrev_b32 v14, 1, v14")
    e("v_xor_b32 v13, v13, v14")
    e("v_lshl_add_u32 v12, v13, 4, v12")
    e(f"s_lshl_b32 s{S_T0}, s{S_X8}, 19")
    e(f"s_lshr_b32 s{S_T1}, s{S_JJ}, 3")
    e(f"s_lshl_b32 s{S_T1}, s{S_T1}, 15")
    e(f"s_add_u32 s{S_T0}, s{S_T0}, s{S_T1}")
    e(f"s_and_b32 s{S_T1}, s{S_JJ}, 7")
    e(f"s_lshl_b32 s{S_T1}, s{S_T1}, 7")
    e(f"s_add_u32 s{S_T0}, s{S_T0}, s{S_T1}")
    e(f"s_lshl_b32 s{S_T1}, s{S_W}, 12")
    e(f"s_add_u32 s{S_T0}, s{S_T0}, s{S_T1}")
    tile_dma(SRD_WO, 12, S_T0, 2048, L_WO)
    m_wo = e.mark()
    ML = V_Z
    def ml_addr():
        e("v_lshrrev_b32 v12, 4, v0")
        e(f"s_lshl_b32 s{S_T0}, s{S_W}, 5")
        e(f"s_lshl_b32 s{S_T1}, s{S_X8}, 2")
        e(f"s_add_u32 s{S_T0}, s{S_T0}, s{S_T1}")
        e(f"v_add_u32 v12, s{S_T0}, v12")
        e("v_lshlrev_b32 v13, 5, v12")
        e(f"s_mov_b32 s{S_T3}, {WS_ML:#x}")
    def ml_loads():
        e(f"buffer_load_dwordx4 {vr(ML)}, v13, {srd(SRD_WS)}, s{S_T3} offen sc1")
        e(f"buffer_load_dwordx4 {vr(ML+4)}, v13, {srd(SRD_WS)}, s{S_T3} offen offset:16 sc1")
    ml_addr()
    ml_loads()
    m_ml = e.mark()
    if cfg.ml_late: ml_publish(SLOT(3))
    def wait_w2(mark, extra=""):
        if not cfg.ml_late:
            e.wait_vm(mark, extra); return
        n = e.vm - mark
        lab = f"L_w2_{len(e.ins)}"
        e(f"s_cmp_eq_u32 s{S_W}, 2")
        e(f"s_cbranch_scc1 {lab}a")
        e(f"s_waitcnt vmcnt({n}){extra}")
        e(f"s_branch {lab}b")
        e.label(f"{lab}a")
        e(f"s_waitcnt vmcnt({n+2}){extra}")
        e.label(f"{lab}b")
    stamp("PV0")
    if cfg.prio_off == 'PV0': e("s_setprio 0")
    wait_w2(mV[1]); pv_tile(1)
    if cfg.prio_off == 'PV1': e("s_setprio 0")
    wait_w2(mV[2]); pv_tile(2)
    A_OC, A_OG, A_ACT, A_TB, A_TS, A_TA = 232, 233, 234, 235, 236, 237
    OCW, OCE = (2176, 272) if cfg.ofull else (2048, 256)
    e(f"s_mul_i32 s{S_T0}, s{S_W}, {OCW}")
    e(f"v_add_u32 v{A_OC}, s{S_T0}, v{V_L16}")
    e("v_lshrrev_b32 v12, 4, v0")
    e(f"s_lshl_b32 s{S_T0}, s{S_W}, 5")
    e(f"s_lshl_b32 s{S_T1}, s{S_X8}, 2")
    e(f"s_add_u32 s{S_T0}, s{S_T0}, s{S_T1}")
    e(f"v_add_u32 v12, s{S_T0}, v12")
    e("v_lshlrev_b32 v12, 11, v12")
    e("v_and_b32 v13, 15, v0")
    e(f"v_lshl_add_u32 v{A_OG}, v13, 4, v12")
    S_OG, S_YOFF = 59, 60
    e(f"s_lshr_b32 s{S_OG}, s{S_JJ}, 3")
    e(f"s_lshl_b32 s{S_OG}, s{S_OG}, 9")
    e(f"s_add_u32 s{S_OG}, s{S_OG}, {WS_O:#x}")
    e(f"s_mul_i32 s{S_T0}, s{S_W}, {ACT_STRIDE}")
    e("v_lshlrev_b32 v13, 3, v13")
    e("v_lshrrev_b32 v12, 4, v0")
    e("v_lshl_add_u32 v13, v12, 1, v13")
    e(f"v_add_u32 v{A_ACT}, s{S_T0}, v13")
    e("v_lshrrev_b32 v12, 4, v0")
    e(f"s_mul_i32 s{S_T0}, s{S_W}, {ACT_STRIDE}")
    e(f"v_lshlrev_b32 v{A_TB}, 4, v12")
    e(f"v_add_u32 v{A_TB}, s{S_T0}, v{A_TB}")
    e("v_and_b32 v13, 15, v0")
    e(f"v_lshlrev_b32 v{A_TS}, 11, v13")
    e(f"v_lshl_add_u32 v{A_TS}, v12, 4, v{A_TS}")
    e(f"s_and_b32 s{S_YOFF}, s{S_JJ}, 7")
    e(f"s_lshl_b32 s{S_YOFF}, s{S_YOFF}, 2")
    e(f"s_lshl_b32 s{S_T0}, s{S_W}, 5")
    e(f"s_add_u32 s{S_YOFF}, s{S_YOFF}, s{S_T0}")
    e(f"s_lshl_b32 s{S_YOFF}, s{S_YOFF}, 11")
    e(f"s_lshl_b32 s{S_T0}, s{S_X8}, 2")
    e(f"s_lshr_b32 s{S_T1}, s{S_JJ}, 3")
    e(f"s_add_u32 s{S_T0}, s{S_T0}, s{S_T1}")
    e(f"s_lshl_b32 s{S_T0}, s{S_T0}, 6")
    e(f"s_add_u32 s{S_YOFF}, s{S_YOFF}, s{S_T0}")
    e(f"s_add_u32 s{S_YOFF}, s{S_YOFF}, {WS_Y:#x}")
    A_TR = 224
    e("v_bfe_u32 v13, v0, 2, 2")
    e("v_lshl_add_u32 v14, v12, 3, v13")
    e("v_lshlrev_b32 v14, 7, v14")
    e("v_and_b32 v15, 3, v0")
    e("v_lshl_add_u32 v14, v15, 3, v14")
    e("v_lshrrev_b32 v13, 1, v13")
    e(f"v_lshl_add_u32 v{A_TR}, v13, 5, v14")
    e("v_add_u32 v13, 2, v13")
    e("v_and_b32 v13, 3, v13")
    e(f"v_lshl_add_u32 v{A_TR+4}, v13, 5, v14")
    e(f"v_add_u32 v{A_TR+4}, 512, v{A_TR+4}")
    for cg in range(1, 4):
        e(f"v_xor_b32 v{A_TR+cg}, {cg << 5}, v{A_TR}")
        e(f"v_xor_b32 v{A_TR+4+cg}, {cg << 5}, v{A_TR+4}")
    if cfg.ofull:
        e("v_lshrrev_b32 v14, 3, v0")
        e(f"s_lshl_b32 s{S_T0}, s{S_W}, 3")
        e(f"v_add_u32 v14, s{S_T0}, v14")
        e("v_and_b32 v13, 7, v0")
        e(f"v_mul_u32_u24 v238, {OCE}, v13")
        e("v_lshl_add_u32 v238, v14, 4, v238")
        e(f"s_lshl_b32 s{S_T0}, s{S_W}, 10")
        e(f"v_add_u32 v239, s{S_T0}, v{V_L16}")
    else:
        e("v_lshrrev_b32 v13, 4, v0")
        e(f"s_lshl_b32 s{S_T0}, s{S_W}, 2")
        e(f"v_add_u32 v13, s{S_T0}, v13")
        e("v_and_b32 v14, 15, v0")
        e("v_lshlrev_b32 v238, 8, v13")
        e("v_lshl_add_u32 v238, v14, 4, v238")
        e("v_lshl_add_u32 v13, v14, 3, v13")
        e("v_lshlrev_b32 v239, 4, v13")
    e(f"s_lshl_b32 s{S_HOFF}, s{S_CHUNK}, 11")
    e(f"s_add_u32 s{S_HOFF}, s{S_HOFF}, {WS_O:#x}")
    wait_w2(mV[3]); pv_tile(3)
    stamp("PV3")

    exec_set(0xffff, 0)
    for ee in range(8): e(f"ds_write_b128 v{A_OC}, {vr(V_ACC+4*ee)} offset:{L_OC + OCE*ee}")
    exec_full()
    if cfg.bw: e("s_waitcnt lgkmcnt(0)")
    else: wait_w2(m_ml, " lgkmcnt(0)")
    e("s_barrier")
    OG = V_S + 8
    TM = V_S + 16
    WT = V_S
    TA = SLOT(0)
    TB = SLOT(0) + 16
    TD = SLOT(1)
    with Optional():
        e(f"s_cmp_gt_u32 s{S_W}, 1")
        e("s_cbranch_scc1 L_no_opub")
        for w in range(8): e(f"ds_read_b128 {vr(V_ACC+4*w)}, v238 offset:{L_OC + OCW*w}")
        e("s_waitcnt lgkmcnt(0)")
        for i in range(4):
            e(f"v_add_f32 v{V_ACC+i}, v{V_ACC+i}, v{V_ACC+4+i}")
            e(f"v_add_f32 v{V_ACC+8+i}, v{V_ACC+8+i}, v{V_ACC+12+i}")
            e(f"v_add_f32 v{V_ACC+16+i}, v{V_ACC+16+i}, v{V_ACC+20+i}")
            e(f"v_add_f32 v{V_ACC+24+i}, v{V_ACC+24+i}, v{V_ACC+28+i}")
        for i in range(4):
            e(f"v_add_f32 v{V_ACC+i}, v{V_ACC+i}, v{V_ACC+8+i}")
            e(f"v_add_f32 v{V_ACC+16+i}, v{V_ACC+16+i}, v{V_ACC+24+i}")
        for i in range(4): e(f"v_add_f32 v{V_ACC+i}, v{V_ACC+i}, v{V_ACC+16+i}")
        if cfg.rnd:
            for i in range(4): e(f"v_add_u32 v{V_ACC+i}, 0x80, v{V_ACC+i}")
        for i in range(4): e(f"v_and_or_b32 v{V_ACC+i}, v{V_ACC+i}, s{S_M8}, v{V_T8}")
        e(f"buffer_store_dwordx4 {vr(V_ACC)}, v239, {srd(SRD_WS)}, s{S_HOFF} offen sc1")
        e.label("L_no_opub")
    stamp("O_pub")

    OA, OB = 208, 216
    def o_loads(r=OG):
        e(f"buffer_load_dwordx4 {vr(r)}, v{A_OG}, {srd(SRD_WS)}, s{S_OG} offen sc1")
        e(f"buffer_load_dwordx4 {vr(r+4)}, v{A_OG}, {srd(SRD_WS)}, s{S_OG} offen offset:256 sc1")
    o_loads(OA if cfg.ppoll else OG)
    if cfg.bw:
        e(f"s_cmp_gt_u32 s{S_W}, 1")
        e("s_cbranch_scc1 L_bw_a")
        e("s_waitcnt vmcnt(3)")
        e("s_branch L_bw_b")
        e.label("L_bw_a")
        e("s_waitcnt vmcnt(2)")
        e.label("L_bw_b")
        e("s_barrier")
    TA = SLOT(0)
    for cg in range(4):
        for t in range(4):
            e(f"ds_read_b64_tr_b16 {vr(TA+16*cg+4*t,2)}, v{A_TR+cg} offset:{L_WO + 4096*t}")
            e(f"ds_read_b64_tr_b16 {vr(TA+16*cg+4*t+2,2)}, v{A_TR+4+cg} offset:{L_WO + 4096*t}")
    gather_checked("ml", ml_loads, list(range(ML, ML + 8)), TM, V_T8, 0xff, pre=ml_addr)
    for h in range(4): e(f"v_mov_b32 v{TM+h}, v{ML+h}")
    xrow_reduce("v_max_f32", [TM + h for h in range(4)], [TM + 4 + h for h in range(4)])
    for h in range(4): e(f"v_sub_f32 v{WT+h}, v{ML+h}, v{TM+h}")
    for h in range(4): e(f"v_exp_f32 v{WT+h}, v{WT+h}")
    for h in range(4): e(f"v_mul_f32 v{TM+h}, v{WT+h}, v{ML+4+h}")
    xrow_reduce("v_add_f32", [TM + h for h in range(4)], [TM + 4 + h for h in range(4)])
    for h in range(4): e(f"v_rcp_f32 v{TM+4+h}, v{TM+h}")
    for h in range(4): e(f"v_fma_f32 v{TM+8+h}, -v{TM+h}, v{TM+4+h}, 1.0")
    for h in range(4): e(f"v_fma_f32 v{TM+4+h}, v{TM+8+h}, v{TM+4+h}, v{TM+4+h}")
    for h in range(4): e(f"v_mul_f32 v{WT+h}, v{WT+h}, v{TM+4+h}")
    if cfg.ppoll:
        poll_pipelined("o", lambda: o_loads(OA), lambda: o_loads(OB), list(range(OA, OA + 8)), list(range(OB, OB + 8)), list(range(OG, OG + 8)), 2, TM, V_T8, 0xff)
    else:
        e("s_waitcnt vmcnt(0)")
        gather_checked("o", o_loads, list(range(OG, OG + 8)), TM, V_T8, 0xff)
    stamp("O_got")
    for u in range(2):
        for h in range(4): e(f"v_mul_f32 v{OG+4*u+h}, v{OG+4*u+h}, v{WT+h}")
    for u in range(2):
        o = OG + 4 * u
        e(f"v_permlane32_swap_b32 v{o}, v{o+2}")
        e(f"v_permlane32_swap_b32 v{o+1}, v{o+3}")
    for u in range(2):
        o = OG + 4 * u
        e(f"v_add_f32 v{o}, v{o}, v{o+2}")
        e(f"v_add_f32 v{o+1}, v{o+1}, v{o+3}")
    for u in range(2):
        o = OG + 4 * u
        e(f"v_permlane16_swap_b32 v{o}, v{o+1}")
    for u in range(2):
        o = OG + 4 * u
        e(f"v_add_f32 v{o}, v{o}, v{o+1}")
    e(f"v_cvt_pk_bf16_f32 v{OG}, v{OG}, v{OG+4}")
    e(f"ds_write_b16 v{A_ACT}, v{OG} offset:{L_ACT}")
    e(f"ds_write_b16_d16_hi v{A_ACT}, v{OG} offset:{L_ACT + 128}")
    e("s_waitcnt lgkmcnt(0)")
    TB = 144
    TD = 160
    b_frags(TB, A_TB, L_ACT)
    e("s_waitcnt lgkmcnt(0)")
    for t in range(4):
        for cg in range(4):
            c = "0" if t == 0 else vr(TD + 4 * cg)
            e(f"v_mfma_f32_16x16x32_bf16 {vr(TD+4*cg)}, {vr(TA+16*cg+4*t)}, {vr(TB+4*t)}, {c}")
    e("v_and_b32 v13, 15, v0")
    for cg in range(1, 4):
        e(f"v_cmp_eq_u32 vcc, {cg}, v13")
        for i in range(4): e(f"v_cndmask_b32 v{TD+i}, v{TD+i}, v{TD+4*cg+i}, vcc")
    exec_set(0x000f000f, 0x000f000f)
    if cfg.rnd:
        for i in range(4): e(f"v_add_u32 v{TD+i}, 0x80, v{TD+i}")
    for i in range(4): e(f"v_and_or_b32 v{TD+i}, v{TD+i}, s{S_M8}, v{V_T8}")
    with Optional():
        e(f"buffer_store_dwordx4 {vr(TD)}, v{A_TS}, {srd(SRD_WS)}, s{S_YOFF} offen sc1")
    exec_full()
    stamp("y_pub")

    if cfg.finbar: e("s_barrier")
    FW = cfg.fw
    e(f"s_cmp_lg_u32 s{S_W}, s{S_X8}" if FW < 0 else f"s_cmp_lg_u32 s{S_W}, {FW}")
    e("s_cbranch_scc1 L_end")
    Y = 16
    DD = 24
    e(f"s_lshl_b32 s{S_T0}, s{S_CHUNK}, 11")
    e(f"s_add_u32 s{S_T0}, s{S_T0}, {WS_Y:#x}")
    e(f"s_lshl_b32 s{S_T1}, s{S_CHUNK}, 10")
    e(f"s_add_u32 s{S_T1}, s{S_T1}, {WS_D:#x}")
    FA, FB = 176, 192
    nfin = [0]
    def fin_loads(r=Y):
        for i in range(4): e(f"v_mov_b32 v{r+8+i}, v{V_T8}")
        for i in range(2):
            e(f"buffer_load_dwordx4 {vr(r+4*i)}, v{V_L16}, {srd(SRD_WS)}, s{S_T0} offen offset:{1024*i} sc1")
        e(f"s_mov_b64 s[{S_EXT}:{S_EXT+1}], exec")
        e("s_and_b32 exec_hi, exec_hi, 0xffffff")
        e(f"s_cbranch_execz L_fin_nod{nfin[0]}")
        e(f"buffer_load_dwordx4 {vr(r+8)}, v{V_L16}, {srd(SRD_WS)}, s{S_T1} offen sc1")
        e.label(f"L_fin_nod{nfin[0]}"); nfin[0] += 1
        e(f"s_mov_b64 exec, s[{S_EXT}:{S_EXT+1}]")
    e("v_and_b32 v13, 3, v0")
    e("v_bfe_u32 v14, v0, 4, 1")
    e("v_lshl_add_u32 v14, v13, 2, v14")
    e("v_lshlrev_b32 v14, 1, v14")
    e(f"s_lshl_b32 s{S_T2}, s{S_CHUNK}, 5")
    with Optional():
        e(f"buffer_load_ushort v40, v14, {srd(SRD_X)}, s{S_T2} offen")
        e(f"buffer_load_ushort v41, v14, {srd(SRD_X)}, s{S_T2} offen offset:4")
        fin_loads(FA if cfg.ppoll else Y)
    if cfg.ppoll:
        poll_pipelined("fin", lambda: fin_loads(FA), lambda: fin_loads(FB), list(range(FA, FA + 12)), list(range(FB, FB + 12)), list(range(Y, Y + 12)), 3, 44, V_T8, 0xff)
    else:
        e("s_waitcnt vmcnt(0)")
        gather_checked("fin", fin_loads, list(range(Y, Y + 12)), 44, V_T8, 0xff)
    stamp("fin_got")
    for i in range(4): e(f"v_add_f32 v{Y+i}, v{Y+i}, v{Y+4+i}")
    for i in range(4): e(f"v_permlane32_swap_b32 v{Y+i}, v{DD+i}")
    for i in range(4): e(f"v_add_f32 v{Y+i}, v{Y+i}, v{DD+i}")
    e(f"v_permlane16_swap_b32 v{Y}, v{Y+1}")
    e(f"v_permlane16_swap_b32 v{Y+2}, v{Y+3}")
    e(f"v_add_f32 v{Y}, v{Y}, v{Y+1}")
    e(f"v_add_f32 v{Y+2}, v{Y+2}, v{Y+3}")
    for ror in (4, 8):
        e(f"v_add_f32_dpp v{Y}, v{Y}, v{Y} row_ror:{ror} row_mask:0xf bank_mask:0xf")
        e(f"v_add_f32_dpp v{Y+2}, v{Y+2}, v{Y+2} row_ror:{ror} row_mask:0xf bank_mask:0xf")
    e(f"v_mov_b32 v{DD}, v{Y}")
    e(f"v_mov_b32 v{DD+1}, v{Y+2}")
    e(f"v_permlane32_swap_b32 v{Y}, v{DD}")
    e(f"v_permlane32_swap_b32 v{Y+2}, v{DD+1}")
    e(f"v_cvt_pk_bf16_f32 v44, v{Y}, v{Y+2}")
    e(f"v_cvt_pk_bf16_f32 v45, v{DD}, v{DD+1}")
    e(f"v_lshlrev_b32 v46, 16, v45")
    e(f"v_and_b32 v47, s{S_M16}, v45")
    e(f"v_mul_f32 v48, {f2u(-LOG2E):#x}, v46")
    e(f"v_mul_f32 v49, {f2u(-LOG2E):#x}, v47")
    e("v_exp_f32 v48, v48")
    e("v_exp_f32 v49, v49")
    e("v_add_f32 v48, 1.0, v48")
    e("v_add_f32 v49, 1.0, v49")
    e("v_rcp_f32 v48, v48")
    e("v_rcp_f32 v49, v49")
    e("v_lshlrev_b32 v50, 16, v44")
    e(f"v_and_b32 v51, s{S_M16}, v44")
    e("v_mul_f32 v48, v46, v48")
    e("v_mul_f32 v49, v47, v49")
    e("v_cvt_pk_bf16_f32 v48, v48, v49")
    e("v_lshlrev_b32 v46, 16, v48")
    e(f"v_and_b32 v47, s{S_M16}, v48")
    e("v_mul_f32 v46, v50, v46")
    e("v_mul_f32 v47, v51, v47")
    e("v_cvt_pk_bf16_f32 v48, v46, v47")
    e("v_lshlrev_b32 v46, 16, v48")
    e(f"v_and_b32 v47, s{S_M16}, v48")
    e("v_lshlrev_b32 v40, 16, v40")
    e("v_lshlrev_b32 v41, 16, v41")
    e("v_add_f32 v46, v46, v40")
    e("v_add_f32 v47, v47, v41")
    e("v_cvt_pk_bf16_f32 v48, v46, v47")
    exec_set(0x000f000f, 0)
    e(f"buffer_store_short v48, v14, {srd(SRD_OUT)}, s{S_T2} offen")
    e(f"buffer_store_short_d16_hi v48, v14, {srd(SRD_OUT)}, s{S_T2} offen offset:4")
    e("s_cmp_lg_u32 s2, 0")
    e("s_cbranch_scc1 L_no_epoch")
    exec_set(1, 0)
    e(f"v_mov_b32 v50, s{S_TAG}")
    e("v_mov_b32 v51, 0")
    e(f"buffer_store_dword v50, v51, {srd(SRD_WS)}, 0 offen offset:{WS_EPOCH}")
    e.label("L_no_epoch")
    exec_full()
    e.label("L_end")
    if cfg.stamps:
        e("s_cmp_ge_u32 s2, 256")
        e("s_cbranch_scc1 L_end2")
        e("s_memrealtime s[100:101]")
        e("s_waitcnt lgkmcnt(0)")
        e("s_lshl_b32 s55, s2, 3")
        e(f"s_add_u32 s55, s55, s{S_W}")
        e("s_lshl_b32 s55, s55, 7")
        e(f"s_add_u32 s55, s55, {WS_ST:#x}")
        exec_set(1, 0)
        e("v_mov_b32 v51, 0")
        for i in list(range(len(names))) + [15]:
            r = stamp_reg(i) if i < 15 else 100
            e(f"v_mov_b32 v48, s{r}")
            e(f"v_mov_b32 v49, s{r+1}")
            e(f"buffer_store_dwordx2 v[48:49], v51, {srd(SRD_WS)}, s55 offen offset:{8*i}")
            e("s_nop 1")
        e.label("L_end2")
    gen.names = names + ["end"]
    gen.final_wave = FW
    e("s_endpgm")

    hdr = open("cdna_kernels/" + NAME + ".s.ref").read().split("\n")
    head = [l for l in hdr if l.startswith(";") and "@launch" not in l and "Override" not in l and "grid=ceil" not in l]
    out = "\n".join(head) + "\n"
    out += f"; @launch grid=(256,1,1) block=(512,1,1) lds={L_END}\n"
    out += '.amdgcn_target "amdgcn-amd-amdhsa--gfx950"\n.text\n'
    out += f".globl {KNAME}\n.p2align 8\n.type {KNAME},@function\n{KNAME}:\n"
    out += e.text()
    out += f""".section .rodata,"a"
.p2align 6
.amdhsa_kernel {KNAME}
  .amdhsa_next_free_vgpr {NVGPR}
  .amdhsa_next_free_sgpr 102
  .amdhsa_accum_offset {NVGPR}
  .amdhsa_group_segment_fixed_size 0
  .amdhsa_kernarg_size 96
  .amdhsa_user_sgpr_count 2
  .amdhsa_user_sgpr_kernarg_segment_ptr 1
  .amdhsa_system_sgpr_workgroup_id_x 1
  .amdhsa_float_denorm_mode_32 3
.end_amdhsa_kernel
"""
    return out

if __name__ == "__main__":
    kw = eval("dict(%s)" % (sys.argv[2] if len(sys.argv) > 2 else ""))
    txt = gen(Cfg(**kw))
    path = sys.argv[1] if len(sys.argv) > 1 else "cdna_kernels/" + NAME + ".s"
    open(path, "w").write(txt)
    print("wrote", path, len(txt), "bytes; LDS", L_END)
```

```python
import sys, struct
sys.path.insert(0, "dev")
from emit import Emit

NAME = "recurrent_scan__gqa_block_cached__glu_gated_glu__decode"
KNAME = NAME + "_kernel"

WS_EPOCH = 0
WS_H   = 0x40000
WS_ML  = 0x50000
WS_O   = 0x60000
WS_Y   = 0x100000
WS_D   = 0x200000
WS_ST  = 0x300000
WS_Q   = 0x400000
WS_G   = 0x500000
WS_SIZE = 0x600000

XN_STRIDE = 1040
ACT_STRIDE = 272
L_XN  = 0
L_T1  = 8448
L_T2  = L_T1 + 16384
L_WD  = L_T2 + 16384
L_MAX = L_WD + 16384
L_LS  = L_MAX + 128
L_ACT = L_LS + 128
L_ACT2 = L_ACT + 2176
L_QS  = L_ACT2 + 2176
L_END = L_QS + 8192
L_WO  = L_T1
L_OC  = L_T2
assert L_WD + 3 * 4096 + 512 < 65536 and L_QS < 65536 and L_QS % 16 == 0 and L_ACT % 16 == 0

V_KOFF, V_VOFF, V_L16, V_T16, V_T8, V_NEGM, V_MP = 1, 2, 3, 4, 5, 6, 7
V_Q = 8
V_S = 16
V_ACC = 48
def SLOT(i): return 80 + 32 * i
V_Z = 240
NVGPR = 248

S_W, S_X8, S_JJ, S_CHUNK, S_TAG = 3, 44, 45, 46, 47
SRD_K, SRD_V, SRD_WS, SRD_X, SRD_WQ, SRD_WG, SRD_WD, SRD_WO, SRD_OUT = 4, 8, 12, 16, 20, 24, 32, 36, 40
S_IDX, S_MAT, S_CT2, S_KP = 28, 29, 30, 31
S_OFFA, S_RED, S_SELLO, S_SELHI, S_M8, S_M16, S_CNT = 48, 49, 50, 51, 52, 53, 54
S_T0, S_T1, S_T2, S_T3 = 55, 56, 57, 58
S_T3OFF, S_FR, S_HOFF = 59, 60, 61
S_EPOCH = 62
S_T4 = 63
S_T3IDX, S_CT3 = 80, 81
S_EXS, S_EXT = 82, 84
KA = 64
def stamp_reg(i): return 88 + 2 * i if i < 6 else 64 + 2 * (i - 6)

def srd(i): return f"s[{i}:{i+3}]"
def vr(a, n=4): return f"v[{a}:{a+n-1}]"
LOG2E = 1.4426950408889634
SCALE = 128 ** -0.5
def f2u(x): return struct.unpack("<I", struct.pack("<f", x))[0]

class Cfg:
    mimic = True
    window = 5
    stamps = False
    spin = 200000
    pre_b = 1
    t2_pos = 0
    qp_k = 1
    ln_k = (2, 2, 1)
    wd_at = 10
    g_at = 12
    gred_at = 19
    t3lo = 10
    abl = ''
    dbgspan = False
    rnd = True
    finbar = True
    prio_off = None
    ofull = True
    prio_at = None
    mlw = 3
    bw = False
    t3_after_s = True
    fw = 7
    touch = False
    prio = 0
    ml_late = False
    narrow = True
    ppoll = False
    t3x = True
    def __init__(self, **kw):
        for k, v in kw.items(): setattr(self, k, v)

def gen(cfg=None):
    cfg = cfg or Cfg()
    e = Emit()
    W = cfg.window
    names = []
    def stamp(name):
        if cfg.stamps:
            i = len(names); names.append(name)
            assert i < 15
            e(f"s_memrealtime s[{stamp_reg(i)}:{stamp_reg(i)+1}]")
    def exec_set(lo, hi):
        e(f"s_mov_b32 exec_lo, {lo:#x}")
        e(f"s_mov_b32 exec_hi, {hi:#x}")
    def exec_full(): e("s_mov_b64 exec, -1")
    class Optional:
        def __enter__(self): self.vm = e.vm
        def __exit__(self, *a): e.vm = self.vm

    def wave_sum_to_sgpr(v, s):
        for sh in (1, 2, 4, 8):
            e(f"v_add_f32_dpp v{v}, v{v}, v{v} row_shr:{sh} row_mask:0xf bank_mask:0xf bound_ctrl:0")
        e(f"v_add_f32_dpp v{v}, v{v}, v{v} row_bcast:15 row_mask:0xa bank_mask:0xf")
        e(f"v_add_f32_dpp v{v}, v{v}, v{v} row_bcast:31 row_mask:0xc bank_mask:0xf")
        e(f"v_readlane_b32 s{s}, v{v}, 63")
    def xrow_reduce(op, regs, tmps):
        for sw in ("v_permlane16_swap_b32", "v_permlane32_swap_b32"):
            for r, t in zip(regs, tmps): e(f"v_mov_b32 v{t}, v{r}")
            for r, t in zip(regs, tmps): e(f"{sw} v{r}, v{t}")
            for r, t in zip(regs, tmps): e(f"{op} v{r}, v{r}, v{t}")
    def prio_point(name):
        if cfg.prio_at == name:
            e(f"s_cmp_lt_u32 s{S_W}, 4")
            e(f"s_cbranch_scc1 L_noprio_{name}")
            e("s_setprio 1")
            e.label(f"L_noprio_{name}")
    def rne_single(dst, src):
        e(f"v_cvt_pk_bf16_f32 v{dst}, v{src}, v{src}")
        e(f"v_lshlrev_b32 v{dst}, 16, v{dst}")
    def poll_tail(label_retry, label_ok):
        e(f"s_cbranch_vccz {label_ok}")
        e(f"s_sub_u32 s{S_CNT}, s{S_CNT}, 1")
        e(f"s_cmp_lg_u32 s{S_CNT}, 0")
        e(f"s_cbranch_scc1 {label_retry}")
    def chk(regs, tmp, tagv, mask):
        n = len(regs)
        for r in regs: e(f"v_xor_b32 v{r}, v{r}, v{tagv}")
        accs = [tmp, tmp + 1] if n >= 8 else [tmp]
        parts = [regs[i::len(accs)] for i in range(len(accs))]
        steps = []
        for a, pr in zip(accs, parts):
            st = []
            if len(pr) >= 3: st.append(f"v_or3_b32 v{a}, v{pr[0]}, v{pr[1]}, v{pr[2]}"); i = 3
            else: st.append(f"v_or_b32 v{a}, v{pr[0]}, v{pr[1]}"); i = 2
            while i < len(pr):
                if i + 1 < len(pr): st.append(f"v_or3_b32 v{a}, v{a}, v{pr[i]}, v{pr[i+1]}"); i += 2
                else: st.append(f"v_or_b32 v{a}, v{a}, v{pr[i]}"); i += 1
            steps.append(st)
        for i in range(max(len(x) for x in steps)):
            for st in steps:
                if i < len(st): e(st[i])
        if len(accs) == 2: e(f"v_or_b32 v{tmp}, v{tmp}, v{tmp+1}")
        e(f"v_and_b32 v{tmp}, {mask:#x}, v{tmp}")
        e(f"v_cmp_ne_u32 vcc, 0, v{tmp}")
    def gather_checked(name, loads, regs, tmp, tagv, mask, pre=None):
        if 'c' in cfg.abl: return
        chk(regs, tmp, tagv, mask)
        e(f"s_cbranch_vccz L_{name}_ok")
        npl = len(e.plist)
        with Optional():
            if pre: pre()
            e(f"s_mov_b32 s{S_CNT}, {cfg.spin}")
            if cfg.narrow: e(f"s_mov_b64 s[{S_EXS}:{S_EXS+1}], exec")
            e.label(f"L_{name}_retry")
            if cfg.narrow: e("s_mov_b64 exec, vcc")
            loads()
            e("s_waitcnt vmcnt(0)")
            chk(regs, tmp, tagv, mask)
            if cfg.narrow:
                e(f"s_cbranch_vccz L_{name}_rest")
                e(f"s_sub_u32 s{S_CNT}, s{S_CNT}, 1")
                e(f"s_cmp_lg_u32 s{S_CNT}, 0")
                e(f"s_cbranch_scc1 L_{name}_retry")
                e.label(f"L_{name}_rest")
                e(f"s_mov_b64 exec, s[{S_EXS}:{S_EXS+1}]")
            else:
                poll_tail(f"L_{name}_retry", f"L_{name}_ok")
        del e.plist[npl:]
        e.label(f"L_{name}_ok")

    def poll_pipelined(name, loadsA, loadsB, regsA, regsB, regsC, nld, tmp, tagv, mask):
        if 'c' in cfg.abl:
            e("s_waitcnt vmcnt(0)")
            for c, a in zip(regsC, regsA): e(f"v_mov_b32 v{c}, v{a}")
            return
        npl = len(e.plist)
        with Optional():
            e(f"s_mov_b32 s{S_CNT}, {cfg.spin}")
            e.label(f"L_{name}_loop")
            loadsB()
            e(f"s_waitcnt vmcnt({nld})")
            chk(regsA, tmp, tagv, mask)
            e(f"s_cbranch_vccz L_{name}_okA")
            loadsA()
            e(f"s_waitcnt vmcnt({nld})")
            chk(regsB, tmp, tagv, mask)
            e(f"s_cbranch_vccz L_{name}_okB")
            e(f"s_sub_u32 s{S_CNT}, s{S_CNT}, 1")
            e(f"s_cmp_lg_u32 s{S_CNT}, 0")
            e(f"s_cbranch_scc1 L_{name}_loop")
            e.label(f"L_{name}_okB")
            for c, b in zip(regsC, regsB): e(f"v_mov_b32 v{c}, v{b}")
            e(f"s_branch L_{name}_done")
            e.label(f"L_{name}_okA")
            for c, a in zip(regsC, regsA): e(f"v_mov_b32 v{c}, v{a}")
            e.label(f"L_{name}_done")
        del e.plist[npl:]

    offstate = [None]
    def kv_load(which, t, n, slot, pace):
        so = t * 65536 + (n >> 2) * 4096
        if offstate[0] != so:
            e(f"s_mov_b32 s{S_OFFA}, {so:#x}"); offstate[0] = so
        r = SLOT(slot) + 4 * n
        voff, s = (V_KOFF, SRD_K) if which == "k" else (V_VOFF, SRD_V)
        e(f"buffer_load_dwordx4 {vr(r)}, v{voff}, {srd(s)}, s{S_OFFA} offen offset:{(n & 3) * 1024} nt")
        if pace: e.pace(W)
    vslot = [4, 0, 1, 2]
    seq = [("k", t, n) for t in range(4) for n in range(8)] + [("v", t, n) for t in range(4) for n in range(8)]
    pos = [0]
    mK = [None] * 4; mV = [None] * 4
    hooks = {}
    def pump(cnt, pace=True, upto=64):
        for _ in range(cnt):
            if pos[0] >= upto: return
            which, t, n = seq[pos[0]]; pos[0] += 1
            kv_load(which, t, n, t if which == "k" else vslot[t], pace)
            if n == 7: (mK if which == "k" else mV)[t] = e.mark()
            for h in hooks.get(pos[0], []): h()

    def tile_dma(srdn, voff, soff, step, lbase):
        if 'k' in cfg.abl: return
        e(f"s_lshl_b32 s{S_T4}, s{S_W}, 11")
        e(f"s_add_u32 m0, s{S_T4}, {lbase}")
        e(f"buffer_load_dwordx4 v{voff}, {srd(srdn)}, s{soff} offen nt lds")
        e(f"s_add_u32 s{soff}, s{soff}, {step}")
        e(f"s_add_u32 m0, s{S_T4}, {lbase + 1024}")
        e(f"buffer_load_dwordx4 v{voff}, {srd(srdn)}, s{soff} offen nt lds")
    def tile_voff(dst, rowstride):
        e(f"v_lshrrev_b32 v{dst}, 3, v0")
        e(f"v_mul_u32_u24 v{dst}, {rowstride}, v{dst}")
        e(f"v_and_b32 v15, 7, v0")
        e(f"v_lshl_add_u32 v{dst}, v15, 4, v{dst}")
    def a_addr(dst):
        e(f"v_lshrrev_b32 v{dst}, 4, v0")
        e("v_bfe_u32 v15, v0, 2, 2")
        e(f"v_lshl_add_u32 v{dst}, v{dst}, 3, v15")
        e(f"v_lshlrev_b32 v{dst}, 7, v{dst}")
        e("v_and_b32 v15, 3, v0")
        e(f"v_lshl_add_u32 v{dst}, v15, 3, v{dst}")
        e(f"s_and_b32 s{S_T4}, s{S_W}, 3")
        e(f"s_lshl_b32 s{S_T4}, s{S_T4}, 5")
        e(f"v_add_u32 v{dst}, s{S_T4}, v{dst}")
    def a_frags(ta, va, lbase):
        for t in range(4):
            e(f"ds_read_b64_tr_b16 {vr(ta+4*t,2)}, v{va} offset:{lbase + 4096*t}")
            e(f"ds_read_b64_tr_b16 {vr(ta+4*t+2,2)}, v{va} offset:{lbase + 4096*t + 512}")
    def b_frags(tb, vb, lbase):
        for t in range(4): e(f"ds_read_b128 {vr(tb+4*t)}, v{vb} offset:{lbase + 64*t}")
    def mfma_tag_store(td, ta, tb, vs, sbase, store=True):
        e(f"v_mfma_f32_16x16x32_bf16 {vr(td)}, {vr(ta)}, {vr(tb)}, 0")
        for t in range(1, 4):
            e(f"v_mfma_f32_16x16x32_bf16 {vr(td)}, {vr(ta+4*t)}, {vr(tb+4*t)}, {vr(td)}")
        exec_set(0x00ff00ff, 0x00ff00ff)
        if cfg.rnd:
            for i in range(4): e(f"v_add_u32 v{td+i}, 0x80, v{td+i}")
        for i in range(4): e(f"v_and_or_b32 v{td+i}, v{td+i}, s{S_M8}, v{V_T8}")
        if store: e(f"buffer_store_dwordx4 {vr(td)}, v{vs}, {srd(SRD_WS)}, s{sbase} offen sc1")
        exec_full()

    e("s_cmp_ge_u32 s2, 256")
    e("s_cbranch_scc1 L_end")
    stamp("start")
    e(f"s_load_dwordx16 s[{KA}:{KA+15}], s[0:1], 0")
    e(f"s_load_dwordx8 s[{KA+16}:{KA+23}], s[0:1], 64")
    P_X, P_K, P_V, P_WQ, P_WO, P_WG, P_WU, P_WD, P_OUT, P_WS = KA, KA+2, KA+4, KA+6, KA+8, KA+12, KA+14, KA+16, KA+18, KA+22
    e("v_lshrrev_b32 v12, 6, v0")
    e("v_and_b32 v0, 63, v0")
    e(f"v_readfirstlane_b32 s{S_W}, v12")
    if cfg.prio:
        e(f"s_cmp_lt_u32 s{S_W}, 4")
        e("s_cbranch_scc1 L_noprio")
        e(f"s_setprio {cfg.prio}")
        e.label("L_noprio")
    e(f"s_and_b32 s{S_X8}, s2, 7")
    e(f"s_lshr_b32 s{S_JJ}, s2, 3")
    e(f"s_lshl_b32 s{S_CHUNK}, s{S_X8}, 5")
    e(f"s_add_u32 s{S_CHUNK}, s{S_CHUNK}, s{S_JJ}")
    e(f"v_lshlrev_b32 v{V_L16}, 4, v0")
    e("v_bfe_u32 v12, v0, 2, 2")
    e(f"v_lshlrev_b32 v{V_KOFF}, 8, v12")
    e("v_lshrrev_b32 v12, 4, v0")
    e(f"v_lshl_add_u32 v{V_KOFF}, v12, 6, v{V_KOFF}")
    e("v_and_b32 v12, 3, v0")
    e(f"v_lshl_add_u32 v{V_KOFF}, v12, 4, v{V_KOFF}")
    e(f"s_lshl_b32 s{S_T0}, s{S_W}, 13")
    e(f"v_add_u32 v{V_KOFF}, s{S_T0}, v{V_KOFF}")
    e(f"v_add_u32 v{V_VOFF}, s{S_T0}, v{V_L16}")
    tile_voff(13, 8192)
    tile_voff(14, 3584)
    e(f"s_and_b32 s{S_KP}, s{S_JJ}, 3")
    e(f"s_lshr_b32 s{S_T0}, s{S_JJ}, 2")
    e(f"s_lshl_b32 s{S_IDX}, s{S_T0}, 3")
    e(f"s_add_u32 s{S_IDX}, s{S_IDX}, s{S_X8}")
    e(f"s_and_b32 s{S_MAT}, s{S_IDX}, 1")
    e(f"s_lshr_b32 s{S_CT2}, s{S_IDX}, 1")
    e(f"s_lshl_b32 s{S_T1}, s{S_X8}, 3")
    e(f"s_add_u32 s{S_T0}, s{S_T0}, s{S_T1}")
    e(f"s_lshl_b32 s{S_T0}, s{S_T0}, 7")
    e(f"s_lshl_b32 s{S_T1}, s{S_KP}, 3")
    e(f"s_add_u32 s{S_T1}, s{S_T1}, s{S_W}")
    e(f"s_lshl_b32 s{S_T2}, s{S_T1}, 17")
    e(f"s_add_u32 s{S_T0}, s{S_T0}, s{S_T2}")
    e(f"s_mul_i32 s{S_T1}, s{S_T1}, {16*3584}")
    e(f"s_lshl_b32 s{S_T2}, s{S_CT2}, 7")
    e(f"s_add_u32 s{S_T1}, s{S_T1}, s{S_T2}")
    e(f"s_lshl_b32 s{S_T2}, s{S_W}, 10")
    e(f"s_lshl_b32 s{S_T3}, s{S_CHUNK}, 18")
    e("s_waitcnt lgkmcnt(0)")
    def mk_srd(dst, src, size, add=None):
        if add is None:
            e(f"s_mov_b32 s{dst}, s{src}")
            e(f"s_mov_b32 s{dst+1}, s{src+1}")
        else:
            e(f"s_add_u32 s{dst}, s{src}, s{add}")
            e(f"s_addc_u32 s{dst+1}, s{src+1}, 0")
        e(f"s_mov_b32 s{dst+2}, {size:#x}")
        e(f"s_mov_b32 s{dst+3}, 0x00020000")
    XR = 48
    mk_srd(SRD_X, P_X, 8192)
    e(f"buffer_load_dwordx4 {vr(XR)}, v{V_L16}, {srd(SRD_X)}, s{S_T2} offen")
    m_x = e.mark()
    e("s_barrier")
    mk_srd(SRD_WQ, P_WQ, 512 * 4096 * 2)
    tile_dma(SRD_WQ, 13, S_T0, 8 * 8192, L_T1)
    e(f"s_cmp_eq_u32 s{S_MAT}, 0")
    e(f"s_cselect_b32 s{SRD_WG}, s{P_WG}, s{P_WU}")
    e(f"s_cselect_b32 s{SRD_WG+1}, s{P_WG+1}, s{P_WU+1}")
    e(f"s_mov_b32 s{SRD_WG+2}, {512*1792*2:#x}")
    e(f"s_mov_b32 s{SRD_WG+3}, 0x00020000")
    m_t1 = e.mark()
    S_GUO = 87
    m_t2_ = [None]
    def t2_dma(soff):
        with Optional():
            e(f"s_cmp_ge_u32 s{S_IDX}, 56")
            e("s_cbranch_scc1 L_no_gu_ld")
            tile_dma(SRD_WG, 14, soff, 8 * 3584, L_T2)
            e.label("L_no_gu_ld")
        m_t2_[0] = e.mark()
    if cfg.t2_pos == 0: t2_dma(S_T1)
    else: e(f"s_mov_b32 s{S_T3OFF}, s{S_T1}")
    mk_srd(SRD_K, P_K, 0x40000, add=S_T3)
    pump(cfg.pre_b, pace=False)
    mk_srd(SRD_V, P_V, 0x40000, add=S_T3)
    e(f"s_load_dword s{S_EPOCH}, s[{P_WS}:{P_WS+1}], {WS_EPOCH}")
    mk_srd(SRD_WS, P_WS, WS_SIZE)
    mk_srd(SRD_WD, P_WD, 1792 * 512 * 2)
    mk_srd(SRD_WO, P_WO, 4096 * 512 * 2)
    mk_srd(SRD_OUT, P_OUT, 8192)
    e(f"s_mov_b32 s{S_SELLO}, 0x05040100")
    e(f"s_mov_b32 s{S_SELHI}, 0x07060302")
    e(f"s_mov_b32 s{S_M8}, 0xffffff00")
    e(f"s_mov_b32 s{S_M16}, 0xffff0000")
    if cfg.touch:
        e("v_mov_b32 v12, 0")
        with Optional():
            for w, (sr, so) in enumerate([(SRD_V, "0"), (SRD_WO, None), (SRD_WD, "0"), (SRD_WS, WS_O), (SRD_WS, WS_Y), (SRD_WS, WS_D), (SRD_OUT, "0"), (SRD_V, "0")]):
                lab = f"L_touch{w}"
                e(f"s_cmp_lg_u32 s{S_W}, {w}")
                e(f"s_cbranch_scc1 {lab}")
                if so is None:
                    e(f"s_lshl_b32 s{S_T0}, s{S_X8}, 19")
                    e(f"buffer_load_dword v247, v12, {srd(sr)}, s{S_T0} offen")
                elif isinstance(so, int):
                    e(f"s_mov_b32 s{S_T0}, {so:#x}")
                    e(f"buffer_load_dword v247, v12, {srd(sr)}, s{S_T0} offen sc1")
                else:
                    e(f"buffer_load_dword v247, v12, {srd(sr)}, 0 offen nt")
                e.label(lab)
    e("s_waitcnt lgkmcnt(0)")
    e(f"s_add_u32 s{S_TAG}, s{S_EPOCH}, 0x0101")
    e(f"s_and_b32 s{S_T0}, s{S_TAG}, 0xffff")
    e(f"v_mov_b32 v{V_T16}, s{S_T0}")
    e(f"s_and_b32 s{S_T0}, s{S_TAG}, 0xff")
    e(f"v_mov_b32 v{V_T8}, s{S_T0}")

    e.wait_vm(m_x)
    stamp("x_got")
    F = 52
    for i in range(4):
        e(f"v_lshlrev_b32 v{F+2*i}, 16, v{XR+i}")
        e(f"v_and_b32 v{F+2*i+1}, s{S_M16}, v{XR+i}")
    e(f"v_add_f32 v60, v{F}, v{F+1}")
    e(f"v_add_f32 v61, v{F+2}, v{F+3}")
    e(f"v_add_f32 v62, v{F+4}, v{F+5}")
    e(f"v_add_f32 v63, v{F+6}, v{F+7}")
    e("v_add_f32 v60, v60, v61")
    e("v_add_f32 v62, v62, v63")
    e("v_add_f32 v60, v60, v62")
    pump(cfg.ln_k[0], pace=False)
    if cfg.t2_pos == 1: t2_dma(S_T3OFF)
    wave_sum_to_sgpr(60, S_T0)
    e(f"v_mov_b32 v61, s{S_T0}")
    e(f"v_mul_f32 v61, {f2u(1.0/512):#x}, v61")
    for i in range(8): e(f"v_sub_f32 v{64+i}, v{F+i}, v61")
    e("v_mul_f32 v60, v64, v64")
    for i in range(1, 8): e(f"v_fmac_f32 v60, v{64+i}, v{64+i}")
    pump(cfg.ln_k[1], pace=False)
    if cfg.t2_pos == 2: t2_dma(S_T3OFF)
    wave_sum_to_sgpr(60, S_T1)
    e(f"v_mov_b32 v62, s{S_T1}")
    e(f"v_mul_f32 v62, {f2u(1.0/512):#x}, v62")
    rne_single(62, 62)
    e(f"v_add_f32 v62, {f2u(1e-5):#x}, v62")
    rne_single(62, 62)
    e("v_sqrt_f32 v62, v62")
    rne_single(62, 62)
    rne_single(61, 61)
    e("v_rcp_f32 v63, v62")
    e("v_fma_f32 v60, -v62, v63, 1.0")
    e("v_fma_f32 v63, v60, v63, v63")
    for i in range(8): e(f"v_sub_f32 v{64+i}, v{F+i}, v61")
    for i in range(4): e(f"v_cvt_pk_bf16_f32 v{72+i}, v{64+2*i}, v{64+2*i+1}")
    for i in range(4):
        e(f"v_lshlrev_b32 v{64+2*i}, 16, v{72+i}")
        e(f"v_and_b32 v{64+2*i+1}, s{S_M16}, v{72+i}")
    for i in range(8): e(f"v_mul_f32 v{F+i}, v{64+i}, v63")
    for i in range(8): e(f"v_fma_f32 v{64+i}, -v{F+i}, v62, v{64+i}")
    for i in range(8): e(f"v_fma_f32 v{F+i}, v{64+i}, v63, v{F+i}")
    for i in range(4): e(f"v_cvt_pk_bf16_f32 v{72+i}, v{F+2*i}, v{F+2*i+1}")
    e(f"s_mul_i32 s{S_T0}, s{S_W}, {XN_STRIDE}")
    e(f"v_add_u32 v60, s{S_T0}, v{V_L16}")
    e(f"ds_write_b128 v60, v[72:75] offset:{L_XN}")
    pump(cfg.ln_k[2], pace=False)
    e("v_and_b32 v14, 7, v0")
    e(f"v_mul_u32_u24 v14, {XN_STRIDE}, v14")
    e("v_lshrrev_b32 v12, 4, v0")
    e("v_lshl_add_u32 v14, v12, 4, v14")
    e(f"s_lshl_b32 s{S_T0}, s{S_KP}, 8")
    e(f"v_add_u32 v14, s{S_T0}, v14")
    a_addr(13)
    e(f"s_lshl_b32 s{S_T0}, s{S_X8}, 2")
    e(f"s_add_u32 s{S_T0}, s{S_T0}, s{S_KP}")
    e(f"s_lshl_b32 s{S_T0}, s{S_T0}, 11")
    e(f"s_lshr_b32 s{S_T1}, s{S_JJ}, 2")
    e(f"s_lshl_b32 s{S_T1}, s{S_T1}, 8")
    e(f"s_add_u32 s{S_T0}, s{S_T0}, s{S_T1}")
    e(f"s_add_u32 s{S_T0}, s{S_T0}, {WS_Q:#x}")
    e(f"s_lshl_b32 s{S_T1}, s{S_MAT}, 2")
    e(f"s_add_u32 s{S_T1}, s{S_T1}, s{S_KP}")
    e(f"s_mul_i32 s{S_T1}, s{S_T1}, {8*7168}")
    e(f"s_lshl_b32 s{S_T2}, s{S_CT2}, 8")
    e(f"s_add_u32 s{S_T1}, s{S_T1}, s{S_T2}")
    e(f"s_add_u32 s{S_T1}, s{S_T1}, {WS_G:#x}")
    e(f"s_cmp_lt_u32 s{S_W}, 4")
    e(f"s_cselect_b32 s{S_T0}, s{S_T0}, s{S_T1}")
    e(f"s_movk_i32 s{S_T4}, 7168")
    e(f"s_cselect_b32 s{S_T2}, {8*4*2048}, s{S_T4}")
    e(f"s_cselect_b32 s{S_T3}, 0, 16384")
    e(f"s_and_b32 s{S_T1}, s{S_W}, 3")
    e(f"s_lshl_b32 s{S_T1}, s{S_T1}, 6")
    e(f"s_add_u32 s{S_T0}, s{S_T0}, s{S_T1}")
    e("v_and_b32 v20, 15, v0")
    e(f"v_mul_lo_u32 v20, v20, s{S_T2}")
    e("v_lshl_add_u32 v20, v12, 4, v20")
    e(f"v_add_u32 v13, s{S_T3}, v13")
    e.wait_vm(m_t2_[0], " lgkmcnt(0)")
    e("s_barrier")
    stamp("B1")
    pump(cfg.qp_k, pace=False)
    with Optional():
        e(f"s_cmp_ge_u32 s{S_IDX}, 56")
        e(f"s_cselect_b32 s{S_T1}, 4, 8")
        e(f"s_cmp_ge_u32 s{S_W}, s{S_T1}")
        e("s_cbranch_scc1 L_no_proj")
        b_frags(64, 14, L_XN)
        a_frags(48, 13, L_T1)
        e("s_waitcnt lgkmcnt(0)")
        mfma_tag_store(16, 48, 64, 20, S_T0, store='s' not in cfg.abl)
        e.label("L_no_proj")
    stamp("proj")

    if cfg.t3x:
        e(f"s_cmp_gt_u32 s{S_X8}, 3")
        e(f"s_subb_u32 s{S_T0}, s{S_X8}, 0")
        e(f"s_cmp_gt_u32 s{S_X8}, 5")
        e(f"s_subb_u32 s{S_T0}, s{S_T0}, 0")
        e(f"s_mul_i32 s{S_T0}, s{S_T0}, 19")
        e(f"s_sub_u32 s{S_T1}, s{S_JJ}, 9")
        e(f"s_add_u32 s{S_T3IDX}, s{S_T0}, s{S_T1}")
        e(f"s_cmp_ge_u32 s{S_T1}, 19")
        e(f"s_cselect_b32 s{S_T3IDX}, 999, s{S_T3IDX}")
        e(f"s_cmp_eq_u32 s{S_X8}, 3")
        e(f"s_cselect_b32 s{S_T3IDX}, 999, s{S_T3IDX}")
        e(f"s_cmp_eq_u32 s{S_X8}, 5")
        e(f"s_cselect_b32 s{S_T3IDX}, 999, s{S_T3IDX}")
    else:
        e(f"s_sub_u32 s{S_T1}, s{S_JJ}, {cfg.t3lo}")
        e(f"s_lshl_b32 s{S_T3IDX}, s{S_T1}, 3")
        e(f"s_add_u32 s{S_T3IDX}, s{S_T3IDX}, s{S_X8}")
        e(f"s_cmp_ge_u32 s{S_T1}, 14")
        e(f"s_cselect_b32 s{S_T3IDX}, 999, s{S_T3IDX}")
    def t3_skip(label):
        if 't' in cfg.abl:
            e(f"s_branch {label}")
        else:
            e(f"s_cmp_ge_u32 s{S_T3IDX}, 112")
            e(f"s_cbranch_scc1 {label}")
    def wd_hook():
        with Optional():
            t3_skip("L_no_wd")
            e(f"s_lshr_b32 s{S_FR}, s{S_T3IDX}, 3")
            e(f"s_and_b32 s{S_CT3}, s{S_T3IDX}, 7")
            e(f"s_lshl_b32 s{S_T1}, s{S_FR}, 17")
            e(f"s_lshl_b32 s{S_T2}, s{S_CT3}, 7")
            e(f"s_add_u32 s{S_T1}, s{S_T1}, s{S_T2}")
            e(f"s_lshl_b32 s{S_T2}, s{S_W}, 14")
            e(f"s_add_u32 s{S_T1}, s{S_T1}, s{S_T2}")
            tile_voff(12, 1024)
            if 'E' in cfg.abl:
                e(f"s_bitcmp1_b32 s{S_X8}, 0")
                e("s_cbranch_scc1 L_no_wd2")
                e(f"s_xor_b32 s{S_T2}, s{S_T1}, 128")
                tile_dma(SRD_WD, 12, S_T2, 8192, L_WD)
                tile_dma(SRD_WD, 12, S_T1, 8192, L_WD)
                e.label("L_no_wd2")
            else:
                tile_dma(SRD_WD, 12, S_T1, 8192, L_WD)
            e(f"s_lshl_b32 s{S_T3OFF}, s{S_CT3}, 2")
            e(f"s_and_b32 s{S_T0}, s{S_W}, 3")
            e(f"s_add_u32 s{S_T3OFF}, s{S_T3OFF}, s{S_T0}")
            e(f"s_lshl_b32 s{S_T3OFF}, s{S_T3OFF}, 10")
            e(f"s_lshl_b32 s{S_T0}, s{S_FR}, 6")
            e(f"s_add_u32 s{S_T3OFF}, s{S_T3OFF}, s{S_T0}")
            e(f"s_add_u32 s{S_T3OFF}, s{S_T3OFF}, {WS_D:#x}")
            e(f"s_mul_i32 s{S_T1}, s{S_W}, 7168")
            e(f"s_lshl_b32 s{S_T2}, s{S_FR}, 9")
            e(f"s_add_u32 s{S_T1}, s{S_T1}, s{S_T2}")
            e(f"s_add_u32 s{S_HOFF}, s{S_T1}, {WS_H:#x}")
            e.label("L_no_wd")
    GR = V_S
    e(f"s_sub_u32 s{S_RED}, s{S_JJ}, 28")
    e(f"s_lshl_b32 s{S_RED}, s{S_RED}, 3")
    e(f"s_add_u32 s{S_RED}, s{S_RED}, s{S_X8}")
    e(f"s_cmp_ge_u32 s{S_JJ}, 28")
    e(f"s_cselect_b32 s{S_RED}, s{S_RED}, 99")
    def g_addr():
        e("v_lshrrev_b32 v12, 4, v0")
        e(f"v_mul_u32_u24 v12, {8*7168}, v12")
        e("v_and_b32 v13, 15, v0")
        e("v_lshl_add_u32 v12, v13, 4, v12")
        e(f"s_mul_i32 s{S_T1}, s{S_W}, 7168")
        e(f"s_lshl_b32 s{S_T2}, s{S_RED}, 8")
        e(f"s_add_u32 s{S_T1}, s{S_T1}, s{S_T2}")
        e(f"s_add_u32 s{S_T1}, s{S_T1}, {WS_G:#x}")
    def g_loads():
        e(f"buffer_load_dwordx4 {vr(GR)}, v12, {srd(SRD_WS)}, s{S_T1} offen sc1")
        e(f"s_add_u32 s{S_T2}, s{S_T1}, {4 * 8 * 7168}")
        e(f"buffer_load_dwordx4 {vr(GR+4)}, v12, {srd(SRD_WS)}, s{S_T2} offen sc1")
    m_g = [None]
    def g_hook():
        with Optional():
            e(f"s_cmp_ge_u32 s{S_RED}, 28")
            e("s_cbranch_scc1 L_no_gred_ld")
            g_addr()
            g_loads()
            e.label("L_no_gred_ld")
        m_g[0] = e.mark()
    def gred_hook():
        with Optional():
            e(f"s_cmp_ge_u32 s{S_RED}, 28")
            e("s_cbranch_scc1 L_no_gred")
            e.wait_vm(m_g[0])
            gather_checked("g", g_loads, list(range(GR, GR + 8)), 48, V_T8, 0xff, pre=g_addr)
            G_, U_ = GR, GR + 4
            for i in range(4): e(f"v_permlane32_swap_b32 v{G_+i}, v{U_+i}")
            for i in range(4): e(f"v_add_f32 v{G_+i}, v{G_+i}, v{U_+i}")
            e(f"v_permlane16_swap_b32 v{G_}, v{G_+1}")
            e(f"v_permlane16_swap_b32 v{G_+2}, v{G_+3}")
            e(f"v_add_f32 v{G_}, v{G_}, v{G_+1}")
            e(f"v_add_f32 v{G_+2}, v{G_+2}, v{G_+3}")
            e(f"v_mov_b32 v{U_}, v{G_}")
            e(f"v_mov_b32 v{U_+1}, v{G_+2}")
            e(f"v_permlane32_swap_b32 v{G_}, v{U_}")
            e(f"v_permlane32_swap_b32 v{G_+2}, v{U_+1}")
            e(f"v_cvt_pk_bf16_f32 v48, v{G_}, v{G_+2}")
            e(f"v_cvt_pk_bf16_f32 v49, v{U_}, v{U_+1}")
            e("v_lshlrev_b32 v50, 16, v48")
            e(f"v_and_b32 v51, s{S_M16}, v48")
            e(f"v_mul_f32 v50, {f2u(-LOG2E):#x}, v50")
            e(f"v_mul_f32 v51, {f2u(-LOG2E):#x}, v51")
            e("v_exp_f32 v50, v50")
            e("v_exp_f32 v51, v51")
            e("v_add_f32 v50, 1.0, v50")
            e("v_add_f32 v51, 1.0, v51")
            e("v_rcp_f32 v50, v50")
            e("v_rcp_f32 v51, v51")
            e("v_cvt_pk_bf16_f32 v48, v50, v51")
            e("v_lshlrev_b32 v50, 16, v48")
            e(f"v_and_b32 v51, s{S_M16}, v48")
            e("v_lshlrev_b32 v52, 16, v49")
            e(f"v_and_b32 v53, s{S_M16}, v49")
            e("v_mul_f32 v50, v50, v52")
            e("v_mul_f32 v51, v51, v53")
            e("v_cvt_pk_bf16_f32 v48, v50, v51")
            e(f"v_lshl_or_b32 v52, v48, 16, v{V_T16}")
            e(f"v_and_or_b32 v54, v48, s{S_M16}, v{V_T16}")
            e("v_mov_b32 v53, v52")
            e("v_mov_b32 v55, v54")
            e("v_mov_b32 v56, v52")
            e("v_mov_b32 v57, v54")
            e("v_permlane16_swap_b32 v56, v53")
            e("v_permlane16_swap_b32 v57, v55")
            e(f"s_mul_i32 s{S_T1}, s{S_W}, 7168")
            e(f"s_lshl_b32 s{S_T2}, s{S_RED}, 8")
            e(f"s_add_u32 s{S_T1}, s{S_T1}, s{S_T2}")
            e(f"s_add_u32 s{S_T1}, s{S_T1}, {WS_H:#x}")
            exec_set(0xffff, 0)
            e(f"buffer_store_dwordx4 v[52:55], v{V_L16}, {srd(SRD_WS)}, s{S_T1} offen sc1")
            exec_full()
            e("s_nop 1")
            e.label("L_no_gred")
    hooks.setdefault(cfg.wd_at, []).append(wd_hook)
    hooks.setdefault(cfg.g_at, []).append(g_hook)
    hooks.setdefault(cfg.gred_at, []).append(gred_hook)
    assert pos[0] < min(cfg.wd_at, cfg.g_at)
    pump(64, upto=32)

    QL = V_ACC
    TG = V_S + 24
    def q_addr():
        e(f"s_lshl_b32 s{S_T0}, s{S_X8}, 3")
        e(f"s_lshr_b32 s{S_T1}, s{S_JJ}, 2")
        e(f"s_add_u32 s{S_T0}, s{S_T0}, s{S_T1}")
        e(f"s_lshl_b32 s{S_T0}, s{S_T0}, 3")
        e(f"s_add_u32 s{S_T0}, s{S_T0}, s{S_W}")
        e(f"s_lshl_b32 s{S_T0}, s{S_T0}, 10")
        e(f"s_add_u32 s{S_T0}, s{S_T0}, {WS_Q:#x}")
    def q_loads():
        e(f"buffer_load_dwordx4 {vr(QL)}, v{V_L16}, {srd(SRD_WS)}, s{S_T0} offen sc1")
    def h_loads():
        e(f"buffer_load_dwordx4 {vr(TG)}, v{V_L16}, {srd(SRD_WS)}, s{S_HOFF} offen sc1")
    q_addr()
    q_loads()
    m_q = e.mark()
    with Optional():
        t3_skip("L_no_h_ld")
        exec_set(0xffffffff, 0)
        h_loads()
        exec_full()
        e.label("L_no_h_ld")
    m_h = e.mark()
    pump(8)
    e.wait_vm(m_q)
    gather_checked("q", q_loads, list(range(QL, QL + 4)), 56, V_T8, 0xff, pre=q_addr)
    e(f"s_lshl_b32 s{S_T0}, s{S_W}, 10")
    e(f"s_add_u32 s{S_T0}, s{S_T0}, {L_QS}")
    e(f"v_add_u32 v12, s{S_T0}, v{V_L16}")
    e(f"ds_write_b128 v12, {vr(QL)}")
    with Optional():
        t3_skip("L_no_t3a")
        e.wait_vm(m_h)
        exec_set(0xffffffff, 0)
        gather_checked("h", h_loads, list(range(TG, TG + 4)), TG + 4, V_T16, 0xffff)
        e(f"v_perm_b32 v{TG+4}, v{TG+1}, v{TG}, s{S_SELHI}")
        e(f"v_perm_b32 v{TG+5}, v{TG+3}, v{TG+2}, s{S_SELHI}")
        e(f"s_mul_i32 s{S_T0}, s{S_W}, {ACT_STRIDE}")
        e("v_lshlrev_b32 v12, 3, v0")
        e(f"v_add_u32 v12, s{S_T0}, v12")
        e(f"ds_write_b64 v12, {vr(TG+4,2)} offset:{L_ACT2}")
        exec_full()
        e.label("L_no_t3a")
    e("v_and_b32 v13, 3, v0")
    e("v_lshlrev_b32 v13, 9, v13")
    e("v_lshrrev_b32 v15, 2, v0")
    e("v_lshl_add_u32 v13, v15, 5, v13")
    e(f"v_add_u32 v13, {L_QS}, v13")
    e("s_waitcnt lgkmcnt(0)")
    if "q" not in cfg.abl: e("s_barrier")
    for kp in range(4):
        e(f"ds_read_b128 {vr(48+8*kp)}, v13 offset:{2048*kp}")
        e(f"ds_read_b128 {vr(48+8*kp+4)}, v13 offset:{2048*kp + 16}")
    e("s_waitcnt lgkmcnt(0)")
    for i in range(8):
        e(f"v_add_f32 v{48+i}, v{48+i}, v{56+i}")
        e(f"v_add_f32 v{64+i}, v{64+i}, v{72+i}")
    for i in range(8): e(f"v_add_f32 v{48+i}, v{48+i}, v{64+i}")
    for i in range(4): e(f"v_cvt_pk_bf16_f32 v{V_Q+i}, v{48+2*i}, v{48+2*i+1}")
    stamp("q_ok")
    prio_point("BQ")
    def tile_addr(vb, vs, pstride):
        e(f"v_and_b32 v{vb}, 7, v0")
        e(f"v_mul_u32_u24 v{vb}, {ACT_STRIDE}, v{vb}")
        e(f"v_lshrrev_b32 v{vs}, 4, v0")
        e(f"v_lshl_add_u32 v{vb}, v{vs}, 4, v{vb}")
        e(f"v_lshlrev_b32 v{vs}, 4, v{vs}")
        e(f"v_and_b32 v15, 15, v0")
        e(f"v_mul_u32_u24 v15, {32*pstride}, v15")
        e(f"v_add_u32 v{vs}, v{vs}, v15")
    def t3_second_half(TD3):
        with Optional():
            t3_skip("L_no_t3b")
            e(f"s_cmp_ge_u32 s{S_W}, 4")
            e("s_cbranch_scc1 L_no_t3b")
            a_addr(12)
            tile_addr(13, 14, 1024)
            a_frags(48, 12, L_WD)
            b_frags(64, 13, L_ACT2)
            e("s_waitcnt lgkmcnt(0)")
            mfma_tag_store(TD3, 48, 64, 14, S_T3OFF)
            e("s_nop 1")
            e.label("L_no_t3b")


    if not cfg.t3_after_s: t3_second_half(16)
    for t in range(4):
        for n in range(8):
            e(f"v_mfma_f32_16x16x32_bf16 {vr(V_ACC+4*n)}, {vr(SLOT(t)+4*n)}, {vr(V_Q)}, 0")
        pump(2, upto=48)
        for n in range(8):
            d = V_ACC + 4 * n
            e(f"v_add_f32_dpp v{V_S+8*t+n}, v{d+1}, v{d} row_shl:4 row_mask:0xf bank_mask:0xf bound_ctrl:0")
        for n in range(8):
            d = V_ACC + 4 * n
            e(f"v_add_f32_dpp v{V_S+8*t+n}, v{d+2}, v{V_S+8*t+n} row_shl:8 row_mask:0xf bank_mask:0xf bound_ctrl:0")
        for n in range(8):
            d = V_ACC + 4 * n
            e(f"v_add_f32_dpp v{V_S+8*t+n}, v{d+3}, v{V_S+8*t+n} row_shl:12 row_mask:0xf bank_mask:0xf bound_ctrl:0")
    stamp("S_done")
    if cfg.t3_after_s: t3_second_half(SLOT(3))
    pump(2, upto=56)
    if cfg.mimic:
        e(f"s_mov_b32 s{S_T0}, {f2u(SCALE):#x}")
        for rep in range(2):
            for m in range(16): e(f"v_cvt_pk_bf16_f32 v{V_ACC+m}, v{V_S+2*m}, v{V_S+2*m+1}")
            for m in range(16):
                e(f"v_lshlrev_b32 v{V_S+2*m}, 16, v{V_ACC+m}")
                e(f"v_and_b32 v{V_S+2*m+1}, s{S_M16}, v{V_ACC+m}")
            if rep == 0:
                for n in range(32): e(f"v_mul_f32 v{V_S+n}, s{S_T0}, v{V_S+n}")
            pump(1, upto=56)
        cexp = LOG2E
    else:
        cexp = LOG2E * SCALE
    e(f"v_max3_f32 v12, v{V_S}, v{V_S+1}, v{V_S+2}")
    for n in range(3, 31, 2): e(f"v_max3_f32 v12, v12, v{V_S+n}, v{V_S+n+1}")
    e(f"v_max_f32 v12, v12, v{V_S+31}")
    xrow_reduce("v_max_f32", [12], [13])
    e(f"s_lshl_b32 s{S_T0}, s{S_W}, 4")
    e("v_and_b32 v14, 3, v0")
    e("v_lshlrev_b32 v14, 2, v14")
    e(f"v_add_u32 v15, s{S_T0}, v14")
    exec_set(0xf, 0)
    e(f"ds_write_b32 v15, v12 offset:{L_MAX}")
    exec_full()
    e("s_waitcnt lgkmcnt(0)")
    if "4" not in cfg.abl: e("s_barrier")
    prio_point("B4")
    for w in range(8): e(f"ds_read_b32 v{V_ACC+w}, v14 offset:{L_MAX + 16*w}")
    pump(1, upto=56)
    e("s_waitcnt lgkmcnt(0)")
    e(f"v_max3_f32 v12, v{V_ACC}, v{V_ACC+1}, v{V_ACC+2}")
    e(f"v_max3_f32 v12, v12, v{V_ACC+3}, v{V_ACC+4}")
    e(f"v_max3_f32 v12, v12, v{V_ACC+5}, v{V_ACC+6}")
    e(f"v_max_f32 v12, v12, v{V_ACC+7}")
    e(f"s_mov_b32 s{S_T0}, {f2u(cexp):#x}")
    e(f"v_mul_f32 v12, s{S_T0}, v12")
    e(f"v_and_b32 v{V_MP}, s{S_M8}, v12")
    e(f"v_sub_f32 v{V_NEGM}, 0, v{V_MP}")
    for n in range(32): e(f"v_fma_f32 v{V_S+n}, v{V_S+n}, s{S_T0}, v{V_NEGM}")
    pump(1, upto=56)
    for n in range(32): e(f"v_exp_f32 v{V_S+n}, v{V_S+n}")
    pump(1, upto=56)
    e(f"v_add_f32 v12, v{V_S}, v{V_S+1}")
    e(f"v_add_f32 v13, v{V_S+2}, v{V_S+3}")
    for n in range(4, 32, 2):
        e(f"v_add_f32 v12, v12, v{V_S+n}")
        e(f"v_add_f32 v13, v13, v{V_S+n+1}")
    e("v_add_f32 v12, v12, v13")
    for m in range(16): e(f"v_cvt_pk_bf16_f32 v{V_S+m}, v{V_S+2*m}, v{V_S+2*m+1}")
    xrow_reduce("v_add_f32", [12], [13])
    exec_set(0xf, 0)
    e(f"ds_write_b32 v15, v12 offset:{L_LS}")
    exec_full()
    pump(8, upto=56)
    e("s_waitcnt lgkmcnt(0)")
    if "5" not in cfg.abl: e("s_barrier")
    stamp("softmax")
    prio_point("B5")
    def ml_publish(R):
        with Optional():
            e(f"s_cmp_lg_u32 s{S_W}, {cfg.mlw}")
            e("s_cbranch_scc1 L_no_ml")
            e("v_mov_b32 v12, 0")
            for w in range(8): e(f"ds_read_b128 {vr(R+4*w)}, v12 offset:{L_LS + 16*w}")
            e("s_waitcnt lgkmcnt(0)")
            for w in range(1, 8):
                for i in range(4): e(f"v_add_f32 v{R+i}, v{R+i}, v{R+4*w+i}")
            for h in range(4): e(f"v_readlane_b32 s{S_T0+h}, v{V_MP}, {h}")
            for h in range(4): e(f"v_or_b32 v{R+4+h}, s{S_T0+h}, v{V_T8}")
            for h in range(4): e(f"v_and_or_b32 v{R+h}, v{R+h}, s{S_M8}, v{V_T8}")
            e(f"s_lshl_b32 s{S_T0}, s{S_CHUNK}, 5")
            e(f"s_add_u32 s{S_T0}, s{S_T0}, {WS_ML:#x}")
            exec_set(1, 0)
            e(f"buffer_store_dwordx4 {vr(R+4)}, v12, {srd(SRD_WS)}, s{S_T0} offen sc1")
            e(f"buffer_store_dwordx4 {vr(R)}, v12, {srd(SRD_WS)}, s{S_T0} offen offset:16 sc1")
            exec_full()
            e("s_nop 1")
            e.label("L_no_ml")


    if not cfg.ml_late: ml_publish(V_ACC)
    BT = V_S + 16
    def pv_tile(t, sprinkle=0):
        vs = SLOT(vslot[t])
        P = V_S + 4 * t
        def perms(ee):
            b = BT + 4 * (ee % 4)
            sel = S_SELLO if ee % 2 == 0 else S_SELHI
            for m in range(4):
                e(f"v_perm_b32 v{b+m}, v{vs+4*(2*m+1)+(ee>>1)}, v{vs+4*(2*m)+(ee>>1)}, s{sel}")
        perms(0); perms(1)
        for ee in range(8):
            b = BT + 4 * (ee % 4)
            c = "0" if t == 0 else vr(V_ACC + 4 * ee)
            e(f"v_mfma_f32_16x16x32_bf16 {vr(V_ACC+4*ee)}, {vr(P)}, {vr(b)}, {c}")
            if sprinkle: pump(1)
            if ee + 2 < 8: perms(ee + 2)
    e.wait_vm(mV[0]); pv_tile(0, sprinkle=1)
    assert pos[0] == 64
    e("v_bfe_u32 v12, v0, 3, 2")
    e("v_lshlrev_b32 v12, 17, v12")
    e("v_lshrrev_b32 v13, 5, v0")
    e("v_lshl_add_u32 v12, v13, 10, v12")
    e("v_and_b32 v13, 7, v0")
    e("v_lshrrev_b32 v14, 4, v0")
    e("v_lshlrev_b32 v14, 1, v14")
    e("v_xor_b32 v13, v13, v14")
    e("v_lshl_add_u32 v12, v13, 4, v12")
    e(f"s_lshl_b32 s{S_T0}, s{S_X8}, 19")
    e(f"s_lshr_b32 s{S_T1}, s{S_JJ}, 3")
    e(f"s_lshl_b32 s{S_T1}, s{S_T1}, 15")
    e(f"s_add_u32 s{S_T0}, s{S_T0}, s{S_T1}")
    e(f"s_and_b32 s{S_T1}, s{S_JJ}, 7")
    e(f"s_lshl_b32 s{S_T1}, s{S_T1}, 7")
    e(f"s_add_u32 s{S_T0}, s{S_T0}, s{S_T1}")
    e(f"s_lshl_b32 s{S_T1}, s{S_W}, 12")
    e(f"s_add_u32 s{S_T0}, s{S_T0}, s{S_T1}")
    tile_dma(SRD_WO, 12, S_T0, 2048, L_WO)
    m_wo = e.mark()
    ML = V_Z
    def ml_addr():
        e("v_lshrrev_b32 v12, 4, v0")
        e(f"s_lshl_b32 s{S_T0}, s{S_W}, 5")
        e(f"s_lshl_b32 s{S_T1}, s{S_X8}, 2")
        e(f"s_add_u32 s{S_T0}, s{S_T0}, s{S_T1}")
        e(f"v_add_u32 v12, s{S_T0}, v12")
        e("v_lshlrev_b32 v13, 5, v12")
        e(f"s_mov_b32 s{S_T3}, {WS_ML:#x}")
    def ml_loads():
        e(f"buffer_load_dwordx4 {vr(ML)}, v13, {srd(SRD_WS)}, s{S_T3} offen sc1")
        e(f"buffer_load_dwordx4 {vr(ML+4)}, v13, {srd(SRD_WS)}, s{S_T3} offen offset:16 sc1")
    ml_addr()
    ml_loads()
    m_ml = e.mark()
    if cfg.ml_late: ml_publish(SLOT(3))
    def wait_w2(mark, extra=""):
        if not cfg.ml_late:
            e.wait_vm(mark, extra); return
        n = e.vm - mark
        lab = f"L_w2_{len(e.ins)}"
        e(f"s_cmp_eq_u32 s{S_W}, 2")
        e(f"s_cbranch_scc1 {lab}a")
        e(f"s_waitcnt vmcnt({n}){extra}")
        e(f"s_branch {lab}b")
        e.label(f"{lab}a")
        e(f"s_waitcnt vmcnt({n+2}){extra}")
        e.label(f"{lab}b")
    stamp("PV0")
    if cfg.prio_off == 'PV0': e("s_setprio 0")
    wait_w2(mV[1]); pv_tile(1)
    if cfg.prio_off == 'PV1': e("s_setprio 0")
    wait_w2(mV[2]); pv_tile(2)
    A_OC, A_OG, A_ACT, A_TB, A_TS, A_TA = 232, 233, 234, 235, 236, 237
    OCW, OCE = (2176, 272) if cfg.ofull else (2048, 256)
    e(f"s_mul_i32 s{S_T0}, s{S_W}, {OCW}")
    e(f"v_add_u32 v{A_OC}, s{S_T0}, v{V_L16}")
    e("v_lshrrev_b32 v12, 4, v0")
    e(f"s_lshl_b32 s{S_T0}, s{S_W}, 5")
    e(f"s_lshl_b32 s{S_T1}, s{S_X8}, 2")
    e(f"s_add_u32 s{S_T0}, s{S_T0}, s{S_T1}")
    e(f"v_add_u32 v12, s{S_T0}, v12")
    e("v_lshlrev_b32 v12, 11, v12")
    e("v_and_b32 v13, 15, v0")
    e(f"v_lshl_add_u32 v{A_OG}, v13, 4, v12")
    S_OG, S_YOFF = 59, 60
    e(f"s_lshr_b32 s{S_OG}, s{S_JJ}, 3")
    e(f"s_lshl_b32 s{S_OG}, s{S_OG}, 9")
    e(f"s_add_u32 s{S_OG}, s{S_OG}, {WS_O:#x}")
    e(f"s_mul_i32 s{S_T0}, s{S_W}, {ACT_STRIDE}")
    e("v_lshlrev_b32 v13, 3, v13")
    e("v_lshrrev_b32 v12, 4, v0")
    e("v_lshl_add_u32 v13, v12, 1, v13")
    e(f"v_add_u32 v{A_ACT}, s{S_T0}, v13")
    e("v_lshrrev_b32 v12, 4, v0")
    e(f"s_mul_i32 s{S_T0}, s{S_W}, {ACT_STRIDE}")
    e(f"v_lshlrev_b32 v{A_TB}, 4, v12")
    e(f"v_add_u32 v{A_TB}, s{S_T0}, v{A_TB}")
    e("v_and_b32 v13, 15, v0")
    e(f"v_lshlrev_b32 v{A_TS}, 11, v13")
    e(f"v_lshl_add_u32 v{A_TS}, v12, 4, v{A_TS}")
    e(f"s_and_b32 s{S_YOFF}, s{S_JJ}, 7")
    e(f"s_lshl_b32 s{S_YOFF}, s{S_YOFF}, 2")
    e(f"s_lshl_b32 s{S_T0}, s{S_W}, 5")
    e(f"s_add_u32 s{S_YOFF}, s{S_YOFF}, s{S_T0}")
    e(f"s_lshl_b32 s{S_YOFF}, s{S_YOFF}, 11")
    e(f"s_lshl_b32 s{S_T0}, s{S_X8}, 2")
    e(f"s_lshr_b32 s{S_T1}, s{S_JJ}, 3")
    e(f"s_add_u32 s{S_T0}, s{S_T0}, s{S_T1}")
    e(f"s_lshl_b32 s{S_T0}, s{S_T0}, 6")
    e(f"s_add_u32 s{S_YOFF}, s{S_YOFF}, s{S_T0}")
    e(f"s_add_u32 s{S_YOFF}, s{S_YOFF}, {WS_Y:#x}")
    A_TR = 224
    e("v_bfe_u32 v13, v0, 2, 2")
    e("v_lshl_add_u32 v14, v12, 3, v13")
    e("v_lshlrev_b32 v14, 7, v14")
    e("v_and_b32 v15, 3, v0")
    e("v_lshl_add_u32 v14, v15, 3, v14")
    e("v_lshrrev_b32 v13, 1, v13")
    e(f"v_lshl_add_u32 v{A_TR}, v13, 5, v14")
    e("v_add_u32 v13, 2, v13")
    e("v_and_b32 v13, 3, v13")
    e(f"v_lshl_add_u32 v{A_TR+4}, v13, 5, v14")
    e(f"v_add_u32 v{A_TR+4}, 512, v{A_TR+4}")
    for cg in range(1, 4):
        e(f"v_xor_b32 v{A_TR+cg}, {cg << 5}, v{A_TR}")
        e(f"v_xor_b32 v{A_TR+4+cg}, {cg << 5}, v{A_TR+4}")
    if cfg.ofull:
        e("v_lshrrev_b32 v14, 3, v0")
        e(f"s_lshl_b32 s{S_T0}, s{S_W}, 3")
        e(f"v_add_u32 v14, s{S_T0}, v14")
        e("v_and_b32 v13, 7, v0")
        e(f"v_mul_u32_u24 v238, {OCE}, v13")
        e("v_lshl_add_u32 v238, v14, 4, v238")
        e(f"s_lshl_b32 s{S_T0}, s{S_W}, 10")
        e(f"v_add_u32 v239, s{S_T0}, v{V_L16}")
    else:
        e("v_lshrrev_b32 v13, 4, v0")
        e(f"s_lshl_b32 s{S_T0}, s{S_W}, 2")
        e(f"v_add_u32 v13, s{S_T0}, v13")
        e("v_and_b32 v14, 15, v0")
        e("v_lshlrev_b32 v238, 8, v13")
        e("v_lshl_add_u32 v238, v14, 4, v238")
        e("v_lshl_add_u32 v13, v14, 3, v13")
        e("v_lshlrev_b32 v239, 4, v13")
    e(f"s_lshl_b32 s{S_HOFF}, s{S_CHUNK}, 11")
    e(f"s_add_u32 s{S_HOFF}, s{S_HOFF}, {WS_O:#x}")
    wait_w2(mV[3]); pv_tile(3)
    stamp("PV3")

    exec_set(0xffff, 0)
    for ee in range(8): e(f"ds_write_b128 v{A_OC}, {vr(V_ACC+4*ee)} offset:{L_OC + OCE*ee}")
    exec_full()
    if cfg.bw: e("s_waitcnt lgkmcnt(0)")
    else: wait_w2(m_ml, " lgkmcnt(0)")
    e("s_barrier")
    OG = V_S + 8
    TM = V_S + 16
    WT = V_S
    TA = SLOT(0)
    TB = SLOT(0) + 16
    TD = SLOT(1)
    with Optional():
        e(f"s_cmp_gt_u32 s{S_W}, 1")
        e("s_cbranch_scc1 L_no_opub")
        for w in range(8): e(f"ds_read_b128 {vr(V_ACC+4*w)}, v238 offset:{L_OC + OCW*w}")
        e("s_waitcnt lgkmcnt(0)")
        for i in range(4):
            e(f"v_add_f32 v{V_ACC+i}, v{V_ACC+i}, v{V_ACC+4+i}")
            e(f"v_add_f32 v{V_ACC+8+i}, v{V_ACC+8+i}, v{V_ACC+12+i}")
            e(f"v_add_f32 v{V_ACC+16+i}, v{V_ACC+16+i}, v{V_ACC+20+i}")
            e(f"v_add_f32 v{V_ACC+24+i}, v{V_ACC+24+i}, v{V_ACC+28+i}")
        for i in range(4):
            e(f"v_add_f32 v{V_ACC+i}, v{V_ACC+i}, v{V_ACC+8+i}")
            e(f"v_add_f32 v{V_ACC+16+i}, v{V_ACC+16+i}, v{V_ACC+24+i}")
        for i in range(4): e(f"v_add_f32 v{V_ACC+i}, v{V_ACC+i}, v{V_ACC+16+i}")
        if cfg.rnd:
            for i in range(4): e(f"v_add_u32 v{V_ACC+i}, 0x80, v{V_ACC+i}")
        for i in range(4): e(f"v_and_or_b32 v{V_ACC+i}, v{V_ACC+i}, s{S_M8}, v{V_T8}")
        e(f"buffer_store_dwordx4 {vr(V_ACC)}, v239, {srd(SRD_WS)}, s{S_HOFF} offen sc1")
        e.label("L_no_opub")
    stamp("O_pub")

    OA, OB = 208, 216
    def o_loads(r=OG):
        e(f"buffer_load_dwordx4 {vr(r)}, v{A_OG}, {srd(SRD_WS)}, s{S_OG} offen sc1")
        e(f"buffer_load_dwordx4 {vr(r+4)}, v{A_OG}, {srd(SRD_WS)}, s{S_OG} offen offset:256 sc1")
    o_loads(OA if cfg.ppoll else OG)
    if cfg.bw:
        e(f"s_cmp_gt_u32 s{S_W}, 1")
        e("s_cbranch_scc1 L_bw_a")
        e("s_waitcnt vmcnt(3)")
        e("s_branch L_bw_b")
        e.label("L_bw_a")
        e("s_waitcnt vmcnt(2)")
        e.label("L_bw_b")
        e("s_barrier")
    TA = SLOT(0)
    for cg in range(4):
        for t in range(4):
            e(f"ds_read_b64_tr_b16 {vr(TA+16*cg+4*t,2)}, v{A_TR+cg} offset:{L_WO + 4096*t}")
            e(f"ds_read_b64_tr_b16 {vr(TA+16*cg+4*t+2,2)}, v{A_TR+4+cg} offset:{L_WO + 4096*t}")
    gather_checked("ml", ml_loads, list(range(ML, ML + 8)), TM, V_T8, 0xff, pre=ml_addr)
    for h in range(4): e(f"v_mov_b32 v{TM+h}, v{ML+h}")
    xrow_reduce("v_max_f32", [TM + h for h in range(4)], [TM + 4 + h for h in range(4)])
    for h in range(4): e(f"v_sub_f32 v{WT+h}, v{ML+h}, v{TM+h}")
    for h in range(4): e(f"v_exp_f32 v{WT+h}, v{WT+h}")
    for h in range(4): e(f"v_mul_f32 v{TM+h}, v{WT+h}, v{ML+4+h}")
    xrow_reduce("v_add_f32", [TM + h for h in range(4)], [TM + 4 + h for h in range(4)])
    for h in range(4): e(f"v_rcp_f32 v{TM+4+h}, v{TM+h}")
    for h in range(4): e(f"v_fma_f32 v{TM+8+h}, -v{TM+h}, v{TM+4+h}, 1.0")
    for h in range(4): e(f"v_fma_f32 v{TM+4+h}, v{TM+8+h}, v{TM+4+h}, v{TM+4+h}")
    for h in range(4): e(f"v_mul_f32 v{WT+h}, v{WT+h}, v{TM+4+h}")
    if cfg.ppoll:
        poll_pipelined("o", lambda: o_loads(OA), lambda: o_loads(OB), list(range(OA, OA + 8)), list(range(OB, OB + 8)), list(range(OG, OG + 8)), 2, TM, V_T8, 0xff)
    else:
        e("s_waitcnt vmcnt(0)")
        gather_checked("o", o_loads, list(range(OG, OG + 8)), TM, V_T8, 0xff)
    stamp("O_got")
    for u in range(2):
        for h in range(4): e(f"v_mul_f32 v{OG+4*u+h}, v{OG+4*u+h}, v{WT+h}")
    for u in range(2):
        o = OG + 4 * u
        e(f"v_permlane32_swap_b32 v{o}, v{o+2}")
        e(f"v_permlane32_swap_b32 v{o+1}, v{o+3}")
    for u in range(2):
        o = OG + 4 * u
        e(f"v_add_f32 v{o}, v{o}, v{o+2}")
        e(f"v_add_f32 v{o+1}, v{o+1}, v{o+3}")
    for u in range(2):
        o = OG + 4 * u
        e(f"v_permlane16_swap_b32 v{o}, v{o+1}")
    for u in range(2):
        o = OG + 4 * u
        e(f"v_add_f32 v{o}, v{o}, v{o+1}")
    e(f"v_cvt_pk_bf16_f32 v{OG}, v{OG}, v{OG+4}")
    e(f"ds_write_b16 v{A_ACT}, v{OG} offset:{L_ACT}")
    e(f"ds_write_b16_d16_hi v{A_ACT}, v{OG} offset:{L_ACT + 128}")
    e("s_waitcnt lgkmcnt(0)")
    TB = 144
    TD = 160
    b_frags(TB, A_TB, L_ACT)
    e("s_waitcnt lgkmcnt(0)")
    for t in range(4):
        for cg in range(4):
            c = "0" if t == 0 else vr(TD + 4 * cg)
            e(f"v_mfma_f32_16x16x32_bf16 {vr(TD+4*cg)}, {vr(TA+16*cg+4*t)}, {vr(TB+4*t)}, {c}")
    e("v_and_b32 v13, 15, v0")
    for cg in range(1, 4):
        e(f"v_cmp_eq_u32 vcc, {cg}, v13")
        for i in range(4): e(f"v_cndmask_b32 v{TD+i}, v{TD+i}, v{TD+4*cg+i}, vcc")
    exec_set(0x000f000f, 0x000f000f)
    if cfg.rnd:
        for i in range(4): e(f"v_add_u32 v{TD+i}, 0x80, v{TD+i}")
    for i in range(4): e(f"v_and_or_b32 v{TD+i}, v{TD+i}, s{S_M8}, v{V_T8}")
    with Optional():
        e(f"buffer_store_dwordx4 {vr(TD)}, v{A_TS}, {srd(SRD_WS)}, s{S_YOFF} offen sc1")
    exec_full()
    stamp("y_pub")

    if cfg.finbar: e("s_barrier")
    FW = cfg.fw
    e(f"s_cmp_lg_u32 s{S_W}, s{S_X8}" if FW < 0 else f"s_cmp_lg_u32 s{S_W}, {FW}")
    e("s_cbranch_scc1 L_end")
    Y = 16
    DD = 24
    e(f"s_lshl_b32 s{S_T0}, s{S_CHUNK}, 11")
    e(f"s_add_u32 s{S_T0}, s{S_T0}, {WS_Y:#x}")
    e(f"s_lshl_b32 s{S_T1}, s{S_CHUNK}, 10")
    e(f"s_add_u32 s{S_T1}, s{S_T1}, {WS_D:#x}")
    FA, FB = 176, 192
    nfin = [0]
    def fin_loads(r=Y):
        for i in range(4): e(f"v_mov_b32 v{r+8+i}, v{V_T8}")
        for i in range(2):
            e(f"buffer_load_dwordx4 {vr(r+4*i)}, v{V_L16}, {srd(SRD_WS)}, s{S_T0} offen offset:{1024*i} sc1")
        e(f"s_mov_b64 s[{S_EXT}:{S_EXT+1}], exec")
        e("s_and_b32 exec_hi, exec_hi, 0xffffff")
        e(f"s_cbranch_execz L_fin_nod{nfin[0]}")
        e(f"buffer_load_dwordx4 {vr(r+8)}, v{V_L16}, {srd(SRD_WS)}, s{S_T1} offen sc1")
        e.label(f"L_fin_nod{nfin[0]}"); nfin[0] += 1
        e(f"s_mov_b64 exec, s[{S_EXT}:{S_EXT+1}]")
    e("v_and_b32 v13, 3, v0")
    e("v_bfe_u32 v14, v0, 4, 1")
    e("v_lshl_add_u32 v14, v13, 2, v14")
    e("v_lshlrev_b32 v14, 1, v14")
    e(f"s_lshl_b32 s{S_T2}, s{S_CHUNK}, 5")
    with Optional():
        e(f"buffer_load_ushort v40, v14, {srd(SRD_X)}, s{S_T2} offen")
        e(f"buffer_load_ushort v41, v14, {srd(SRD_X)}, s{S_T2} offen offset:4")
        fin_loads(FA if cfg.ppoll else Y)
    if cfg.ppoll:
        poll_pipelined("fin", lambda: fin_loads(FA), lambda: fin_loads(FB), list(range(FA, FA + 12)), list(range(FB, FB + 12)), list(range(Y, Y + 12)), 3, 44, V_T8, 0xff)
    else:
        e("s_waitcnt vmcnt(0)")
        gather_checked("fin", fin_loads, list(range(Y, Y + 12)), 44, V_T8, 0xff)
    stamp("fin_got")
    for i in range(4): e(f"v_add_f32 v{Y+i}, v{Y+i}, v{Y+4+i}")
    for i in range(4): e(f"v_permlane32_swap_b32 v{Y+i}, v{DD+i}")
    for i in range(4): e(f"v_add_f32 v{Y+i}, v{Y+i}, v{DD+i}")
    e(f"v_permlane16_swap_b32 v{Y}, v{Y+1}")
    e(f"v_permlane16_swap_b32 v{Y+2}, v{Y+3}")
    e(f"v_add_f32 v{Y}, v{Y}, v{Y+1}")
    e(f"v_add_f32 v{Y+2}, v{Y+2}, v{Y+3}")
    for ror in (4, 8):
        e(f"v_add_f32_dpp v{Y}, v{Y}, v{Y} row_ror:{ror} row_mask:0xf bank_mask:0xf")
        e(f"v_add_f32_dpp v{Y+2}, v{Y+2}, v{Y+2} row_ror:{ror} row_mask:0xf bank_mask:0xf")
    e(f"v_mov_b32 v{DD}, v{Y}")
    e(f"v_mov_b32 v{DD+1}, v{Y+2}")
    e(f"v_permlane32_swap_b32 v{Y}, v{DD}")
    e(f"v_permlane32_swap_b32 v{Y+2}, v{DD+1}")
    e(f"v_cvt_pk_bf16_f32 v44, v{Y}, v{Y+2}")
    e(f"v_cvt_pk_bf16_f32 v45, v{DD}, v{DD+1}")
    e(f"v_lshlrev_b32 v46, 16, v45")
    e(f"v_and_b32 v47, s{S_M16}, v45")
    e(f"v_mul_f32 v48, {f2u(-LOG2E):#x}, v46")
    e(f"v_mul_f32 v49, {f2u(-LOG2E):#x}, v47")
    e("v_exp_f32 v48, v48")
    e("v_exp_f32 v49, v49")
    e("v_add_f32 v48, 1.0, v48")
    e("v_add_f32 v49, 1.0, v49")
    e("v_rcp_f32 v48, v48")
    e("v_rcp_f32 v49, v49")
    e("v_lshlrev_b32 v50, 16, v44")
    e(f"v_and_b32 v51, s{S_M16}, v44")
    e("v_mul_f32 v48, v46, v48")
    e("v_mul_f32 v49, v47, v49")
    e("v_cvt_pk_bf16_f32 v48, v48, v49")
    e("v_lshlrev_b32 v46, 16, v48")
    e(f"v_and_b32 v47, s{S_M16}, v48")
    e("v_mul_f32 v46, v50, v46")
    e("v_mul_f32 v47, v51, v47")
    e("v_cvt_pk_bf16_f32 v48, v46, v47")
    e("v_lshlrev_b32 v46, 16, v48")
    e(f"v_and_b32 v47, s{S_M16}, v48")
    e("v_lshlrev_b32 v40, 16, v40")
    e("v_lshlrev_b32 v41, 16, v41")
    e("v_add_f32 v46, v46, v40")
    e("v_add_f32 v47, v47, v41")
    e("v_cvt_pk_bf16_f32 v48, v46, v47")
    exec_set(0x000f000f, 0)
    e(f"buffer_store_short v48, v14, {srd(SRD_OUT)}, s{S_T2} offen")
    e(f"buffer_store_short_d16_hi v48, v14, {srd(SRD_OUT)}, s{S_T2} offen offset:4")
    e("s_cmp_lg_u32 s2, 0")
    e("s_cbranch_scc1 L_no_epoch")
    exec_set(1, 0)
    e(f"v_mov_b32 v50, s{S_TAG}")
    e("v_mov_b32 v51, 0")
    e(f"buffer_store_dword v50, v51, {srd(SRD_WS)}, 0 offen offset:{WS_EPOCH}")
    e.label("L_no_epoch")
    exec_full()
    e.label("L_end")
    if cfg.stamps:
        e("s_cmp_ge_u32 s2, 256")
        e("s_cbranch_scc1 L_end2")
        e("s_memrealtime s[100:101]")
        e("s_waitcnt lgkmcnt(0)")
        e("s_lshl_b32 s55, s2, 3")
        e(f"s_add_u32 s55, s55, s{S_W}")
        e("s_lshl_b32 s55, s55, 7")
        e(f"s_add_u32 s55, s55, {WS_ST:#x}")
        exec_set(1, 0)
        e("v_mov_b32 v51, 0")
        for i in list(range(len(names))) + [15]:
            r = stamp_reg(i) if i < 15 else 100
            e(f"v_mov_b32 v48, s{r}")
            e(f"v_mov_b32 v49, s{r+1}")
            e(f"buffer_store_dwordx2 v[48:49], v51, {srd(SRD_WS)}, s55 offen offset:{8*i}")
            e("s_nop 1")
        e.label("L_end2")
    gen.names = names + ["end"]
    gen.final_wave = FW
    e("s_endpgm")

    hdr = open("cdna_kernels/" + NAME + ".s.ref").read().split("\n")
    head = [l for l in hdr if l.startswith(";") and "@launch" not in l and "Override" not in l and "grid=ceil" not in l]
    doc = """;
; One persistent launch, 256 workgroups x 8 waves (one workgroup per CU); id = 8*jj + x.
;   attention chunk   : batch x, kv head jj>>2, key quarter jj&3 (1024 keys; wave w owns key tiles 8t+w, 32 keys each)
;   K and V stream straight into registers (nt, 1 KiB per wave instruction, at most 5 in flight per wave)
;   scores            : MFMA with K rows as (key, dim-quarter), q columns as (dim-quarter, head), diagonal summed by DPP
;   softmax           : true maximum of the workgroup's 1024 keys (LDS exchange), bf16 rounding of the scores as the reference
;   P.V               : v_perm transposes V pairs in registers, MFMA accumulates O for the 4 heads
;   projections       : [128 k x 64 n] weight tiles through LDS-DMA + transposing LDS reads (wq, gate/up, w_down, wo)
; Hand-offs between workgroups go through d_ws with write-through stores and L1-bypassing loads; every handed-off dword
; carries a tag in its low bits (tag = word 0 of d_ws at entry + 0x0101, written back by workgroup 0 at the end), the
; consumer re-reads until every tag matches (bounded), and clears the tag bits before use.
;   q / gate-up partials -> q fragments, h -> w_down partials ; (M, L, O) per chunk -> wo partials per batch -> output
""".split("\n")[:-1]
    out = "\n".join(head + doc) + "\n"
    out += f"; @launch grid=(256,1,1) block=(512,1,1) lds={L_END}\n"
    out += '.amdgcn_target "amdgcn-amd-amdhsa--gfx950"\n.text\n'
    out += f".globl {KNAME}\n.p2align 8\n.type {KNAME},@function\n{KNAME}:\n"
    out += e.text()
    out += f""".section .rodata,"a"
.p2align 6
.amdhsa_kernel {KNAME}
  .amdhsa_next_free_vgpr {NVGPR}
  .amdhsa_next_free_sgpr 102
  .amdhsa_accum_offset {NVGPR}
  .amdhsa_group_segment_fixed_size 0
  .amdhsa_kernarg_size 96
  .amdhsa_user_sgpr_count 2
  .amdhsa_user_sgpr_kernarg_segment_ptr 1
  .amdhsa_system_sgpr_workgroup_id_x 1
  .amdhsa_float_denorm_mode_32 3
.end_amdhsa_kernel
"""
    return out

if __name__ == "__main__":
    kw = eval("dict(%s)" % (sys.argv[2] if len(sys.argv) > 2 else ""))
    txt = gen(Cfg(**kw))
    path = sys.argv[1] if len(sys.argv) > 1 else "cdna_kernels/" + NAME + ".s"
    open(path, "w").write(txt)
    print("wrote", path, len(txt), "bytes; LDS", L_END)
```

```python
import sys, struct
sys.path.insert(0, "dev")
from emit import Emit

NAME = "recurrent_scan__gqa_block_cached__glu_gated_glu__decode"
KNAME = NAME + "_kernel"

WS_EPOCH = 0
WS_H   = 0x40000
WS_ML  = 0x50000
WS_O   = 0x60000
WS_Y   = 0x100000
WS_D   = 0x200000
WS_ST  = 0x300000
WS_Q   = 0x400000
WS_G   = 0x500000
WS_SIZE = 0x600000

XN_STRIDE = 1040
ACT_STRIDE = 272
L_XN  = 0
L_T1  = 8448
L_T2  = L_T1 + 16384
L_WD  = L_T2 + 16384
L_MAX = L_WD + 16384
L_LS  = L_MAX + 128
L_ACT = L_LS + 128
L_ACT2 = L_ACT + 2176
L_QS  = L_ACT2 + 2176
L_END = L_QS + 8192
L_WO  = L_T1
L_OC  = L_T2
assert L_WD + 3 * 4096 + 512 < 65536 and L_QS < 65536 and L_QS % 16 == 0 and L_ACT % 16 == 0

V_KOFF, V_VOFF, V_L16, V_T16, V_T8, V_NEGM, V_MP = 1, 2, 3, 4, 5, 6, 7
V_Q = 8
V_S = 16
V_ACC = 48
def SLOT(i): return 80 + 32 * i
V_Z = 240
NVGPR = 248

S_W, S_X8, S_JJ, S_CHUNK, S_TAG = 3, 44, 45, 46, 47
SRD_K, SRD_V, SRD_WS, SRD_X, SRD_WQ, SRD_WG, SRD_WD, SRD_WO, SRD_OUT = 4, 8, 12, 16, 20, 24, 32, 36, 40
S_IDX, S_MAT, S_CT2, S_KP = 28, 29, 30, 31
S_OFFA, S_RED, S_SELLO, S_SELHI, S_M8, S_M16, S_CNT = 48, 49, 50, 51, 52, 53, 54
S_T0, S_T1, S_T2, S_T3 = 55, 56, 57, 58
S_T3OFF, S_FR, S_HOFF = 59, 60, 61
S_EPOCH = 62
S_T4 = 63
S_T3IDX, S_CT3 = 80, 81
S_GC2 = 86
S_EXS, S_EXT = 82, 84
KA = 64
def stamp_reg(i): return 88 + 2 * i if i < 6 else 64 + 2 * (i - 6)

def srd(i): return f"s[{i}:{i+3}]"
def vr(a, n=4): return f"v[{a}:{a+n-1}]"
LOG2E = 1.4426950408889634
SCALE = 128 ** -0.5
def f2u(x): return struct.unpack("<I", struct.pack("<f", x))[0]

class Cfg:
    mimic = True
    window = 5
    stamps = False
    spin = 200000
    pre_b = 1
    t2_pos = 0
    qp_k = 1
    ln_k = (2, 2, 1)
    wd_at = 10
    g_at = 12
    gred_at = 19
    t3lo = 10
    abl = ''
    dbgspan = False
    rnd = True
    finbar = True
    prio_off = None
    ofull = True
    prio_at = None
    mlw = 3
    window_end = None
    wo_mode = 0
    wo_late = False
    bw = False
    t3_after_s = True
    fw = 7
    touch = False
    prio = 0
    ml_late = False
    narrow = True
    ppoll = False
    t3x = True
    def __init__(self, **kw):
        for k, v in kw.items(): setattr(self, k, v)

def gen(cfg=None):
    cfg = cfg or Cfg()
    e = Emit()
    W = cfg.window
    names = []
    def stamp(name):
        if cfg.stamps:
            i = len(names); names.append(name)
            assert i < 15
            e(f"s_memrealtime s[{stamp_reg(i)}:{stamp_reg(i)+1}]")
    def exec_set(lo, hi):
        e(f"s_mov_b32 exec_lo, {lo:#x}")
        e(f"s_mov_b32 exec_hi, {hi:#x}")
    def exec_full(): e("s_mov_b64 exec, -1")
    class Optional:
        def __enter__(self): self.vm = e.vm
        def __exit__(self, *a): e.vm = self.vm

    def wave_sum_to_sgpr(v, s):
        for sh in (1, 2, 4, 8):
            e(f"v_add_f32_dpp v{v}, v{v}, v{v} row_shr:{sh} row_mask:0xf bank_mask:0xf bound_ctrl:0")
        e(f"v_add_f32_dpp v{v}, v{v}, v{v} row_bcast:15 row_mask:0xa bank_mask:0xf")
        e(f"v_add_f32_dpp v{v}, v{v}, v{v} row_bcast:31 row_mask:0xc bank_mask:0xf")
        e(f"v_readlane_b32 s{s}, v{v}, 63")
    def xrow_reduce(op, regs, tmps):
        for sw in ("v_permlane16_swap_b32", "v_permlane32_swap_b32"):
            for r, t in zip(regs, tmps): e(f"v_mov_b32 v{t}, v{r}")
            for r, t in zip(regs, tmps): e(f"{sw} v{r}, v{t}")
            for r, t in zip(regs, tmps): e(f"{op} v{r}, v{r}, v{t}")
    def prio_point(name):
        if cfg.prio_at == name:
            e(f"s_cmp_lt_u32 s{S_W}, 4")
            e(f"s_cbranch_scc1 L_noprio_{name}")
            e("s_setprio 1")
            e.label(f"L_noprio_{name}")
    def rne_single(dst, src):
        e(f"v_cvt_pk_bf16_f32 v{dst}, v{src}, v{src}")
        e(f"v_lshlrev_b32 v{dst}, 16, v{dst}")
    def poll_tail(label_retry, label_ok):
        e(f"s_cbranch_vccz {label_ok}")
        e(f"s_sub_u32 s{S_CNT}, s{S_CNT}, 1")
        e(f"s_cmp_lg_u32 s{S_CNT}, 0")
        e(f"s_cbranch_scc1 {label_retry}")
    def chk(regs, tmp, tagv, mask):
        n = len(regs)
        for r in regs: e(f"v_xor_b32 v{r}, v{r}, v{tagv}")
        accs = [tmp, tmp + 1] if n >= 8 else [tmp]
        parts = [regs[i::len(accs)] for i in range(len(accs))]
        steps = []
        for a, pr in zip(accs, parts):
            st = []
            if len(pr) >= 3: st.append(f"v_or3_b32 v{a}, v{pr[0]}, v{pr[1]}, v{pr[2]}"); i = 3
            else: st.append(f"v_or_b32 v{a}, v{pr[0]}, v{pr[1]}"); i = 2
            while i < len(pr):
                if i + 1 < len(pr): st.append(f"v_or3_b32 v{a}, v{a}, v{pr[i]}, v{pr[i+1]}"); i += 2
                else: st.append(f"v_or_b32 v{a}, v{a}, v{pr[i]}"); i += 1
            steps.append(st)
        for i in range(max(len(x) for x in steps)):
            for st in steps:
                if i < len(st): e(st[i])
        if len(accs) == 2: e(f"v_or_b32 v{tmp}, v{tmp}, v{tmp+1}")
        e(f"v_and_b32 v{tmp}, {mask:#x}, v{tmp}")
        e(f"v_cmp_ne_u32 vcc, 0, v{tmp}")
    def gather_checked(name, loads, regs, tmp, tagv, mask, pre=None):
        if 'c' in cfg.abl: return
        chk(regs, tmp, tagv, mask)
        e(f"s_cbranch_vccz L_{name}_ok")
        npl = len(e.plist)
        with Optional():
            if pre: pre()
            e(f"s_mov_b32 s{S_CNT}, {cfg.spin}")
            if cfg.narrow: e(f"s_mov_b64 s[{S_EXS}:{S_EXS+1}], exec")
            e.label(f"L_{name}_retry")
            if cfg.narrow: e("s_mov_b64 exec, vcc")
            loads()
            e("s_waitcnt vmcnt(0)")
            chk(regs, tmp, tagv, mask)
            if cfg.narrow:
                e(f"s_cbranch_vccz L_{name}_rest")
                e(f"s_sub_u32 s{S_CNT}, s{S_CNT}, 1")
                e(f"s_cmp_lg_u32 s{S_CNT}, 0")
                e(f"s_cbranch_scc1 L_{name}_retry")
                e.label(f"L_{name}_rest")
                e(f"s_mov_b64 exec, s[{S_EXS}:{S_EXS+1}]")
            else:
                poll_tail(f"L_{name}_retry", f"L_{name}_ok")
        del e.plist[npl:]
        e.label(f"L_{name}_ok")

    def poll_pipelined(name, loadsA, loadsB, regsA, regsB, regsC, nld, tmp, tagv, mask):
        if 'c' in cfg.abl:
            e("s_waitcnt vmcnt(0)")
            for c, a in zip(regsC, regsA): e(f"v_mov_b32 v{c}, v{a}")
            return
        npl = len(e.plist)
        with Optional():
            e(f"s_mov_b32 s{S_CNT}, {cfg.spin}")
            e.label(f"L_{name}_loop")
            loadsB()
            e(f"s_waitcnt vmcnt({nld})")
            chk(regsA, tmp, tagv, mask)
            e(f"s_cbranch_vccz L_{name}_okA")
            loadsA()
            e(f"s_waitcnt vmcnt({nld})")
            chk(regsB, tmp, tagv, mask)
            e(f"s_cbranch_vccz L_{name}_okB")
            e(f"s_sub_u32 s{S_CNT}, s{S_CNT}, 1")
            e(f"s_cmp_lg_u32 s{S_CNT}, 0")
            e(f"s_cbranch_scc1 L_{name}_loop")
            e.label(f"L_{name}_okB")
            for c, b in zip(regsC, regsB): e(f"v_mov_b32 v{c}, v{b}")
            e(f"s_branch L_{name}_done")
            e.label(f"L_{name}_okA")
            for c, a in zip(regsC, regsA): e(f"v_mov_b32 v{c}, v{a}")
            e.label(f"L_{name}_done")
        del e.plist[npl:]

    offstate = [None]
    def kv_load(which, t, n, slot, pace):
        so = t * 65536 + (n >> 2) * 4096
        if offstate[0] != so:
            e(f"s_mov_b32 s{S_OFFA}, {so:#x}"); offstate[0] = so
        r = SLOT(slot) + 4 * n
        voff, s = (V_KOFF, SRD_K) if which == "k" else (V_VOFF, SRD_V)
        e(f"buffer_load_dwordx4 {vr(r)}, v{voff}, {srd(s)}, s{S_OFFA} offen offset:{(n & 3) * 1024} nt")
        if pace:
            we = cfg.window_end
            e.pace(we[1] if (we and pos[0] > we[0]) else W)
    vslot = [4, 0, 1, 2]
    seq = [("k", t, n) for t in range(4) for n in range(8)] + [("v", t, n) for t in range(4) for n in range(8)]
    pos = [0]
    mK = [None] * 4; mV = [None] * 4
    hooks = {}
    def pump(cnt, pace=True, upto=64):
        for _ in range(cnt):
            if pos[0] >= upto: return
            which, t, n = seq[pos[0]]; pos[0] += 1
            kv_load(which, t, n, t if which == "k" else vslot[t], pace)
            if n == 7: (mK if which == "k" else mV)[t] = e.mark()
            for h in hooks.get(pos[0], []): h()

    def tile_dma(srdn, voff, soff, step, lbase):
        if 'k' in cfg.abl: return
        e(f"s_lshl_b32 s{S_T4}, s{S_W}, 11")
        e(f"s_add_u32 m0, s{S_T4}, {lbase}")
        e(f"buffer_load_dwordx4 v{voff}, {srd(srdn)}, s{soff} offen nt lds")
        e(f"s_add_u32 s{soff}, s{soff}, {step}")
        e(f"s_add_u32 m0, s{S_T4}, {lbase + 1024}")
        e(f"buffer_load_dwordx4 v{voff}, {srd(srdn)}, s{soff} offen nt lds")
    def tile_voff(dst, rowstride):
        e(f"v_lshrrev_b32 v{dst}, 3, v0")
        e(f"v_mul_u32_u24 v{dst}, {rowstride}, v{dst}")
        e(f"v_and_b32 v15, 7, v0")
        e(f"v_lshl_add_u32 v{dst}, v15, 4, v{dst}")
    def a_addr(dst):
        e(f"v_lshrrev_b32 v{dst}, 4, v0")
        e("v_bfe_u32 v15, v0, 2, 2")
        e(f"v_lshl_add_u32 v{dst}, v{dst}, 3, v15")
        e(f"v_lshlrev_b32 v{dst}, 7, v{dst}")
        e("v_and_b32 v15, 3, v0")
        e(f"v_lshl_add_u32 v{dst}, v15, 3, v{dst}")
        e(f"s_and_b32 s{S_T4}, s{S_W}, 3")
        e(f"s_lshl_b32 s{S_T4}, s{S_T4}, 5")
        e(f"v_add_u32 v{dst}, s{S_T4}, v{dst}")
    def a_frags(ta, va, lbase):
        for t in range(4):
            e(f"ds_read_b64_tr_b16 {vr(ta+4*t,2)}, v{va} offset:{lbase + 4096*t}")
            e(f"ds_read_b64_tr_b16 {vr(ta+4*t+2,2)}, v{va} offset:{lbase + 4096*t + 512}")
    def b_frags(tb, vb, lbase):
        for t in range(4): e(f"ds_read_b128 {vr(tb+4*t)}, v{vb} offset:{lbase + 64*t}")
    def mfma_tag_store(td, ta, tb, vs, sbase, store=True):
        e(f"v_mfma_f32_16x16x32_bf16 {vr(td)}, {vr(ta)}, {vr(tb)}, 0")
        for t in range(1, 4):
            e(f"v_mfma_f32_16x16x32_bf16 {vr(td)}, {vr(ta+4*t)}, {vr(tb+4*t)}, {vr(td)}")
        exec_set(0x00ff00ff, 0x00ff00ff)
        if cfg.rnd:
            for i in range(4): e(f"v_add_u32 v{td+i}, 0x80, v{td+i}")
        for i in range(4): e(f"v_and_or_b32 v{td+i}, v{td+i}, s{S_M8}, v{V_T8}")
        if store: e(f"buffer_store_dwordx4 {vr(td)}, v{vs}, {srd(SRD_WS)}, s{sbase} offen sc1")
        exec_full()

    e("s_cmp_ge_u32 s2, 256")
    e("s_cbranch_scc1 L_end")
    stamp("start")
    e(f"s_load_dwordx16 s[{KA}:{KA+15}], s[0:1], 0")
    e(f"s_load_dwordx8 s[{KA+16}:{KA+23}], s[0:1], 64")
    P_X, P_K, P_V, P_WQ, P_WO, P_WG, P_WU, P_WD, P_OUT, P_WS = KA, KA+2, KA+4, KA+6, KA+8, KA+12, KA+14, KA+16, KA+18, KA+22
    e("v_lshrrev_b32 v12, 6, v0")
    e("v_and_b32 v0, 63, v0")
    e(f"v_readfirstlane_b32 s{S_W}, v12")
    if cfg.prio:
        e(f"s_cmp_lt_u32 s{S_W}, 4")
        e("s_cbranch_scc1 L_noprio")
        e(f"s_setprio {cfg.prio}")
        e.label("L_noprio")
    e(f"s_and_b32 s{S_X8}, s2, 7")
    e(f"s_lshr_b32 s{S_JJ}, s2, 3")
    e(f"s_lshl_b32 s{S_CHUNK}, s{S_X8}, 5")
    e(f"s_add_u32 s{S_CHUNK}, s{S_CHUNK}, s{S_JJ}")
    e(f"v_lshlrev_b32 v{V_L16}, 4, v0")
    e("v_bfe_u32 v12, v0, 2, 2")
    e(f"v_lshlrev_b32 v{V_KOFF}, 8, v12")
    e("v_lshrrev_b32 v12, 4, v0")
    e(f"v_lshl_add_u32 v{V_KOFF}, v12, 6, v{V_KOFF}")
    e("v_and_b32 v12, 3, v0")
    e(f"v_lshl_add_u32 v{V_KOFF}, v12, 4, v{V_KOFF}")
    e(f"s_lshl_b32 s{S_T0}, s{S_W}, 13")
    e(f"v_add_u32 v{V_KOFF}, s{S_T0}, v{V_KOFF}")
    e(f"v_add_u32 v{V_VOFF}, s{S_T0}, v{V_L16}")
    tile_voff(13, 8192)
    tile_voff(14, 3584)
    e(f"s_and_b32 s{S_KP}, s{S_JJ}, 3")
    e(f"s_lshr_b32 s{S_T0}, s{S_JJ}, 2")
    e(f"s_lshl_b32 s{S_IDX}, s{S_T0}, 3")
    e(f"s_add_u32 s{S_IDX}, s{S_IDX}, s{S_X8}")
    e(f"s_and_b32 s{S_MAT}, s{S_IDX}, 1")
    e(f"s_lshr_b32 s{S_CT2}, s{S_IDX}, 1")
    e(f"s_lshl_b32 s{S_T1}, s{S_X8}, 3")
    e(f"s_add_u32 s{S_T0}, s{S_T0}, s{S_T1}")
    e(f"s_lshl_b32 s{S_T0}, s{S_T0}, 7")
    e(f"s_lshl_b32 s{S_T1}, s{S_KP}, 3")
    e(f"s_add_u32 s{S_T1}, s{S_T1}, s{S_W}")
    e(f"s_lshl_b32 s{S_T2}, s{S_T1}, 17")
    e(f"s_add_u32 s{S_T0}, s{S_T0}, s{S_T2}")
    e(f"s_mul_i32 s{S_T1}, s{S_T1}, {16*3584}")
    e(f"s_lshl_b32 s{S_T2}, s{S_CT2}, 7")
    e(f"s_add_u32 s{S_T1}, s{S_T1}, s{S_T2}")
    e(f"s_lshl_b32 s{S_T2}, s{S_W}, 10")
    e(f"s_lshl_b32 s{S_T3}, s{S_CHUNK}, 18")
    e("s_waitcnt lgkmcnt(0)")
    def mk_srd(dst, src, size, add=None):
        if add is None:
            e(f"s_mov_b32 s{dst}, s{src}")
            e(f"s_mov_b32 s{dst+1}, s{src+1}")
        else:
            e(f"s_add_u32 s{dst}, s{src}, s{add}")
            e(f"s_addc_u32 s{dst+1}, s{src+1}, 0")
        e(f"s_mov_b32 s{dst+2}, {size:#x}")
        e(f"s_mov_b32 s{dst+3}, 0x00020000")
    XR = 48
    mk_srd(SRD_X, P_X, 8192)
    e(f"buffer_load_dwordx4 {vr(XR)}, v{V_L16}, {srd(SRD_X)}, s{S_T2} offen")
    m_x = e.mark()
    e("s_barrier")
    mk_srd(SRD_WQ, P_WQ, 512 * 4096 * 2)
    tile_dma(SRD_WQ, 13, S_T0, 8 * 8192, L_T1)
    e(f"s_cmp_eq_u32 s{S_MAT}, 0")
    e(f"s_cselect_b32 s{SRD_WG}, s{P_WG}, s{P_WU}")
    e(f"s_cselect_b32 s{SRD_WG+1}, s{P_WG+1}, s{P_WU+1}")
    e(f"s_mov_b32 s{SRD_WG+2}, {512*1792*2:#x}")
    e(f"s_mov_b32 s{SRD_WG+3}, 0x00020000")
    m_t1 = e.mark()
    S_GUO = 87
    m_t2_ = [None]
    def t2_dma(soff):
        with Optional():
            e(f"s_cmp_ge_u32 s{S_IDX}, 56")
            e("s_cbranch_scc1 L_no_gu_ld")
            tile_dma(SRD_WG, 14, soff, 8 * 3584, L_T2)
            e.label("L_no_gu_ld")
        m_t2_[0] = e.mark()
    if cfg.t2_pos == 0: t2_dma(S_T1)
    else: e(f"s_mov_b32 s{S_T3OFF}, s{S_T1}")
    mk_srd(SRD_K, P_K, 0x40000, add=S_T3)
    pump(cfg.pre_b, pace=False)
    mk_srd(SRD_V, P_V, 0x40000, add=S_T3)
    e(f"s_load_dword s{S_EPOCH}, s[{P_WS}:{P_WS+1}], {WS_EPOCH}")
    mk_srd(SRD_WS, P_WS, WS_SIZE)
    mk_srd(SRD_WD, P_WD, 1792 * 512 * 2)
    mk_srd(SRD_WO, P_WO, 4096 * 512 * 2)
    mk_srd(SRD_OUT, P_OUT, 8192)
    e(f"s_mov_b32 s{S_SELLO}, 0x05040100")
    e(f"s_mov_b32 s{S_SELHI}, 0x07060302")
    e(f"s_mov_b32 s{S_M8}, 0xffffff00")
    e(f"s_mov_b32 s{S_M16}, 0xffff0000")
    if cfg.touch:
        e("v_mov_b32 v12, 0")
        with Optional():
            for w, (sr, so) in enumerate([(SRD_V, "0"), (SRD_WO, None), (SRD_WD, "0"), (SRD_WS, WS_O), (SRD_WS, WS_Y), (SRD_WS, WS_D), (SRD_OUT, "0"), (SRD_V, "0")]):
                lab = f"L_touch{w}"
                e(f"s_cmp_lg_u32 s{S_W}, {w}")
                e(f"s_cbranch_scc1 {lab}")
                if so is None:
                    e(f"s_lshl_b32 s{S_T0}, s{S_X8}, 19")
                    e(f"buffer_load_dword v247, v12, {srd(sr)}, s{S_T0} offen")
                elif isinstance(so, int):
                    e(f"s_mov_b32 s{S_T0}, {so:#x}")
                    e(f"buffer_load_dword v247, v12, {srd(sr)}, s{S_T0} offen sc1")
                else:
                    e(f"buffer_load_dword v247, v12, {srd(sr)}, 0 offen nt")
                e.label(lab)
    e("s_waitcnt lgkmcnt(0)")
    e(f"s_add_u32 s{S_TAG}, s{S_EPOCH}, 0x0101")
    e(f"s_and_b32 s{S_T0}, s{S_TAG}, 0xffff")
    e(f"v_mov_b32 v{V_T16}, s{S_T0}")
    e(f"s_and_b32 s{S_T0}, s{S_TAG}, 0xff")
    e(f"v_mov_b32 v{V_T8}, s{S_T0}")

    e.wait_vm(m_x)
    stamp("x_got")
    F = 52
    for i in range(4):
        e(f"v_lshlrev_b32 v{F+2*i}, 16, v{XR+i}")
        e(f"v_and_b32 v{F+2*i+1}, s{S_M16}, v{XR+i}")
    e(f"v_add_f32 v60, v{F}, v{F+1}")
    e(f"v_add_f32 v61, v{F+2}, v{F+3}")
    e(f"v_add_f32 v62, v{F+4}, v{F+5}")
    e(f"v_add_f32 v63, v{F+6}, v{F+7}")
    e("v_add_f32 v60, v60, v61")
    e("v_add_f32 v62, v62, v63")
    e("v_add_f32 v60, v60, v62")
    pump(cfg.ln_k[0], pace=False)
    if cfg.t2_pos == 1: t2_dma(S_T3OFF)
    wave_sum_to_sgpr(60, S_T0)
    e(f"v_mov_b32 v61, s{S_T0}")
    e(f"v_mul_f32 v61, {f2u(1.0/512):#x}, v61")
    for i in range(8): e(f"v_sub_f32 v{64+i}, v{F+i}, v61")
    e("v_mul_f32 v60, v64, v64")
    for i in range(1, 8): e(f"v_fmac_f32 v60, v{64+i}, v{64+i}")
    pump(cfg.ln_k[1], pace=False)
    if cfg.t2_pos == 2: t2_dma(S_T3OFF)
    wave_sum_to_sgpr(60, S_T1)
    e(f"v_mov_b32 v62, s{S_T1}")
    e(f"v_mul_f32 v62, {f2u(1.0/512):#x}, v62")
    rne_single(62, 62)
    e(f"v_add_f32 v62, {f2u(1e-5):#x}, v62")
    rne_single(62, 62)
    e("v_sqrt_f32 v62, v62")
    rne_single(62, 62)
    rne_single(61, 61)
    e("v_rcp_f32 v63, v62")
    e("v_fma_f32 v60, -v62, v63, 1.0")
    e("v_fma_f32 v63, v60, v63, v63")
    for i in range(8): e(f"v_sub_f32 v{64+i}, v{F+i}, v61")
    for i in range(4): e(f"v_cvt_pk_bf16_f32 v{72+i}, v{64+2*i}, v{64+2*i+1}")
    for i in range(4):
        e(f"v_lshlrev_b32 v{64+2*i}, 16, v{72+i}")
        e(f"v_and_b32 v{64+2*i+1}, s{S_M16}, v{72+i}")
    for i in range(8): e(f"v_mul_f32 v{F+i}, v{64+i}, v63")
    for i in range(8): e(f"v_fma_f32 v{64+i}, -v{F+i}, v62, v{64+i}")
    for i in range(8): e(f"v_fma_f32 v{F+i}, v{64+i}, v63, v{F+i}")
    for i in range(4): e(f"v_cvt_pk_bf16_f32 v{72+i}, v{F+2*i}, v{F+2*i+1}")
    e(f"s_mul_i32 s{S_T0}, s{S_W}, {XN_STRIDE}")
    e(f"v_add_u32 v60, s{S_T0}, v{V_L16}")
    e(f"ds_write_b128 v60, v[72:75] offset:{L_XN}")
    pump(cfg.ln_k[2], pace=False)
    e("v_and_b32 v14, 7, v0")
    e(f"v_mul_u32_u24 v14, {XN_STRIDE}, v14")
    e("v_lshrrev_b32 v12, 4, v0")
    e("v_lshl_add_u32 v14, v12, 4, v14")
    e(f"s_lshl_b32 s{S_T0}, s{S_KP}, 8")
    e(f"v_add_u32 v14, s{S_T0}, v14")
    a_addr(13)
    e(f"s_lshl_b32 s{S_T0}, s{S_X8}, 2")
    e(f"s_add_u32 s{S_T0}, s{S_T0}, s{S_KP}")
    e(f"s_lshl_b32 s{S_T0}, s{S_T0}, 11")
    e(f"s_lshr_b32 s{S_T1}, s{S_JJ}, 2")
    e(f"s_lshl_b32 s{S_T1}, s{S_T1}, 8")
    e(f"s_add_u32 s{S_T0}, s{S_T0}, s{S_T1}")
    e(f"s_add_u32 s{S_T0}, s{S_T0}, {WS_Q:#x}")
    e(f"s_lshl_b32 s{S_T1}, s{S_MAT}, 2")
    e(f"s_add_u32 s{S_T1}, s{S_T1}, s{S_KP}")
    e(f"s_mul_i32 s{S_T1}, s{S_T1}, {8*7168}")
    e(f"s_lshl_b32 s{S_T2}, s{S_CT2}, 8")
    e(f"s_add_u32 s{S_T1}, s{S_T1}, s{S_T2}")
    e(f"s_add_u32 s{S_T1}, s{S_T1}, {WS_G:#x}")
    e(f"s_cmp_lt_u32 s{S_W}, 4")
    e(f"s_cselect_b32 s{S_T0}, s{S_T0}, s{S_T1}")
    e(f"s_movk_i32 s{S_T4}, 7168")
    e(f"s_cselect_b32 s{S_T2}, {8*4*2048}, s{S_T4}")
    e(f"s_cselect_b32 s{S_T3}, 0, 16384")
    e(f"s_and_b32 s{S_T1}, s{S_W}, 3")
    e(f"s_lshl_b32 s{S_T1}, s{S_T1}, 6")
    e(f"s_add_u32 s{S_T0}, s{S_T0}, s{S_T1}")
    e("v_and_b32 v20, 15, v0")
    e(f"v_mul_lo_u32 v20, v20, s{S_T2}")
    e("v_lshl_add_u32 v20, v12, 4, v20")
    e(f"v_add_u32 v13, s{S_T3}, v13")
    e.wait_vm(m_t2_[0], " lgkmcnt(0)")
    e("s_barrier")
    stamp("B1")
    pump(cfg.qp_k, pace=False)
    with Optional():
        e(f"s_cmp_ge_u32 s{S_IDX}, 56")
        e(f"s_cselect_b32 s{S_T1}, 4, 8")
        e(f"s_cmp_ge_u32 s{S_W}, s{S_T1}")
        e("s_cbranch_scc1 L_no_proj")
        b_frags(64, 14, L_XN)
        a_frags(48, 13, L_T1)
        e("s_waitcnt lgkmcnt(0)")
        mfma_tag_store(16, 48, 64, 20, S_T0, store='s' not in cfg.abl)
        e.label("L_no_proj")
    stamp("proj")

    if cfg.t3x:
        e(f"s_cmp_gt_u32 s{S_X8}, 3")
        e(f"s_subb_u32 s{S_T0}, s{S_X8}, 0")
        e(f"s_cmp_gt_u32 s{S_X8}, 5")
        e(f"s_subb_u32 s{S_T0}, s{S_T0}, 0")
        e(f"s_mul_i32 s{S_T0}, s{S_T0}, 19")
        e(f"s_sub_u32 s{S_T1}, s{S_JJ}, 9")
        e(f"s_add_u32 s{S_T3IDX}, s{S_T0}, s{S_T1}")
        e(f"s_cmp_ge_u32 s{S_T1}, 19")
        e(f"s_cselect_b32 s{S_T3IDX}, 999, s{S_T3IDX}")
        e(f"s_cmp_eq_u32 s{S_X8}, 3")
        e(f"s_cselect_b32 s{S_T3IDX}, 999, s{S_T3IDX}")
        e(f"s_cmp_eq_u32 s{S_X8}, 5")
        e(f"s_cselect_b32 s{S_T3IDX}, 999, s{S_T3IDX}")
    else:
        e(f"s_sub_u32 s{S_T1}, s{S_JJ}, {cfg.t3lo}")
        e(f"s_lshl_b32 s{S_T3IDX}, s{S_T1}, 3")
        e(f"s_add_u32 s{S_T3IDX}, s{S_T3IDX}, s{S_X8}")
        e(f"s_cmp_ge_u32 s{S_T1}, 14")
        e(f"s_cselect_b32 s{S_T3IDX}, 999, s{S_T3IDX}")
    def t3_skip(label):
        if 't' in cfg.abl:
            e(f"s_branch {label}")
        else:
            e(f"s_cmp_ge_u32 s{S_T3IDX}, 112")
            e(f"s_cbranch_scc1 {label}")
    def wd_hook():
        with Optional():
            t3_skip("L_no_wd")
            e(f"s_lshr_b32 s{S_FR}, s{S_T3IDX}, 3")
            e(f"s_and_b32 s{S_CT3}, s{S_T3IDX}, 7")
            e(f"s_lshl_b32 s{S_T1}, s{S_FR}, 17")
            e(f"s_lshl_b32 s{S_T2}, s{S_CT3}, 7")
            e(f"s_add_u32 s{S_T1}, s{S_T1}, s{S_T2}")
            e(f"s_lshl_b32 s{S_T2}, s{S_W}, 14")
            e(f"s_add_u32 s{S_T1}, s{S_T1}, s{S_T2}")
            tile_voff(12, 1024)
            if 'E' in cfg.abl:
                e(f"s_bitcmp1_b32 s{S_X8}, 0")
                e("s_cbranch_scc1 L_no_wd2")
                e(f"s_xor_b32 s{S_T2}, s{S_T1}, 128")
                tile_dma(SRD_WD, 12, S_T2, 8192, L_WD)
                tile_dma(SRD_WD, 12, S_T1, 8192, L_WD)
                e.label("L_no_wd2")
            else:
                tile_dma(SRD_WD, 12, S_T1, 8192, L_WD)
            e(f"s_lshl_b32 s{S_T3OFF}, s{S_CT3}, 2")
            e(f"s_and_b32 s{S_T0}, s{S_W}, 3")
            e(f"s_add_u32 s{S_T3OFF}, s{S_T3OFF}, s{S_T0}")
            e(f"s_lshl_b32 s{S_T3OFF}, s{S_T3OFF}, 10")
            e(f"s_lshl_b32 s{S_T0}, s{S_FR}, 6")
            e(f"s_add_u32 s{S_T3OFF}, s{S_T3OFF}, s{S_T0}")
            e(f"s_add_u32 s{S_T3OFF}, s{S_T3OFF}, {WS_D:#x}")
            e(f"s_mul_i32 s{S_T1}, s{S_W}, 7168")
            e(f"s_lshl_b32 s{S_T2}, s{S_FR}, 9")
            e(f"s_add_u32 s{S_T1}, s{S_T1}, s{S_T2}")
            e(f"s_add_u32 s{S_HOFF}, s{S_T1}, {WS_H:#x}")
            e.label("L_no_wd")
    GR = V_S
    e(f"s_sub_u32 s{S_RED}, s{S_JJ}, 28")
    e(f"s_lshl_b32 s{S_RED}, s{S_RED}, 3")
    e(f"s_add_u32 s{S_RED}, s{S_RED}, s{S_X8}")
    e(f"s_cmp_ge_u32 s{S_JJ}, 28")
    e(f"s_cselect_b32 s{S_RED}, s{S_RED}, 99")
    def g_addr():
        e("v_lshrrev_b32 v12, 4, v0")
        e(f"v_mul_u32_u24 v12, {8*7168}, v12")
        e("v_and_b32 v13, 15, v0")
        e("v_lshl_add_u32 v12, v13, 4, v12")
        e(f"s_mul_i32 s{S_T1}, s{S_W}, 7168")
        e(f"s_lshl_b32 s{S_T2}, s{S_RED}, 8")
        e(f"s_add_u32 s{S_T1}, s{S_T1}, s{S_T2}")
        e(f"s_add_u32 s{S_T1}, s{S_T1}, {WS_G:#x}")
    def g_loads():
        e(f"buffer_load_dwordx4 {vr(GR)}, v12, {srd(SRD_WS)}, s{S_T1} offen sc1")
        e(f"s_add_u32 s{S_T2}, s{S_T1}, {4 * 8 * 7168}")
        e(f"buffer_load_dwordx4 {vr(GR+4)}, v12, {srd(SRD_WS)}, s{S_T2} offen sc1")
    m_g = [None]
    def g_hook():
        with Optional():
            e(f"s_cmp_ge_u32 s{S_RED}, 28")
            e("s_cbranch_scc1 L_no_gred_ld")
            g_addr()
            g_loads()
            e.label("L_no_gred_ld")
        m_g[0] = e.mark()
    def gred_hook():
        with Optional():
            e(f"s_cmp_ge_u32 s{S_RED}, 28")
            e("s_cbranch_scc1 L_no_gred")
            e.wait_vm(m_g[0])
            gather_checked("g", g_loads, list(range(GR, GR + 8)), 48, V_T8, 0xff, pre=g_addr)
            G_, U_ = GR, GR + 4
            for i in range(4): e(f"v_permlane32_swap_b32 v{G_+i}, v{U_+i}")
            for i in range(4): e(f"v_add_f32 v{G_+i}, v{G_+i}, v{U_+i}")
            e(f"v_permlane16_swap_b32 v{G_}, v{G_+1}")
            e(f"v_permlane16_swap_b32 v{G_+2}, v{G_+3}")
            e(f"v_add_f32 v{G_}, v{G_}, v{G_+1}")
            e(f"v_add_f32 v{G_+2}, v{G_+2}, v{G_+3}")
            e(f"v_mov_b32 v{U_}, v{G_}")
            e(f"v_mov_b32 v{U_+1}, v{G_+2}")
            e(f"v_permlane32_swap_b32 v{G_}, v{U_}")
            e(f"v_permlane32_swap_b32 v{G_+2}, v{U_+1}")
            e(f"v_cvt_pk_bf16_f32 v48, v{G_}, v{G_+2}")
            e(f"v_cvt_pk_bf16_f32 v49, v{U_}, v{U_+1}")
            e("v_lshlrev_b32 v50, 16, v48")
            e(f"v_and_b32 v51, s{S_M16}, v48")
            e(f"v_mul_f32 v50, {f2u(-LOG2E):#x}, v50")
            e(f"v_mul_f32 v51, {f2u(-LOG2E):#x}, v51")
            e("v_exp_f32 v50, v50")
            e("v_exp_f32 v51, v51")
            e("v_add_f32 v50, 1.0, v50")
            e("v_add_f32 v51, 1.0, v51")
            e("v_rcp_f32 v50, v50")
            e("v_rcp_f32 v51, v51")
            e("v_cvt_pk_bf16_f32 v48, v50, v51")
            e("v_lshlrev_b32 v50, 16, v48")
            e(f"v_and_b32 v51, s{S_M16}, v48")
            e("v_lshlrev_b32 v52, 16, v49")
            e(f"v_and_b32 v53, s{S_M16}, v49")
            e("v_mul_f32 v50, v50, v52")
            e("v_mul_f32 v51, v51, v53")
            e("v_cvt_pk_bf16_f32 v48, v50, v51")
            e(f"v_lshl_or_b32 v52, v48, 16, v{V_T16}")
            e(f"v_and_or_b32 v54, v48, s{S_M16}, v{V_T16}")
            e("v_mov_b32 v53, v52")
            e("v_mov_b32 v55, v54")
            e("v_mov_b32 v56, v52")
            e("v_mov_b32 v57, v54")
            e("v_permlane16_swap_b32 v56, v53")
            e("v_permlane16_swap_b32 v57, v55")
            e(f"s_mul_i32 s{S_T1}, s{S_W}, 7168")
            e(f"s_lshl_b32 s{S_T2}, s{S_RED}, 8")
            e(f"s_add_u32 s{S_T1}, s{S_T1}, s{S_T2}")
            e(f"s_add_u32 s{S_T1}, s{S_T1}, {WS_H:#x}")
            exec_set(0xffff, 0)
            e(f"buffer_store_dwordx4 v[52:55], v{V_L16}, {srd(SRD_WS)}, s{S_T1} offen sc1")
            exec_full()
            e("s_nop 1")
            e.label("L_no_gred")
    hooks.setdefault(cfg.wd_at, []).append(wd_hook)
    hooks.setdefault(cfg.g_at, []).append(g_hook)
    hooks.setdefault(cfg.gred_at, []).append(gred_hook)
    assert pos[0] < min(cfg.wd_at, cfg.g_at)
    pump(64, upto=32)

    QL = V_ACC
    TG = V_S + 24
    def q_addr():
        e(f"s_lshl_b32 s{S_T0}, s{S_X8}, 3")
        e(f"s_lshr_b32 s{S_T1}, s{S_JJ}, 2")
        e(f"s_add_u32 s{S_T0}, s{S_T0}, s{S_T1}")
        e(f"s_lshl_b32 s{S_T0}, s{S_T0}, 3")
        e(f"s_add_u32 s{S_T0}, s{S_T0}, s{S_W}")
        e(f"s_lshl_b32 s{S_T0}, s{S_T0}, 10")
        e(f"s_add_u32 s{S_T0}, s{S_T0}, {WS_Q:#x}")
    def q_loads():
        e(f"buffer_load_dwordx4 {vr(QL)}, v{V_L16}, {srd(SRD_WS)}, s{S_T0} offen sc1")
    def h_loads():
        e(f"buffer_load_dwordx4 {vr(TG)}, v{V_L16}, {srd(SRD_WS)}, s{S_HOFF} offen sc1")
    q_addr()
    q_loads()
    m_q = e.mark()
    with Optional():
        t3_skip("L_no_h_ld")
        exec_set(0xffffffff, 0)
        h_loads()
        exec_full()
        e.label("L_no_h_ld")
    m_h = e.mark()
    pump(8)
    e.wait_vm(m_q)
    gather_checked("q", q_loads, list(range(QL, QL + 4)), 56, V_T8, 0xff, pre=q_addr)
    e(f"s_lshl_b32 s{S_T0}, s{S_W}, 10")
    e(f"s_add_u32 s{S_T0}, s{S_T0}, {L_QS}")
    e(f"v_add_u32 v12, s{S_T0}, v{V_L16}")
    e(f"ds_write_b128 v12, {vr(QL)}")
    with Optional():
        t3_skip("L_no_t3a")
        e.wait_vm(m_h)
        exec_set(0xffffffff, 0)
        gather_checked("h", h_loads, list(range(TG, TG + 4)), TG + 4, V_T16, 0xffff)
        e(f"v_perm_b32 v{TG+4}, v{TG+1}, v{TG}, s{S_SELHI}")
        e(f"v_perm_b32 v{TG+5}, v{TG+3}, v{TG+2}, s{S_SELHI}")
        e(f"s_mul_i32 s{S_T0}, s{S_W}, {ACT_STRIDE}")
        e("v_lshlrev_b32 v12, 3, v0")
        e(f"v_add_u32 v12, s{S_T0}, v12")
        e(f"ds_write_b64 v12, {vr(TG+4,2)} offset:{L_ACT2}")
        exec_full()
        e.label("L_no_t3a")
    e("v_and_b32 v13, 3, v0")
    e("v_lshlrev_b32 v13, 9, v13")
    e("v_lshrrev_b32 v15, 2, v0")
    e("v_lshl_add_u32 v13, v15, 5, v13")
    e(f"v_add_u32 v13, {L_QS}, v13")
    e("s_waitcnt lgkmcnt(0)")
    if "q" not in cfg.abl: e("s_barrier")
    for kp in range(4):
        e(f"ds_read_b128 {vr(48+8*kp)}, v13 offset:{2048*kp}")
        e(f"ds_read_b128 {vr(48+8*kp+4)}, v13 offset:{2048*kp + 16}")
    e("s_waitcnt lgkmcnt(0)")
    for i in range(8):
        e(f"v_add_f32 v{48+i}, v{48+i}, v{56+i}")
        e(f"v_add_f32 v{64+i}, v{64+i}, v{72+i}")
    for i in range(8): e(f"v_add_f32 v{48+i}, v{48+i}, v{64+i}")
    for i in range(4): e(f"v_cvt_pk_bf16_f32 v{V_Q+i}, v{48+2*i}, v{48+2*i+1}")
    stamp("q_ok")
    prio_point("BQ")
    def tile_addr(vb, vs, pstride):
        e(f"v_and_b32 v{vb}, 7, v0")
        e(f"v_mul_u32_u24 v{vb}, {ACT_STRIDE}, v{vb}")
        e(f"v_lshrrev_b32 v{vs}, 4, v0")
        e(f"v_lshl_add_u32 v{vb}, v{vs}, 4, v{vb}")
        e(f"v_lshlrev_b32 v{vs}, 4, v{vs}")
        e(f"v_and_b32 v15, 15, v0")
        e(f"v_mul_u32_u24 v15, {32*pstride}, v15")
        e(f"v_add_u32 v{vs}, v{vs}, v15")
    def t3_second_half(TD3):
        with Optional():
            t3_skip("L_no_t3b")
            e(f"s_cmp_ge_u32 s{S_W}, 4")
            e("s_cbranch_scc1 L_no_t3b")
            a_addr(12)
            tile_addr(13, 14, 1024)
            a_frags(48, 12, L_WD)
            b_frags(64, 13, L_ACT2)
            e("s_waitcnt lgkmcnt(0)")
            mfma_tag_store(TD3, 48, 64, 14, S_T3OFF)
            e("s_nop 1")
            e.label("L_no_t3b")


    if not cfg.t3_after_s: t3_second_half(16)
    for t in range(4):
        for n in range(8):
            e(f"v_mfma_f32_16x16x32_bf16 {vr(V_ACC+4*n)}, {vr(SLOT(t)+4*n)}, {vr(V_Q)}, 0")
        pump(2, upto=48)
        for n in range(8):
            d = V_ACC + 4 * n
            e(f"v_add_f32_dpp v{V_S+8*t+n}, v{d+1}, v{d} row_shl:4 row_mask:0xf bank_mask:0xf bound_ctrl:0")
        for n in range(8):
            d = V_ACC + 4 * n
            e(f"v_add_f32_dpp v{V_S+8*t+n}, v{d+2}, v{V_S+8*t+n} row_shl:8 row_mask:0xf bank_mask:0xf bound_ctrl:0")
        for n in range(8):
            d = V_ACC + 4 * n
            e(f"v_add_f32_dpp v{V_S+8*t+n}, v{d+3}, v{V_S+8*t+n} row_shl:12 row_mask:0xf bank_mask:0xf bound_ctrl:0")
    stamp("S_done")
    if cfg.t3_after_s: t3_second_half(SLOT(3))
    pump(2, upto=56)
    if cfg.mimic:
        e(f"s_mov_b32 s{S_T0}, {f2u(SCALE):#x}")
        for rep in range(2):
            for m in range(16): e(f"v_cvt_pk_bf16_f32 v{V_ACC+m}, v{V_S+2*m}, v{V_S+2*m+1}")
            for m in range(16):
                e(f"v_lshlrev_b32 v{V_S+2*m}, 16, v{V_ACC+m}")
                e(f"v_and_b32 v{V_S+2*m+1}, s{S_M16}, v{V_ACC+m}")
            if rep == 0:
                for n in range(32): e(f"v_mul_f32 v{V_S+n}, s{S_T0}, v{V_S+n}")
            pump(1, upto=56)
        cexp = LOG2E
    else:
        cexp = LOG2E * SCALE
    e(f"v_max3_f32 v12, v{V_S}, v{V_S+1}, v{V_S+2}")
    for n in range(3, 31, 2): e(f"v_max3_f32 v12, v12, v{V_S+n}, v{V_S+n+1}")
    e(f"v_max_f32 v12, v12, v{V_S+31}")
    xrow_reduce("v_max_f32", [12], [13])
    e(f"s_lshl_b32 s{S_T0}, s{S_W}, 4")
    e("v_and_b32 v14, 3, v0")
    e("v_lshlrev_b32 v14, 2, v14")
    e(f"v_add_u32 v15, s{S_T0}, v14")
    exec_set(0xf, 0)
    e(f"ds_write_b32 v15, v12 offset:{L_MAX}")
    exec_full()
    e("s_waitcnt lgkmcnt(0)")
    if "4" not in cfg.abl: e("s_barrier")
    prio_point("B4")
    for w in range(8): e(f"ds_read_b32 v{V_ACC+w}, v14 offset:{L_MAX + 16*w}")
    pump(1, upto=56)
    e("s_waitcnt lgkmcnt(0)")
    e(f"v_max3_f32 v12, v{V_ACC}, v{V_ACC+1}, v{V_ACC+2}")
    e(f"v_max3_f32 v12, v12, v{V_ACC+3}, v{V_ACC+4}")
    e(f"v_max3_f32 v12, v12, v{V_ACC+5}, v{V_ACC+6}")
    e(f"v_max_f32 v12, v12, v{V_ACC+7}")
    e(f"s_mov_b32 s{S_T0}, {f2u(cexp):#x}")
    e(f"v_mul_f32 v12, s{S_T0}, v12")
    e(f"v_and_b32 v{V_MP}, s{S_M8}, v12")
    e(f"v_sub_f32 v{V_NEGM}, 0, v{V_MP}")
    for n in range(32): e(f"v_fma_f32 v{V_S+n}, v{V_S+n}, s{S_T0}, v{V_NEGM}")
    pump(1, upto=56)
    for n in range(32): e(f"v_exp_f32 v{V_S+n}, v{V_S+n}")
    pump(1, upto=56)
    e(f"v_add_f32 v12, v{V_S}, v{V_S+1}")
    e(f"v_add_f32 v13, v{V_S+2}, v{V_S+3}")
    for n in range(4, 32, 2):
        e(f"v_add_f32 v12, v12, v{V_S+n}")
        e(f"v_add_f32 v13, v13, v{V_S+n+1}")
    e("v_add_f32 v12, v12, v13")
    for m in range(16): e(f"v_cvt_pk_bf16_f32 v{V_S+m}, v{V_S+2*m}, v{V_S+2*m+1}")
    xrow_reduce("v_add_f32", [12], [13])
    exec_set(0xf, 0)
    e(f"ds_write_b32 v15, v12 offset:{L_LS}")
    exec_full()
    pump(8, upto=56)
    e("s_waitcnt lgkmcnt(0)")
    if "5" not in cfg.abl: e("s_barrier")
    stamp("softmax")
    prio_point("B5")
    def ml_publish(R):
        with Optional():
            e(f"s_cmp_lg_u32 s{S_W}, {cfg.mlw}")
            e("s_cbranch_scc1 L_no_ml")
            e("v_mov_b32 v12, 0")
            for w in range(8): e(f"ds_read_b128 {vr(R+4*w)}, v12 offset:{L_LS + 16*w}")
            e("s_waitcnt lgkmcnt(0)")
            for w in range(1, 8):
                for i in range(4): e(f"v_add_f32 v{R+i}, v{R+i}, v{R+4*w+i}")
            for h in range(4): e(f"v_readlane_b32 s{S_T0+h}, v{V_MP}, {h}")
            for h in range(4): e(f"v_or_b32 v{R+4+h}, s{S_T0+h}, v{V_T8}")
            for h in range(4): e(f"v_and_or_b32 v{R+h}, v{R+h}, s{S_M8}, v{V_T8}")
            e(f"s_lshl_b32 s{S_T0}, s{S_CHUNK}, 5")
            e(f"s_add_u32 s{S_T0}, s{S_T0}, {WS_ML:#x}")
            exec_set(1, 0)
            e(f"buffer_store_dwordx4 {vr(R+4)}, v12, {srd(SRD_WS)}, s{S_T0} offen sc1")
            e(f"buffer_store_dwordx4 {vr(R)}, v12, {srd(SRD_WS)}, s{S_T0} offen offset:16 sc1")
            exec_full()
            e("s_nop 1")
            e.label("L_no_ml")


    if not cfg.ml_late: ml_publish(V_ACC)
    BT = V_S + 16
    def pv_tile(t, sprinkle=0):
        vs = SLOT(vslot[t])
        P = V_S + 4 * t
        def perms(ee):
            b = BT + 4 * (ee % 4)
            sel = S_SELLO if ee % 2 == 0 else S_SELHI
            for m in range(4):
                e(f"v_perm_b32 v{b+m}, v{vs+4*(2*m+1)+(ee>>1)}, v{vs+4*(2*m)+(ee>>1)}, s{sel}")
        perms(0); perms(1)
        for ee in range(8):
            b = BT + 4 * (ee % 4)
            c = "0" if t == 0 else vr(V_ACC + 4 * ee)
            e(f"v_mfma_f32_16x16x32_bf16 {vr(V_ACC+4*ee)}, {vr(P)}, {vr(b)}, {c}")
            if sprinkle: pump(1)
            if ee + 2 < 8: perms(ee + 2)
    e.wait_vm(mV[0]); pv_tile(0, sprinkle=1)
    assert pos[0] == 64
    ML = V_Z
    def ml_addr():
        e("v_lshrrev_b32 v12, 4, v0")
        e(f"s_lshl_b32 s{S_T0}, s{S_W}, 5")
        e(f"s_lshl_b32 s{S_T1}, s{S_X8}, 2")
        e(f"s_add_u32 s{S_T0}, s{S_T0}, s{S_T1}")
        e(f"v_add_u32 v12, s{S_T0}, v12")
        e("v_lshlrev_b32 v13, 5, v12")
        e(f"s_mov_b32 s{S_T3}, {WS_ML:#x}")
    def ml_loads():
        e(f"buffer_load_dwordx4 {vr(ML)}, v13, {srd(SRD_WS)}, s{S_T3} offen sc1")
        e(f"buffer_load_dwordx4 {vr(ML+4)}, v13, {srd(SRD_WS)}, s{S_T3} offen offset:16 sc1")
    marks = {}
    def wo_and_ml():
        e("v_bfe_u32 v12, v0, 3, 2")
        e("v_lshlrev_b32 v12, 17, v12")
        e("v_lshrrev_b32 v13, 5, v0")
        e("v_lshl_add_u32 v12, v13, 10, v12")
        e("v_and_b32 v13, 7, v0")
        e("v_lshrrev_b32 v14, 4, v0")
        e("v_lshlrev_b32 v14, 1, v14")
        e("v_xor_b32 v13, v13, v14")
        e("v_lshl_add_u32 v12, v13, 4, v12")
        e(f"s_lshl_b32 s{S_T0}, s{S_X8}, 19")
        e(f"s_lshr_b32 s{S_T1}, s{S_JJ}, 3")
        e(f"s_lshl_b32 s{S_T1}, s{S_T1}, 15")
        e(f"s_add_u32 s{S_T0}, s{S_T0}, s{S_T1}")
        e(f"s_and_b32 s{S_T1}, s{S_JJ}, 7")
        e(f"s_lshl_b32 s{S_T1}, s{S_T1}, 7")
        e(f"s_add_u32 s{S_T0}, s{S_T0}, s{S_T1}")
        e(f"s_lshl_b32 s{S_T1}, s{S_W}, 12")
        e(f"s_add_u32 s{S_T0}, s{S_T0}, s{S_T1}")
        tile_dma(SRD_WO, 12, S_T0, 2048, L_WO)
        ml_addr()
        ml_loads()
        marks["ml"] = e.mark()
    if not cfg.wo_late and cfg.wo_mode != 2: wo_and_ml()
    if cfg.ml_late: ml_publish(SLOT(3))
    def wait_w2(mark, extra=""):
        if not cfg.ml_late:
            e.wait_vm(mark, extra); return
        n = e.vm - mark
        lab = f"L_w2_{len(e.ins)}"
        e(f"s_cmp_eq_u32 s{S_W}, 2")
        e(f"s_cbranch_scc1 {lab}a")
        e(f"s_waitcnt vmcnt({n}){extra}")
        e(f"s_branch {lab}b")
        e.label(f"{lab}a")
        e(f"s_waitcnt vmcnt({n+2}){extra}")
        e.label(f"{lab}b")
    stamp("PV0")
    if cfg.prio_off == 'PV0': e("s_setprio 0")
    wait_w2(mV[1]); pv_tile(1)
    if cfg.prio_off == 'PV1': e("s_setprio 0")
    wait_w2(mV[2]); pv_tile(2)
    A_OC, A_OG, A_ACT, A_TB, A_TS, A_TA = 232, 233, 234, 235, 236, 237
    OCW, OCE = (2176, 272) if cfg.ofull else (2048, 256)
    e(f"s_mul_i32 s{S_T0}, s{S_W}, {OCW}")
    e(f"v_add_u32 v{A_OC}, s{S_T0}, v{V_L16}")
    e("v_lshrrev_b32 v12, 4, v0")
    e(f"s_lshl_b32 s{S_T0}, s{S_W}, 5")
    e(f"s_lshl_b32 s{S_T1}, s{S_X8}, 2")
    e(f"s_add_u32 s{S_T0}, s{S_T0}, s{S_T1}")
    e(f"v_add_u32 v12, s{S_T0}, v12")
    e("v_lshlrev_b32 v12, 11, v12")
    e("v_and_b32 v13, 15, v0")
    e(f"v_lshl_add_u32 v{A_OG}, v13, 4, v12")
    S_OG, S_YOFF = 59, 60
    e(f"s_lshr_b32 s{S_OG}, s{S_JJ}, 3")
    e(f"s_lshl_b32 s{S_OG}, s{S_OG}, 9")
    e(f"s_add_u32 s{S_OG}, s{S_OG}, {WS_O:#x}")
    e(f"s_mul_i32 s{S_T0}, s{S_W}, {ACT_STRIDE}")
    e("v_lshlrev_b32 v13, 3, v13")
    e("v_lshrrev_b32 v12, 4, v0")
    e("v_lshl_add_u32 v13, v12, 1, v13")
    e(f"v_add_u32 v{A_ACT}, s{S_T0}, v13")
    e("v_lshrrev_b32 v12, 4, v0")
    e(f"s_mul_i32 s{S_T0}, s{S_W}, {ACT_STRIDE}")
    e(f"v_lshlrev_b32 v{A_TB}, 4, v12")
    e(f"v_add_u32 v{A_TB}, s{S_T0}, v{A_TB}")
    e("v_and_b32 v13, 15, v0")
    e(f"v_lshlrev_b32 v{A_TS}, 11, v13")
    e(f"v_lshl_add_u32 v{A_TS}, v12, 4, v{A_TS}")
    e(f"s_and_b32 s{S_YOFF}, s{S_JJ}, 7")
    e(f"s_lshl_b32 s{S_YOFF}, s{S_YOFF}, 2")
    e(f"s_lshl_b32 s{S_T0}, s{S_W}, 5")
    e(f"s_add_u32 s{S_YOFF}, s{S_YOFF}, s{S_T0}")
    e(f"s_lshl_b32 s{S_YOFF}, s{S_YOFF}, 11")
    e(f"s_lshl_b32 s{S_T0}, s{S_X8}, 2")
    e(f"s_lshr_b32 s{S_T1}, s{S_JJ}, 3")
    e(f"s_add_u32 s{S_T0}, s{S_T0}, s{S_T1}")
    e(f"s_lshl_b32 s{S_T0}, s{S_T0}, 6")
    e(f"s_add_u32 s{S_YOFF}, s{S_YOFF}, s{S_T0}")
    e(f"s_add_u32 s{S_YOFF}, s{S_YOFF}, {WS_Y:#x}")
    A_TR = 224
    e("v_bfe_u32 v13, v0, 2, 2")
    e("v_lshl_add_u32 v14, v12, 3, v13")
    e("v_lshlrev_b32 v14, 7, v14")
    e("v_and_b32 v15, 3, v0")
    e("v_lshl_add_u32 v14, v15, 3, v14")
    e("v_lshrrev_b32 v13, 1, v13")
    e(f"v_lshl_add_u32 v{A_TR}, v13, 5, v14")
    e("v_add_u32 v13, 2, v13")
    e("v_and_b32 v13, 3, v13")
    e(f"v_lshl_add_u32 v{A_TR+4}, v13, 5, v14")
    e(f"v_add_u32 v{A_TR+4}, 512, v{A_TR+4}")
    for cg in range(1, 4):
        e(f"v_xor_b32 v{A_TR+cg}, {cg << 5}, v{A_TR}")
        e(f"v_xor_b32 v{A_TR+4+cg}, {cg << 5}, v{A_TR+4}")
    if cfg.wo_mode == 2:
        A_WO, A_ML = 222, 223
        S_WOOFF = 61 + 0
        e(f"v_bfe_u32 v{A_WO}, v0, 3, 2")
        e(f"v_lshlrev_b32 v{A_WO}, 17, v{A_WO}")
        e("v_lshrrev_b32 v13, 5, v0")
        e(f"v_lshl_add_u32 v{A_WO}, v13, 10, v{A_WO}")
        e("v_and_b32 v13, 7, v0")
        e("v_lshrrev_b32 v14, 4, v0")
        e("v_lshlrev_b32 v14, 1, v14")
        e("v_xor_b32 v13, v13, v14")
        e(f"v_lshl_add_u32 v{A_WO}, v13, 4, v{A_WO}")
        e(f"s_lshl_b32 s{S_GC2}, s{S_X8}, 19")
        e(f"s_lshr_b32 s{S_T1}, s{S_JJ}, 3")
        e(f"s_lshl_b32 s{S_T1}, s{S_T1}, 15")
        e(f"s_add_u32 s{S_GC2}, s{S_GC2}, s{S_T1}")
        e(f"s_and_b32 s{S_T1}, s{S_JJ}, 7")
        e(f"s_lshl_b32 s{S_T1}, s{S_T1}, 7")
        e(f"s_add_u32 s{S_GC2}, s{S_GC2}, s{S_T1}")
        e(f"s_lshl_b32 s{S_T1}, s{S_W}, 12")
        e(f"s_add_u32 s{S_GC2}, s{S_GC2}, s{S_T1}")
        e("v_lshrrev_b32 v12, 4, v0")
        e(f"s_lshl_b32 s{S_T0}, s{S_W}, 5")
        e(f"s_lshl_b32 s{S_T1}, s{S_X8}, 2")
        e(f"s_add_u32 s{S_T0}, s{S_T0}, s{S_T1}")
        e(f"v_add_u32 v12, s{S_T0}, v12")
        e(f"v_lshlrev_b32 v{A_ML}, 5, v12")
    if cfg.ofull:
        e("v_lshrrev_b32 v14, 3, v0")
        e(f"s_lshl_b32 s{S_T0}, s{S_W}, 3")
        e(f"v_add_u32 v14, s{S_T0}, v14")
        e("v_and_b32 v13, 7, v0")
        e(f"v_mul_u32_u24 v238, {OCE}, v13")
        e("v_lshl_add_u32 v238, v14, 4, v238")
        e(f"s_lshl_b32 s{S_T0}, s{S_W}, 10")
        e(f"v_add_u32 v239, s{S_T0}, v{V_L16}")
    else:
        e("v_lshrrev_b32 v13, 4, v0")
        e(f"s_lshl_b32 s{S_T0}, s{S_W}, 2")
        e(f"v_add_u32 v13, s{S_T0}, v13")
        e("v_and_b32 v14, 15, v0")
        e("v_lshlrev_b32 v238, 8, v13")
        e("v_lshl_add_u32 v238, v14, 4, v238")
        e("v_lshl_add_u32 v13, v14, 3, v13")
        e("v_lshlrev_b32 v239, 4, v13")
    e(f"s_lshl_b32 s{S_HOFF}, s{S_CHUNK}, 11")
    e(f"s_add_u32 s{S_HOFF}, s{S_HOFF}, {WS_O:#x}")
    wait_w2(mV[3]); pv_tile(3)
    stamp("PV3")
    if cfg.wo_late: wo_and_ml()
    m_ml = marks.get("ml")

    exec_set(0xffff, 0)
    for ee in range(8): e(f"ds_write_b128 v{A_OC}, {vr(V_ACC+4*ee)} offset:{L_OC + OCE*ee}")
    exec_full()
    if cfg.bw or cfg.wo_mode == 2: e("s_waitcnt lgkmcnt(0)")
    else: wait_w2(m_ml, " lgkmcnt(0)")
    e("s_barrier")
    OG = V_S + 8
    TM = V_S + 16
    WT = V_S
    TA = SLOT(0)
    TB = SLOT(0) + 16
    TD = SLOT(1)
    with Optional():
        e(f"s_cmp_gt_u32 s{S_W}, 1")
        e("s_cbranch_scc1 L_no_opub")
        for w in range(8): e(f"ds_read_b128 {vr(V_ACC+4*w)}, v238 offset:{L_OC + OCW*w}")
        e("s_waitcnt lgkmcnt(0)")
        for i in range(4):
            e(f"v_add_f32 v{V_ACC+i}, v{V_ACC+i}, v{V_ACC+4+i}")
            e(f"v_add_f32 v{V_ACC+8+i}, v{V_ACC+8+i}, v{V_ACC+12+i}")
            e(f"v_add_f32 v{V_ACC+16+i}, v{V_ACC+16+i}, v{V_ACC+20+i}")
            e(f"v_add_f32 v{V_ACC+24+i}, v{V_ACC+24+i}, v{V_ACC+28+i}")
        for i in range(4):
            e(f"v_add_f32 v{V_ACC+i}, v{V_ACC+i}, v{V_ACC+8+i}")
            e(f"v_add_f32 v{V_ACC+16+i}, v{V_ACC+16+i}, v{V_ACC+24+i}")
        for i in range(4): e(f"v_add_f32 v{V_ACC+i}, v{V_ACC+i}, v{V_ACC+16+i}")
        if cfg.rnd:
            for i in range(4): e(f"v_add_u32 v{V_ACC+i}, 0x80, v{V_ACC+i}")
        for i in range(4): e(f"v_and_or_b32 v{V_ACC+i}, v{V_ACC+i}, s{S_M8}, v{V_T8}")
        e(f"buffer_store_dwordx4 {vr(V_ACC)}, v239, {srd(SRD_WS)}, s{S_HOFF} offen sc1")
        e.label("L_no_opub")
    stamp("O_pub")

    OA, OB = 208, 216
    def o_loads(r=OG):
        e(f"buffer_load_dwordx4 {vr(r)}, v{A_OG}, {srd(SRD_WS)}, s{S_OG} offen sc1")
        e(f"buffer_load_dwordx4 {vr(r+4)}, v{A_OG}, {srd(SRD_WS)}, s{S_OG} offen offset:256 sc1")
    o_loads(OA if cfg.ppoll else OG)
    if cfg.wo_mode == 2:
        tile_dma(SRD_WO, A_WO, S_GC2, 2048, L_WO)
        e(f"s_mov_b32 s{S_T3}, {WS_ML:#x}")
        e(f"buffer_load_dwordx4 {vr(ML)}, v{A_ML}, {srd(SRD_WS)}, s{S_T3} offen sc1")
        e(f"buffer_load_dwordx4 {vr(ML+4)}, v{A_ML}, {srd(SRD_WS)}, s{S_T3} offen offset:16 sc1")
        e("s_waitcnt vmcnt(0)")
        e("s_barrier")
    elif cfg.bw:
        e(f"s_cmp_gt_u32 s{S_W}, 1")
        e("s_cbranch_scc1 L_bw_a")
        e("s_waitcnt vmcnt(3)")
        e("s_branch L_bw_b")
        e.label("L_bw_a")
        e("s_waitcnt vmcnt(2)")
        e.label("L_bw_b")
        e("s_barrier")
    TA = SLOT(0)
    for cg in range(4):
        for t in range(4):
            e(f"ds_read_b64_tr_b16 {vr(TA+16*cg+4*t,2)}, v{A_TR+cg} offset:{L_WO + 4096*t}")
            e(f"ds_read_b64_tr_b16 {vr(TA+16*cg+4*t+2,2)}, v{A_TR+4+cg} offset:{L_WO + 4096*t}")
    gather_checked("ml", ml_loads, list(range(ML, ML + 8)), TM, V_T8, 0xff, pre=ml_addr)
    for h in range(4): e(f"v_mov_b32 v{TM+h}, v{ML+h}")
    xrow_reduce("v_max_f32", [TM + h for h in range(4)], [TM + 4 + h for h in range(4)])
    for h in range(4): e(f"v_sub_f32 v{WT+h}, v{ML+h}, v{TM+h}")
    for h in range(4): e(f"v_exp_f32 v{WT+h}, v{WT+h}")
    for h in range(4): e(f"v_mul_f32 v{TM+h}, v{WT+h}, v{ML+4+h}")
    xrow_reduce("v_add_f32", [TM + h for h in range(4)], [TM + 4 + h for h in range(4)])
    for h in range(4): e(f"v_rcp_f32 v{TM+4+h}, v{TM+h}")
    for h in range(4): e(f"v_fma_f32 v{TM+8+h}, -v{TM+h}, v{TM+4+h}, 1.0")
    for h in range(4): e(f"v_fma_f32 v{TM+4+h}, v{TM+8+h}, v{TM+4+h}, v{TM+4+h}")
    for h in range(4): e(f"v_mul_f32 v{WT+h}, v{WT+h}, v{TM+4+h}")
    if cfg.ppoll:
        poll_pipelined("o", lambda: o_loads(OA), lambda: o_loads(OB), list(range(OA, OA + 8)), list(range(OB, OB + 8)), list(range(OG, OG + 8)), 2, TM, V_T8, 0xff)
    else:
        e("s_waitcnt vmcnt(0)")
        gather_checked("o", o_loads, list(range(OG, OG + 8)), TM, V_T8, 0xff)
    stamp("O_got")
    for u in range(2):
        for h in range(4): e(f"v_mul_f32 v{OG+4*u+h}, v{OG+4*u+h}, v{WT+h}")
    for u in range(2):
        o = OG + 4 * u
        e(f"v_permlane32_swap_b32 v{o}, v{o+2}")
        e(f"v_permlane32_swap_b32 v{o+1}, v{o+3}")
    for u in range(2):
        o = OG + 4 * u
        e(f"v_add_f32 v{o}, v{o}, v{o+2}")
        e(f"v_add_f32 v{o+1}, v{o+1}, v{o+3}")
    for u in range(2):
        o = OG + 4 * u
        e(f"v_permlane16_swap_b32 v{o}, v{o+1}")
    for u in range(2):
        o = OG + 4 * u
        e(f"v_add_f32 v{o}, v{o}, v{o+1}")
    e(f"v_cvt_pk_bf16_f32 v{OG}, v{OG}, v{OG+4}")
    e(f"ds_write_b16 v{A_ACT}, v{OG} offset:{L_ACT}")
    e(f"ds_write_b16_d16_hi v{A_ACT}, v{OG} offset:{L_ACT + 128}")
    e("s_waitcnt lgkmcnt(0)")
    TB = 144
    TD = 160
    b_frags(TB, A_TB, L_ACT)
    e("s_waitcnt lgkmcnt(0)")
    for t in range(4):
        for cg in range(4):
            c = "0" if t == 0 else vr(TD + 4 * cg)
            e(f"v_mfma_f32_16x16x32_bf16 {vr(TD+4*cg)}, {vr(TA+16*cg+4*t)}, {vr(TB+4*t)}, {c}")
    e("v_and_b32 v13, 15, v0")
    for cg in range(1, 4):
        e(f"v_cmp_eq_u32 vcc, {cg}, v13")
        for i in range(4): e(f"v_cndmask_b32 v{TD+i}, v{TD+i}, v{TD+4*cg+i}, vcc")
    exec_set(0x000f000f, 0x000f000f)
    if cfg.rnd:
        for i in range(4): e(f"v_add_u32 v{TD+i}, 0x80, v{TD+i}")
    for i in range(4): e(f"v_and_or_b32 v{TD+i}, v{TD+i}, s{S_M8}, v{V_T8}")
    with Optional():
        e(f"buffer_store_dwordx4 {vr(TD)}, v{A_TS}, {srd(SRD_WS)}, s{S_YOFF} offen sc1")
    exec_full()
    stamp("y_pub")

    if cfg.finbar: e("s_barrier")
    FW = cfg.fw
    e(f"s_cmp_lg_u32 s{S_W}, s{S_X8}" if FW < 0 else f"s_cmp_lg_u32 s{S_W}, {FW}")
    e("s_cbranch_scc1 L_end")
    Y = 16
    DD = 24
    e(f"s_lshl_b32 s{S_T0}, s{S_CHUNK}, 11")
    e(f"s_add_u32 s{S_T0}, s{S_T0}, {WS_Y:#x}")
    e(f"s_lshl_b32 s{S_T1}, s{S_CHUNK}, 10")
    e(f"s_add_u32 s{S_T1}, s{S_T1}, {WS_D:#x}")
    FA, FB = 176, 192
    nfin = [0]
    def fin_loads(r=Y):
        for i in range(4): e(f"v_mov_b32 v{r+8+i}, v{V_T8}")
        for i in range(2):
            e(f"buffer_load_dwordx4 {vr(r+4*i)}, v{V_L16}, {srd(SRD_WS)}, s{S_T0} offen offset:{1024*i} sc1")
        e(f"s_mov_b64 s[{S_EXT}:{S_EXT+1}], exec")
        e("s_and_b32 exec_hi, exec_hi, 0xffffff")
        e(f"s_cbranch_execz L_fin_nod{nfin[0]}")
        e(f"buffer_load_dwordx4 {vr(r+8)}, v{V_L16}, {srd(SRD_WS)}, s{S_T1} offen sc1")
        e.label(f"L_fin_nod{nfin[0]}"); nfin[0] += 1
        e(f"s_mov_b64 exec, s[{S_EXT}:{S_EXT+1}]")
    e("v_and_b32 v13, 3, v0")
    e("v_bfe_u32 v14, v0, 4, 1")
    e("v_lshl_add_u32 v14, v13, 2, v14")
    e("v_lshlrev_b32 v14, 1, v14")
    e(f"s_lshl_b32 s{S_T2}, s{S_CHUNK}, 5")
    with Optional():
        e(f"buffer_load_ushort v40, v14, {srd(SRD_X)}, s{S_T2} offen")
        e(f"buffer_load_ushort v41, v14, {srd(SRD_X)}, s{S_T2} offen offset:4")
        fin_loads(FA if cfg.ppoll else Y)
    if cfg.ppoll:
        poll_pipelined("fin", lambda: fin_loads(FA), lambda: fin_loads(FB), list(range(FA, FA + 12)), list(range(FB, FB + 12)), list(range(Y, Y + 12)), 3, 44, V_T8, 0xff)
    else:
        e("s_waitcnt vmcnt(0)")
        gather_checked("fin", fin_loads, list(range(Y, Y + 12)), 44, V_T8, 0xff)
    stamp("fin_got")
    for i in range(4): e(f"v_add_f32 v{Y+i}, v{Y+i}, v{Y+4+i}")
    for i in range(4): e(f"v_permlane32_swap_b32 v{Y+i}, v{DD+i}")
    for i in range(4): e(f"v_add_f32 v{Y+i}, v{Y+i}, v{DD+i}")
    e(f"v_permlane16_swap_b32 v{Y}, v{Y+1}")
    e(f"v_permlane16_swap_b32 v{Y+2}, v{Y+3}")
    e(f"v_add_f32 v{Y}, v{Y}, v{Y+1}")
    e(f"v_add_f32 v{Y+2}, v{Y+2}, v{Y+3}")
    for ror in (4, 8):
        e(f"v_add_f32_dpp v{Y}, v{Y}, v{Y} row_ror:{ror} row_mask:0xf bank_mask:0xf")
        e(f"v_add_f32_dpp v{Y+2}, v{Y+2}, v{Y+2} row_ror:{ror} row_mask:0xf bank_mask:0xf")
    e(f"v_mov_b32 v{DD}, v{Y}")
    e(f"v_mov_b32 v{DD+1}, v{Y+2}")
    e(f"v_permlane32_swap_b32 v{Y}, v{DD}")
    e(f"v_permlane32_swap_b32 v{Y+2}, v{DD+1}")
    e(f"v_cvt_pk_bf16_f32 v44, v{Y}, v{Y+2}")
    e(f"v_cvt_pk_bf16_f32 v45, v{DD}, v{DD+1}")
    e(f"v_lshlrev_b32 v46, 16, v45")
    e(f"v_and_b32 v47, s{S_M16}, v45")
    e(f"v_mul_f32 v48, {f2u(-LOG2E):#x}, v46")
    e(f"v_mul_f32 v49, {f2u(-LOG2E):#x}, v47")
    e("v_exp_f32 v48, v48")
    e("v_exp_f32 v49, v49")
    e("v_add_f32 v48, 1.0, v48")
    e("v_add_f32 v49, 1.0, v49")
    e("v_rcp_f32 v48, v48")
    e("v_rcp_f32 v49, v49")
    e("v_lshlrev_b32 v50, 16, v44")
    e(f"v_and_b32 v51, s{S_M16}, v44")
    e("v_mul_f32 v48, v46, v48")
    e("v_mul_f32 v49, v47, v49")
    e("v_cvt_pk_bf16_f32 v48, v48, v49")
    e("v_lshlrev_b32 v46, 16, v48")
    e(f"v_and_b32 v47, s{S_M16}, v48")
    e("v_mul_f32 v46, v50, v46")
    e("v_mul_f32 v47, v51, v47")
    e("v_cvt_pk_bf16_f32 v48, v46, v47")
    e("v_lshlrev_b32 v46, 16, v48")
    e(f"v_and_b32 v47, s{S_M16}, v48")
    e("v_lshlrev_b32 v40, 16, v40")
    e("v_lshlrev_b32 v41, 16, v41")
    e("v_add_f32 v46, v46, v40")
    e("v_add_f32 v47, v47, v41")
    e("v_cvt_pk_bf16_f32 v48, v46, v47")
    exec_set(0x000f000f, 0)
    e(f"buffer_store_short v48, v14, {srd(SRD_OUT)}, s{S_T2} offen")
    e(f"buffer_store_short_d16_hi v48, v14, {srd(SRD_OUT)}, s{S_T2} offen offset:4")
    e("s_cmp_lg_u32 s2, 0")
    e("s_cbranch_scc1 L_no_epoch")
    exec_set(1, 0)
    e(f"v_mov_b32 v50, s{S_TAG}")
    e("v_mov_b32 v51, 0")
    e(f"buffer_store_dword v50, v51, {srd(SRD_WS)}, 0 offen offset:{WS_EPOCH}")
    e.label("L_no_epoch")
    exec_full()
    e.label("L_end")
    if cfg.stamps:
        e("s_cmp_ge_u32 s2, 256")
        e("s_cbranch_scc1 L_end2")
        e("s_memrealtime s[100:101]")
        e("s_waitcnt lgkmcnt(0)")
        e("s_lshl_b32 s55, s2, 3")
        e(f"s_add_u32 s55, s55, s{S_W}")
        e("s_lshl_b32 s55, s55, 7")
        e(f"s_add_u32 s55, s55, {WS_ST:#x}")
        exec_set(1, 0)
        e("v_mov_b32 v51, 0")
        for i in list(range(len(names))) + [15]:
            r = stamp_reg(i) if i < 15 else 100
            e(f"v_mov_b32 v48, s{r}")
            e(f"v_mov_b32 v49, s{r+1}")
            e(f"buffer_store_dwordx2 v[48:49], v51, {srd(SRD_WS)}, s55 offen offset:{8*i}")
            e("s_nop 1")
        e.label("L_end2")
    gen.names = names + ["end"]
    gen.final_wave = FW
    e("s_endpgm")

    hdr = open("cdna_kernels/" + NAME + ".s.ref").read().split("\n")
    head = [l for l in hdr if l.startswith(";") and "@launch" not in l and "Override" not in l and "grid=ceil" not in l]
    doc = """;
; One persistent launch, 256 workgroups x 8 waves (one workgroup per CU); id = 8*jj + x.
;   attention chunk   : batch x, kv head jj>>2, key quarter jj&3 (1024 keys; wave w owns key tiles 8t+w, 32 keys each)
;   K and V stream straight into registers (nt, 1 KiB per wave instruction, at most 5 in flight per wave)
;   scores            : MFMA with K rows as (key, dim-quarter), q columns as (dim-quarter, head), diagonal summed by DPP
;   softmax           : true maximum of the workgroup's 1024 keys (LDS exchange), bf16 rounding of the scores as the reference
;   P.V               : v_perm transposes V pairs in registers, MFMA accumulates O for the 4 heads
;   projections       : [128 k x 64 n] weight tiles through LDS-DMA + transposing LDS reads (wq, gate/up, w_down, wo)
; Hand-offs between workgroups go through d_ws with write-through stores and L1-bypassing loads; every handed-off dword
; carries a tag in its low bits (tag = word 0 of d_ws at entry + 0x0101, written back by workgroup 0 at the end), the
; consumer re-reads until every tag matches (bounded), and clears the tag bits before use.
;   q / gate-up partials -> q fragments, h -> w_down partials ; (M, L, O) per chunk -> wo partials per batch -> output
""".split("\n")[:-1]
    out = "\n".join(head + doc) + "\n"
    out += f"; @launch grid=(256,1,1) block=(512,1,1) lds={L_END}\n"
    out += '.amdgcn_target "amdgcn-amd-amdhsa--gfx950"\n.text\n'
    out += f".globl {KNAME}\n.p2align 8\n.type {KNAME},@function\n{KNAME}:\n"
    out += e.text()
    out += f""".section .rodata,"a"
.p2align 6
.amdhsa_kernel {KNAME}
  .amdhsa_next_free_vgpr {NVGPR}
  .amdhsa_next_free_sgpr 102
  .amdhsa_accum_offset {NVGPR}
  .amdhsa_group_segment_fixed_size 0
  .amdhsa_kernarg_size 96
  .amdhsa_user_sgpr_count 2
  .amdhsa_user_sgpr_kernarg_segment_ptr 1
  .amdhsa_system_sgpr_workgroup_id_x 1
  .amdhsa_float_denorm_mode_32 3
.end_amdhsa_kernel
"""
    return out

if __name__ == "__main__":
    kw = eval("dict(%s)" % (sys.argv[2] if len(sys.argv) > 2 else ""))
    txt = gen(Cfg(**kw))
    path = sys.argv[1] if len(sys.argv) > 1 else "cdna_kernels/" + NAME + ".s"
    open(path, "w").write(txt)
    print("wrote", path, len(txt), "bytes; LDS", L_END)
```
